```python
import torch

def _softmax(x, axis=-1):
    return torch.softmax(x, dim=axis)
def _gelu(x):
    return torch.nn.functional.gelu(x, approximate="tanh")
def _silu(x):
    return torch.nn.functional.silu(x)
def _sigmoid(x):
    return torch.sigmoid(x)
def _layernorm(x, axis=-1, eps=1e-5):
    m = x.mean(dim=axis, keepdim=True)
    v = x.var(dim=axis, keepdim=True, unbiased=False)
    return (x - m) / torch.sqrt(v + eps)
def _scatter_add(tgt, idx, src, axis=0):
    return tgt.clone().index_add_(axis, idx, src)
def _segment_sum(src, seg, n):
    out = torch.zeros((n,) + src.shape[1:], dtype=src.dtype)
    return out.index_add_(0, seg, src)
def _pad(x, pw):
    flat = tuple(v for pair in reversed(pw) for v in pair)
    return torch.nn.functional.pad(x, flat)

kernel_name = 'sequential_preLN__linear_attn_block__swiglu_ffn__prompt'

def setup_inputs():

    _w = (lambda a: (lambda t: t.to(torch.bfloat16) if t.is_floating_point() else t)(torch.as_tensor(a)))
    def _A_setup():
        B, S, D = 1, 2048, 640
        return {
            "x": _w((lambda *s: torch.randn(*s, dtype=torch.bfloat16) * 0.05)(B, S, D)),
            "wqkv": _w((lambda *s: torch.randn(*s, dtype=torch.bfloat16) * 0.1)(D, 3 * D)),
            "wo": _w((lambda *s: torch.randn(*s, dtype=torch.bfloat16) * 0.05)(D, D)),
        }
    _A_in = _A_setup()

    def _B_setup():
        B, S, D, F = 1, 2048, 640, 1728
        return {
            "x": _w((lambda *s: torch.randn(*s, dtype=torch.bfloat16) * 0.05)(B, S, D)),
            "w_gate": _w((lambda *s: torch.randn(*s, dtype=torch.bfloat16) * 0.05)(D, F)),
            "w_up": _w((lambda *s: torch.randn(*s, dtype=torch.bfloat16) * 0.05)(D, F)),
            "w_down": _w((lambda *s: torch.randn(*s, dtype=torch.bfloat16) * 0.05)(F, D)),
        }
    _B_in = _B_setup()

    return {
        "A_x": _A_in["x"],
        "A_wqkv": _A_in["wqkv"],
        "A_wo": _A_in["wo"],
        "B_x": _B_in["x"],
        "B_w_gate": _B_in["w_gate"],
        "B_w_up": _B_in["w_up"],
        "B_w_down": _B_in["w_down"],
    }

def reference(A_x, A_wqkv, A_wo, B_x, B_w_gate, B_w_up, B_w_down):
    def _A_ref(x, wqkv, wo):
        B, S, D = x.shape
        H = 32; Dh = D // H
        qkv = (lambda x, *d: x.permute(*d))((x @ wqkv).reshape(B, S, 3, H, Dh), 2, 0, 3, 1, 4)
        q, k, v = qkv[0], qkv[1], qkv[2]
        phi = lambda t: torch.where(t > 0, t + 1, torch.exp(t)) + 1e-6
        pq, pk = phi(q), phi(k)
        kv = torch.einsum("bhsd,bhse->bhde", pk, v)
        z = torch.einsum("bhsd->bhd", pk)
        num = torch.einsum("bhqd,bhde->bhqe", pq, kv)
        den = torch.einsum("bhqd,bhd->bhq", pq, z)[..., None] + 1e-6
        o = num / den
        return (lambda x, *d: x.permute(*d))(o, 0, 2, 1, 3).reshape(B, S, D) @ wo

    def _B_ref(x, w_gate, w_up, w_down):
        g = _silu(x @ w_gate)
        u = x @ w_up
        return (g * u) @ w_down

    x = A_x
    h = x + _A_ref(_layernorm(x, axis=-1), A_wqkv, A_wo)
    h2 = h + _B_ref(_layernorm(h, axis=-1), B_w_gate, B_w_up, B_w_down)
    return h2
```

```python
import re

REG_RE = re.compile(r"\b([vas])\[(\d+):(\d+)\]|\b([vas])(\d+)\b|\b(vcc|exec|m0|scc|exec_lo|exec_hi|vcc_lo|vcc_hi)\b")
TRANS = ("v_exp_f32", "v_log_f32", "v_rcp_f32", "v_rsq_f32", "v_sqrt_f32", "v_sin_f32", "v_cos_f32")


def regs_of(op):
    out = []
    for m in REG_RE.finditer(op):
        if m.group(1):
            out += [(m.group(1), i) for i in range(int(m.group(2)), int(m.group(3)) + 1)]
        elif m.group(4):
            out.append((m.group(4), int(m.group(5))))
        else:
            n = m.group(6)
            if n.startswith("exec"):
                out.append(("x", "exec"))
            elif n.startswith("vcc"):
                out.append(("x", "vcc"))
            else:
                out.append(("x", n))
    return out


def split_ops(s):
    ops, depth, cur = [], 0, ""
    for ch in s:
        if ch in "[(":
            depth += 1
        if ch in "])":
            depth -= 1
        if ch == "," and depth == 0:
            ops.append(cur.strip()); cur = ""
        else:
            cur += ch
    if cur.strip():
        ops.append(cur.strip())
    return ops


class Tok:
    def __init__(self):
        self.kind = None
        self.seq = None


class Asm:
    def __init__(self):
        self.lines = []
        self.reset_state()
        self.ninstr = 0
        self.ever = set()
        self.nops = 0

    def reset_state(self):
        self.t = 0
        self.wr = {}
        self.mfma_c = {}
        self.st_data = {}
        self.vm_n = 0
        self.vm_done = 0
        self.lg_n = 0
        self.lg_done = 0
        self.pend = {}
        self.smem_pending = False

    def raw(self, s):
        self.lines.append(s)

    def label(self, name):
        self.lines.append(name + ":")

    def comment(self, s):
        self.lines.append("; " + s)

    def nop(self, n):
        while n > 0:
            k = min(n, 16)
            self.lines.append(f"s_nop {k-1}")
            self.t += k
            self.nops += k
            n -= k

    def fence(self):
        self.nop(13)
        self.wr.clear(); self.mfma_c.clear(); self.st_data.clear()

    def cond_begin(self):
        self._snap = (self.vm_n, self.vm_done, self.lg_n, self.lg_done, dict(self.pend), self.smem_pending)

    def cond_end(self):
        vm_n, vm_done, lg_n, lg_done, pend, sp = self._snap
        assert vm_n == self.vm_n and lg_n == self.lg_n, "memory ops inside conditional block"
        self.vm_done, self.lg_done, self.pend, self.smem_pending = vm_done, lg_done, pend, sp
        self.fence()

    def _wait(self, vm=None, lg=None):
        parts = []
        if vm is not None:
            parts.append(f"vmcnt({vm})")
        if lg is not None:
            parts.append(f"lgkmcnt({lg})")
        if parts:
            self.lines.append("s_waitcnt " + " ".join(parts))
            self.t += 1

    def need(self, vmseq=None, lgseq=None):
        vm = lg = None
        if vmseq is not None and vmseq >= self.vm_done:
            n = self.vm_n - 1 - vmseq
            vm = min(n, 63)
            self.vm_done = self.vm_n - vm
        if lgseq is not None and lgseq >= self.lg_done:
            n = self.lg_n - 1 - lgseq
            if self.smem_pending:
                n = 0
            lg = min(n, 15)
            self.lg_done = self.lg_n - lg
            if lg == 0:
                self.smem_pending = False
                for r in [r for r, p in self.pend.items() if p[0] == "sm"]:
                    del self.pend[r]
        self._wait(vm, lg)

    def wait_tok(self, *toks):
        vm = max([t.seq for t in toks if t.kind == "vm"], default=None)
        lg = max([t.seq for t in toks if t.kind == "lg"], default=None)
        self.need(vm, lg)

    def wait_vm0(self):
        if self.vm_done < self.vm_n:
            self.vm_done = self.vm_n
            self._wait(0, None)

    def wait_lg0(self, force=False):
        if self.lg_done < self.lg_n or self.smem_pending or force:
            self.lg_done = self.lg_n
            self.smem_pending = False
            for r in [r for r, p in self.pend.items() if p[0] == "sm"]:
                del self.pend[r]
            self._wait(None, 0)

    def wait_all(self):
        self.vm_done = self.vm_n; self.lg_done = self.lg_n; self.smem_pending = False
        self.pend.clear()
        self._wait(0, 0)

    def i(self, text, tok=None, needs=()):
        text = text.strip()
        mn, _, rest = text.partition(" ")
        ops = split_ops(rest)
        dsts, srcs = [], []
        kind = None
        is_mfma = mn.startswith("v_mfma")
        is_valu = mn.startswith("v_") and not is_mfma
        is_vmem = mn.startswith("buffer_") or mn.startswith("global_")
        is_ds = mn.startswith("ds_")
        is_smem = mn.startswith("s_load") or mn.startswith("s_memtime") or mn.startswith("s_memrealtime") or mn.startswith("s_buffer_load")
        is_salu = mn.startswith("s_") and not is_smem
        lds_dma = is_vmem and re.search(r"\blds\b", rest) is not None
        cregs = []
        if is_mfma:
            dsts = regs_of(ops[0]); srcs = regs_of(ops[1]) + regs_of(ops[2]); cregs = regs_of(ops[3])
            kind = "mfma8" if "32x32" in mn else "mfma4"
        elif is_valu:
            kind = "trans" if mn.replace("_e32", "").replace("_e64", "") in TRANS else "valu"
            if mn.startswith("v_permlane") and "swap" in mn:
                dsts = regs_of(ops[0]) + regs_of(ops[1]); srcs = list(dsts)
            elif mn.startswith(("v_add_co", "v_sub_co", "v_addc_co", "v_subrev_co")):
                dsts = regs_of(ops[0]) + regs_of(ops[1]); srcs = sum([regs_of(o) for o in ops[2:]], [])
            else:
                dsts = regs_of(ops[0]); srcs = sum([regs_of(o) for o in ops[1:]], [])
                if mn.startswith(("v_fmac", "v_dot2c", "v_pk_fmac")) or "dpp" in text or "row_" in text or "quad_perm" in text:
                    srcs += dsts
                if mn.startswith("v_cndmask") and len(ops) == 3:
                    srcs.append(("x", "vcc"))
        elif is_vmem:
            if ("load" in mn and not lds_dma) or ("atomic" in mn and re.search(r"\bsc0\b", rest)):
                dsts = regs_of(ops[0]); srcs = sum([regs_of(o) for o in ops[1:]], [])
                if "atomic" in mn:
                    srcs += dsts
            else:
                srcs = sum([regs_of(o) for o in ops], [])
            if lds_dma:
                srcs.append(("x", "m0"))
        elif is_ds:
            if mn.startswith(("ds_read", "ds_bpermute", "ds_permute", "ds_swizzle")):
                dsts = regs_of(ops[0]); srcs = sum([regs_of(o) for o in ops[1:]], [])
            else:
                srcs = sum([regs_of(o) for o in ops], [])
        elif is_smem:
            dsts = regs_of(ops[0]); srcs = sum([regs_of(o) for o in ops[1:]], [])
        elif is_salu:
            kind = "salu"
            if mn.startswith(("s_cmp", "s_cbranch", "s_branch", "s_barrier", "s_waitcnt", "s_nop", "s_sleep", "s_setprio", "s_endpgm")):
                srcs = sum([regs_of(o) for o in ops], [])
            else:
                dsts = regs_of(ops[0]); srcs = sum([regs_of(o) for o in ops[1:]], [])
                if "saveexec" in mn:
                    dsts.append(("x", "exec"))

        for r in srcs + cregs:
            if r[0] in "va" and r not in self.ever and r != ("v", 0):
                raise ValueError(f"read of never-written register {r} in: {text}")
        for r in dsts:
            self.ever.add(r)
        vmq = lgq = None
        for r in srcs + cregs + dsts:
            p = self.pend.get(r)
            if p:
                if p[0] == "vm":
                    vmq = max(vmq if vmq is not None else -1, p[1])
                elif p[0] == "lg":
                    lgq = max(lgq if lgq is not None else -1, p[1])
                else:
                    self.wait_lg0()
        for tk in needs:
            if tk.kind == "vm":
                vmq = max(vmq if vmq is not None else -1, tk.seq)
            elif tk.kind == "lg":
                lgq = max(lgq if lgq is not None else -1, tk.seq)
            else:
                raise ValueError("token not issued yet")
        self.need(vmq, lgq)
        for r in srcs + cregs + dsts:
            p = self.pend.get(r)
            if p and ((p[0] == "vm" and p[1] < self.vm_done) or (p[0] == "lg" and p[1] < self.lg_done)):
                del self.pend[r]
        if is_vmem and self.vm_n - self.vm_done >= 63:
            self.need(vmseq=self.vm_n - 63)
        if is_ds and self.lg_n - self.lg_done >= 15:
            self.need(lgseq=self.lg_n - 15)

        need = 0

        def req(tp, ws):
            nonlocal need
            need = max(need, ws - (self.t - tp - 1))

        for r in srcs + cregs:
            w = self.wr.get(r)
            if not w:
                continue
            tp, k = w
            isv = r[0] in "va"
            if k in ("valu", "trans"):
                if isv:
                    if is_mfma:
                        req(tp, 2)
                    if is_valu:
                        if mn.startswith(("v_readfirstlane", "v_readlane")):
                            req(tp, 1)
                        if mn.startswith("v_permlane"):
                            req(tp, 2)
                        if "dpp" in text or "row_" in text or "quad_perm" in text:
                            req(tp, 2)
                        if k == "trans":
                            req(tp, 1)
                else:
                    if is_vmem:
                        req(tp, 5)
                    if is_valu:
                        req(tp, 4 if mn.startswith(("v_readlane", "v_writelane")) else 2)
                    if is_salu or is_smem:
                        req(tp, 1)
            elif k in ("mfma4", "mfma8"):
                p4 = k == "mfma4"
                if is_mfma and r in cregs:
                    same = self.wr_range.get(r) == tuple(cregs) and kind == k
                    if not same:
                        req(tp, 6 if p4 else 10)
                else:
                    req(tp, 8 if p4 else 12)
            elif k == "salu":
                if r == ("x", "m0") and lds_dma:
                    req(tp, 1)
        for r in dsts:
            w = self.wr.get(r)
            if w and w[1] in ("mfma4", "mfma8") and not is_mfma:
                req(w[0], 8 if w[1] == "mfma4" else 12)
            if w and w[1] in ("mfma4", "mfma8") and is_mfma and r not in cregs:
                req(w[0], 8 if w[1] == "mfma4" else 12)
            c = self.mfma_c.get(r)
            if c and not is_mfma:
                req(c[0], 3 if c[1] == 4 else 7)
            s = self.st_data.get(r)
            if s is not None:
                req(s, 2)
        if is_mfma:
            w = self.wr.get(("x", "exec"))
            if w and w[1] in ("valu", "trans"):
                req(w[0], 4)
        if need > 0:
            self.nop(need)

        self.lines.append(text)
        self.ninstr += 1
        tnow = self.t
        self.t += 1
        if mn == "s_nop":
            self.t += int(ops[0])
        if not hasattr(self, "wr_range"):
            self.wr_range = {}
        for r in dsts:
            if kind:
                self.wr[r] = (tnow, kind)
            else:
                self.wr.pop(r, None)
            if is_mfma:
                self.wr_range[r] = tuple(dsts)
        if is_mfma:
            for r in cregs:
                self.mfma_c[r] = (tnow, 8 if kind == "mfma8" else 4)
        if is_vmem and ("store" in mn or "atomic" in mn) and ("x4" in mn or "x3" in mn):
            for r in regs_of(ops[0]):
                self.st_data[r] = tnow
        if is_vmem:
            seq = self.vm_n
            self.vm_n += 1
            for r in dsts:
                self.pend[r] = ("vm", seq)
            if tok is not None:
                tok.kind = "vm"; tok.seq = seq
        elif is_ds:
            seq = self.lg_n
            self.lg_n += 1
            for r in dsts:
                self.pend[r] = ("lg", seq)
            if tok is not None:
                tok.kind = "lg"; tok.seq = seq
        elif is_smem:
            self.smem_pending = True
            for r in dsts:
                self.pend[r] = ("sm", 0)
        return tok

    wr_range = {}

    def many(self, text):
        for ln in text.strip().split("\n"):
            ln = ln.split(";")[0].strip()
            if ln:
                self.i(ln)

    def text(self):
        return "\n".join(self.lines) + "\n"


def vr(base, n=4, f="v"):
    return f"{f}[{base}:{base+n-1}]" if n > 1 else f"{f}{base}"


def kernel_wrap(name, body, vgpr, agpr, sgpr=102):
    acc = (vgpr + 3) // 4 * 4
    nfv = acc + agpr if agpr else vgpr
    return f""".text
.globl {name}
.p2align 8
.type {name},@function
{name}:
{body}
.section .rodata,"a"
.p2align 6
.amdhsa_kernel {name}
  .amdhsa_next_free_vgpr {nfv}
  .amdhsa_next_free_sgpr {sgpr}
  .amdhsa_accum_offset {acc}
  .amdhsa_group_segment_fixed_size 0
  .amdhsa_kernarg_size 80
  .amdhsa_user_sgpr_count 2
  .amdhsa_user_sgpr_kernarg_segment_ptr 1
  .amdhsa_system_sgpr_workgroup_id_x 1
  .amdhsa_float_denorm_mode_32 3
.end_amdhsa_kernel
"""


def interleave(a, main, side, ratio=None, start=0):
    def emit(x):
        if callable(x):
            x()
        elif isinstance(x, tuple):
            a.i(*x)
        else:
            a.i(x)
    n = len(main) - start
    m = len(side)
    si = 0
    for idx, x in enumerate(main):
        emit(x)
        if idx >= start and n > 0:
            tgt = (idx - start + 1) * m // n if ratio is None else min(m, int((idx - start + 1) * ratio))
            while si < tgt:
                emit(side[si]); si += 1
    while si < m:
        emit(side[si]); si += 1
```

```python
import sys
from asmgen import Asm, Tok, vr, kernel_wrap, interleave
from layout import *

STAMP_INS = "s_memrealtime"
STAMPS = False
OUT_BYTES = 2048 * 640 * 2
WS_BYTES = 0x10000000

KA_X, KA_WQKV, KA_WO, KA_BX, KA_WG, KA_WU, KA_WD, KA_OUT, KA_DBG, KA_WS = [8 * i for i in range(10)]


def srd(a, d, ptr, nbytes):
    a.i(f"s_mov_b32 s{d}, s{ptr}")
    a.i(f"s_and_b32 s{d+1}, s{ptr+1}, 0xffff")
    a.i(f"s_mov_b32 s{d+2}, {nbytes}")
    a.i(f"s_mov_b32 s{d+3}, 0x20000")


def stamp(a, wait=False):
    if STAMPS and a.nstamp < 8:
        if wait:
            a.wait_all()
        a.i(f"{STAMP_INS} s[{80+2*a.nstamp}:{81+2*a.nstamp}]")
        a.nstamp += 1


def prologue(a, name, nwg, loads):
    if STAMPS:
        a.nstamp = 0
        for i in range(80, 96):
            a.i(f"s_mov_b32 s{i}, 0")
        stamp(a)
    a.i(f"s_cmp_ge_u32 s2, {nwg}")
    a.i(f"s_cbranch_scc1 L_end_{name}")
    for s, off in loads:
        a.i(f"s_load_dwordx2 s[{s}:{s+1}], s[0:1], {off}")
    a.i("v_lshrrev_b32 v2, 6, v0")
    a.i("v_and_b32 v1, 63, v0")
    a.i("v_readfirstlane_b32 s16, v2")


def epilogue(a, name, kidx, nwg, srd_ws=8):
    if STAMPS:
        stamp(a)
        a.wait_all()
        a.i("s_barrier")
        a.nstamp = 7
        stamp(a)
        a.wait_lg0(True)
        for i in range(16):
            a.i(f"v_mov_b32 v{4+i}, s{80+i}")
        a.i("s_lshl_b32 s3, s2, 6")
        a.i(f"s_add_u32 s3, s3, {WS_STAMP + kidx * 256 * 64}")
        a.i("v_mov_b32 v2, s3")
        a.i("v_cmp_eq_u32 vcc, 0, v0")
        a.i("s_and_saveexec_b64 s[76:77], vcc")
        a.i(f"s_cbranch_execz L_end_{name}")
        for i in range(4):
            a.i(f"buffer_store_dwordx4 v[{4+4*i}:{7+4*i}], v2, s[{srd_ws}:{srd_ws+3}], 0 offen offset:{16*i}")
    a.label(f"L_end_{name}")
    a.i("s_endpgm")


def mfma(d, A, B, C=None):
    c = d if C is None else C
    return f"v_mfma_f32_16x16x32_bf16 {d}, {A}, {B}, {c}"


def ksplit_reduce(a, ACC, TMP, nb=5, f="v", OUT=None):
    if OUT is None:
        OUT = ACC
    a.i("v_lshlrev_b32 v2, 4, v1")
    for rp in (1, 2, 3):
        a.i(f"s_add_u32 s20, s16, {rp}")
        a.i("s_and_b32 s20, s20, 3")
        a.i(f"s_mul_i32 s20, s20, {3*nb*1024}")
        a.i(f"s_add_u32 s20, s20, {(rp-1)*nb*1024}")
        a.i(f"v_add_u32 v{2+rp}, s20, v2")
    a.i(f"s_mul_i32 s20, s16, {3*nb*1024}")
    a.i("v_add_u32 v6, s20, v2")
    for rp in (1, 2, 3):
        for b in range(nb):
            a.i(f"ds_write_b128 v{2+rp}, {vr(ACC+(rp*nb+b)*4, 4, f)} offset:{b*1024}")
    if f == "a":
        for k in range(nb * 4):
            a.i(f"v_accvgpr_read_b32 v{OUT+k}, a{ACC+k}")
    a.wait_lg0()
    a.i("s_barrier")
    for b in range(nb):
        for q in range(3):
            a.i(f"ds_read_b128 {vr(TMP+(b*3+q)*4)}, v6 offset:{(q*nb+b)*1024}")
    for b in range(nb):
        for q in range(3):
            for j in range(4):
                a.i(f"v_add_f32 v{OUT+b*4+j}, v{OUT+b*4+j}, v{TMP+(b*3+q)*4+j}")


def smask(a, sp, mask):
    a.i(f"s_mov_b32 s{sp}, 0x{mask & 0xffffffff:08x}")
    a.i(f"s_mov_b32 s{sp+1}, 0x{mask >> 32:08x}")


def gen_p2(kidx, name="p2_kernel", st_flags="", rot=True):
    a = Asm()
    prologue(a, name, 256, [(4, KA_WS), (6, KA_X)])
    a.many("""s_and_b32 s19, s2, 7
              s_lshr_b32 s20, s2, 3
              s_lshl_b32 s17, s19, 2
              s_lshr_b32 s21, s20, 3
              s_add_u32 s17, s17, s21
              s_and_b32 s18, s20, 7""")
    if rot:
        a.many("""s_add_u32 s19, s21, s18
                  s_add_u32 s19, s19, s16
                  s_and_b32 s19, s19, 3""")
    else:
        a.i("s_mov_b32 s19, s16")
    a.many("""v_lshlrev_b32 v2, 4, v1
              v_add_u32 v3, 0x1000, v2
              v_lshrrev_b32 v8, 4, v1
              v_lshlrev_b32 v9, 4, v8""")
    for rp in range(4):
        a.i(f"s_add_u32 s22, s16, {rp}")
        a.i("s_and_b32 s22, s22, 3")
        a.i("s_lshl_b32 s22, s22, 10")
        a.i(f"v_add_u32 v{4+rp}, s22, v2")
    a.many(f"""s_mul_i32 s24, s17, 20
              s_mul_i32 s22, s19, 5
              s_add_u32 s24, s24, s22
              s_lshl_b32 s24, s24, 12
              s_add_u32 s24, s24, {WS_PQ}
              s_mul_i32 s25, s18, 20
              s_add_u32 s25, s25, s22
              s_mul_i32 s25, s25, 5120
              s_add_u32 s25, s25, {WS_WO}
              s_lshl_b32 s26, s22, 10
              s_add_u32 s26, s26, {WS_RM}
              s_mul_i32 s27, s19, {26*1024}
              s_add_u32 s27, s27, {WS_KV}
              s_mul_i32 s28, s19, 640
              s_add_u32 s28, s28, {WS_Z}""")
    for ap in range(5):
        m = 0
        for l in range(64):
            if (16 * ap + 4 * (l >> 4)) // 20 == (l & 3):
                m |= 1 << l
        smask(a, 40 + 2 * ap, m)
    smask(a, 50, 0xFFFFFFFFFFFF0000); smask(a, 52, 0xFFFFFFFF00000000); smask(a, 54, 0xFFFF000000000000)
    a.wait_lg0()
    srd(a, 8, 4, WS_BYTES)
    srd(a, 12, 6, OUT_BYTES)
    KVR, ZR = 16, 120
    KF, ZF = 160, 232
    NUM = [16, 64]; OF = [112, 132]; TT = 152
    ACC, WOF, PQF = 0, 96, 216
    for ab in range(10):
        a.i(f"buffer_load_dwordx4 {vr(ZR+ab*4)}, v9, s[8:11], s28 offen offset:{ab*64}")
    for i in range(26):
        if i % 8 == 0:
            a.i(f"s_add_u32 s29, s27, {i*1024}")
        a.i(f"buffer_load_dwordx4 {vr(KVR+i*4)}, {'v2' if i % 8 < 4 else 'v3'}, s[8:11], s29 offen offset:{(i % 4)*1024}")

    def pq_loads(rp):
        L = []
        for j in range(5):
            L.append(f"s_add_u32 s29, s24, {j*4096}")
            L.append(f"buffer_load_dwordx4 {vr(PQF+(rp % 2)*20+j*4, 4, 'a')}, v{4+rp}, s[8:11], s29 offen")
        return L

    def wo_loads(j):
        L = [f"s_add_u32 s30, s25, {j*5120}"]
        for b in range(5):
            L.append(f"buffer_load_dwordx4 {vr(WOF+(j*6+b)*4, 4, 'a')}, {'v2' if b < 4 else 'v3'}, s[8:11], s30 offen offset:{(b % 4)*1024}")
        L.append(f"buffer_load_dwordx4 {vr(WOF+(j*6+5)*4, 4, 'a')}, {'v2' if j < 4 else 'v3'}, s[8:11], s26 offen offset:{(j % 4)*1024}")
        return L
    interleave(a, pq_loads(0) + pq_loads(1), [])
    stamp(a)
    conv = []
    zf = {}
    for zb in range(2):
        for j in ([0, 1, 2] if zb == 0 else [2, 3, 4]):
            r = ZF + len(zf) * 4
            zf[(zb, j)] = r
            for h in range(2):
                ab = 2 * j + h
                if ab // 5 == zb:
                    for jj in range(2):
                        conv.append(f"v_cvt_pk_bf16_f32 v{r+2*h+jj}, v{ZR+ab*4+2*jj}, v{ZR+ab*4+2*jj+1}")
                    for jj in range(2):
                        conv.append(f"v_cndmask_b32 v{r+2*h+jj}, 0, v{r+2*h+jj}, s[{40+2*(ab % 5)}:{41+2*(ab % 5)}]")
                else:
                    conv += [f"v_mov_b32 v{r+2*h}, 0", f"v_mov_b32 v{r+2*h+1}, 0"]
    kf = {}
    for b in range(10):
        for j in range(5):
            val = [(ab // 5 == b // 5 and abs(ab - b) <= 1) for ab in (2 * j, 2 * j + 1)]
            if not any(val):
                continue
            r = KF + len(kf) * 4
            kf[(b, j)] = r
            for h in range(2):
                ab = 2 * j + h
                if val[h]:
                    src = KVR + (13 * (b // 5) + 2 * (ab % 5) + (b % 5)) * 4
                    for jj in range(2):
                        conv.append(f"v_cvt_pk_bf16_f32 v{r+2*h+jj}, v{src+2*jj}, v{src+2*jj+1}")
                else:
                    conv += [f"v_mov_b32 v{r+2*h}, 0", f"v_mov_b32 v{r+2*h+1}, 0"]
    assert len(kf) == 18 and len(zf) == 6
    wl = sum([wo_loads(j) for j in range(5)], [])
    interleave(a, conv, wl[:14])
    stamp(a)

    def o_mfma(rp):
        N = NUM[rp % 2]
        L = []
        pq = lambda j: vr(PQF + (rp % 2) * 20 + j * 4, 4, 'a')
        for zb in range(2):
            first = True
            for (z2, j), r in zf.items():
                if z2 == zb:
                    L.append(mfma(vr(N + 40 + zb * 4), vr(r), pq(j), "0" if first else None)); first = False
        for b in range(10):
            first = True
            for (b2, j), r in kf.items():
                if b2 == b:
                    L.append(mfma(vr(N + b * 4), vr(r), pq(j), "0" if first else None)); first = False
        return L

    def o_valu(rp):
        N = NUM[rp % 2]; O = OF[rp % 2]
        L = []
        for h in range(8):
            L.append(f"v_add_f32 v{N+40+h}, {f32(1e-6)}, v{N+40+h}")
        for h in range(8):
            L.append(f"v_rcp_f32 v{N+40+h}, v{N+40+h}")
        for gq in range(2):
            d = N + 40 + gq * 4
            for k in range(3):
                L.append(f"v_cndmask_b32 v{TT+gq*3+k}, v{d+k}, v{d+k+1}, s[{50+2*k}:{51+2*k}]")
        for b in range(10):
            gq, bp = b // 5, b % 5
            fr = N + 40 + gq * 4 if bp == 0 else (N + 40 + gq * 4 + 3 if bp == 4 else TT + gq * 3 + bp - 1)
            for jj in range(4):
                L.append(f"v_mul_f32 v{N+b*4+jj}, v{N+b*4+jj}, v{fr}")
            for jj in range(2):
                L.append(f"v_cvt_pk_bf16_f32 v{O+b*2+jj}, v{N+b*4+2*jj}, v{N+b*4+2*jj+1}")
        return L

    def main_mfma(rp):
        O = OF[rp % 2]
        L = []
        for j in range(5):
            for b in range(6):
                L.append(mfma(vr(ACC + (rp * 6 + b) * 4, 4, 'a'), vr(WOF + (j * 6 + b) * 4, 4, 'a'), vr(O + j * 4), "0" if j == 0 else None))
        return L
    XR = 240
    interleave(a, o_mfma(0), wl[14:28])
    interleave(a, o_mfma(1), o_valu(0)[:40] + wl[28:])
    interleave(a, [], o_valu(0)[40:])
    interleave(a, [], pq_loads(2))
    interleave(a, main_mfma(0), o_valu(1) + pq_loads(3))
    stamp(a)
    interleave(a, o_mfma(2) + main_mfma(1), [])
    interleave(a, o_mfma(3), o_valu(2)[:40])
    interleave(a, [], o_valu(2)[40:])
    a.many(f"""v_and_b32 v10, 15, v1
              s_movk_i32 s20, 1280
              v_mul_lo_u32 v11, v10, s20
              v_lshl_add_u32 v11, v8, 3, v11
              v_lshlrev_b32 v12, 3, v10
              s_lshl_b32 s31, s17, 2
              s_add_u32 s31, s31, s16
              s_mul_i32 s32, s31, 20480
              s_mul_i32 s33, s18, 160
              s_add_u32 s32, s32, s33
              s_lshl_b32 s33, s31, 7
              s_add_u32 s33, s33, {WS_ST1}""")
    XR = 160
    xl = [f"buffer_load_dwordx2 {vr(XR+2*b, 2)}, v11, s[12:15], s32 offen offset:{b*32}" for b in range(5)]
    xl.append(f"buffer_load_dword v{XR+10}, v12, s[8:11], s33 offen offset:4")
    interleave(a, main_mfma(2), xl + o_valu(3))
    interleave(a, main_mfma(3), [])
    stamp(a)
    OUT = 176
    ksplit_reduce(a, ACC, 16, nb=6, f="a", OUT=OUT)
    stamp(a)
    a.i(f"v_add_f32 v{XR+10}, v{XR+10}, v{OUT+20}")
    for b in range(5):
        for jj in range(2):
            h = XR + b * 2 + jj
            a.i(f"v_lshlrev_b32 v14, 16, v{h}")
            a.i(f"v_and_b32 v15, 0xffff0000, v{h}")
            a.i(f"v_sub_f32 v14, v14, v{XR+10}")
            a.i(f"v_sub_f32 v15, v15, v{XR+10}")
            a.i(f"v_add_f32 v{OUT+b*4+2*jj}, v{OUT+b*4+2*jj}, v14")
            a.i(f"v_add_f32 v{OUT+b*4+2*jj+1}, v{OUT+b*4+2*jj+1}, v15")
    PK = 200
    for b in range(5):
        for jj in range(2):
            a.i(f"v_cvt_pk_bf16_f32 v{PK+b*2+jj}, v{OUT+b*4+2*jj}, v{OUT+b*4+2*jj+1}")
    a.i(f"v_mul_f32 v14, v{OUT}, v{OUT}")
    for k in range(1, 20):
        a.i(f"v_fmac_f32 v14, v{OUT+k}, v{OUT+k}")
    a.many(f"""v_bfe_u32 v4, v1, 4, 1
              v_lshlrev_b32 v4, 9, v4
              v_lshl_add_u32 v4, v10, 4, v4
              v_lshrrev_b32 v6, 5, v1
              v_lshl_add_u32 v5, v6, 3, v4
              v_lshl_add_u32 v4, v6, 10, v4
              s_lshl_b32 s26, s17, 1
              s_lshr_b32 s27, s16, 1
              s_add_u32 s26, s26, s27
              s_mul_i32 s26, s26, 40
              s_mul_i32 s27, s18, 5
              s_add_u32 s26, s26, s27
              s_lshl_b32 s26, s26, 10
              s_and_b32 s27, s16, 1
              s_lshl_b32 s27, s27, 8
              s_add_u32 s27, s27, s26
              s_add_u32 s27, s27, {WS_H}
              s_add_u32 s26, s27, 4096
              v_mov_b32 v15, v14""")
    for p in range(2):
        r = PK + p * 4
        a.i(f"v_permlane32_swap_b32 v{r}, v{r+2}")
        a.i(f"v_permlane32_swap_b32 v{r+1}, v{r+3}")
        a.i(f"buffer_store_dwordx4 {vr(r)}, v4, s[8:11], s27 offen offset:{p*2048} {st_flags}")
    a.i(f"buffer_store_dwordx2 {vr(PK+8, 2)}, v5, s[8:11], s26 offen {st_flags}")
    a.many("""v_permlane16_swap_b32 v14, v15
              v_add_f32 v14, v14, v15
              v_mov_b32 v15, v14
              v_permlane32_swap_b32 v14, v15
              v_add_f32 v14, v14, v15""")
    a.many(f"""v_lshlrev_b32 v6, 5, v10
              v_lshlrev_b32 v7, 2, v10
              s_lshl_b32 s26, s31, 9
              s_lshl_b32 s27, s18, 2
              s_add_u32 s26, s26, s27
              s_add_u32 s26, s26, {WS_ST2}
              s_lshl_b32 s27, s31, 6
              s_add_u32 s27, s27, {WS_M2}
              s_mov_b64 s[34:35], exec
              s_mov_b64 exec, 0xffff""")
    a.i(f"buffer_store_dword v14, v6, s[8:11], s26 offen {st_flags}")
    a.i(f"buffer_store_dword v{XR+10}, v7, s[8:11], s27 offen {st_flags}")
    a.i("s_mov_b64 exec, s[34:35]")
    epilogue(a, name, kidx, 256)
    print(name, "instrs", a.ninstr, "nops", a.nops)
    return name, kernel_wrap(name, a.text(), 256, 256), 256, 256, 73728


def gen_p4(kidx, xmap="A", depth=3, rot=True, name="p4_kernel"):
    a = Asm()
    prologue(a, name, 256, [(4, KA_WS), (6, KA_OUT)])
    a.i("s_and_b32 s19, s2, 7")
    a.i("s_lshr_b32 s20, s2, 3")
    if xmap == "A":
        a.i("s_lshl_b32 s17, s19, 2"); a.i("s_lshr_b32 s21, s20, 3"); a.i("s_add_u32 s17, s17, s21")
        a.i("s_and_b32 s18, s20, 7")
        a.i("s_lshl_b32 s29, s21, 1"); a.i("s_add_u32 s29, s29, s18"); a.i("s_and_b32 s29, s29, 7")
    elif xmap == "B":
        a.i("s_lshr_b32 s17, s19, 1"); a.i("s_lshl_b32 s17, s17, 3"); a.i("s_lshr_b32 s21, s20, 2"); a.i("s_add_u32 s17, s17, s21")
        a.i("s_and_b32 s18, s19, 1"); a.i("s_lshl_b32 s18, s18, 2"); a.i("s_and_b32 s22, s20, 3"); a.i("s_add_u32 s18, s18, s22")
        a.i("s_lshl_b32 s29, s22, 1"); a.i("s_add_u32 s29, s29, s21"); a.i("s_and_b32 s29, s29, 7")
    if not rot:
        a.i("s_mov_b32 s29, 0")
    a.i("s_mul_i32 s29, s29, 7"); a.i("s_lshr_b32 s29, s29, 2")
    a.i("v_lshlrev_b32 v2, 4, v1")
    a.i("v_add_u32 v3, 0x1000, v2")
    a.i("s_mul_i32 s21, s16, 14")
    a.i("s_cmp_eq_u32 s16, 3")
    a.i("s_cselect_b32 s21, 41, s21")
    a.i("s_cmp_ge_u32 s16, 2")
    a.i("s_cselect_b32 s30, 13, 14")
    a.i("s_lshl_b32 s31, s30, 12")
    a.i("s_mul_i32 s32, s30, 5120")
    a.i("s_add_u32 s21, s21, s29")
    a.many("""v_lshrrev_b32 v8, 5, v1
              v_lshlrev_b32 v8, 11, v8
              v_bfe_u32 v9, v1, 4, 1
              v_lshl_add_u32 v8, v9, 9, v8
              v_and_b32 v9, 15, v1
              v_lshl_add_u32 v8, v9, 4, v8""")
    for rp in range(4):
        a.i(f"s_add_u32 s22, s16, {rp}")
        a.i("s_and_b32 s23, s22, 1")
        a.i("s_lshl_b32 s23, s23, 8")
        a.i("s_and_b32 s22, s22, 2")
        a.i("s_lshl_b32 s22, s22, 9")
        a.i("s_add_u32 s22, s22, s23")
        a.i(f"v_add_u32 v{4+rp}, s22, v8")
    a.i("s_mul_i32 s24, s17, 54"); a.i("s_add_u32 s24, s24, s21"); a.i("s_lshl_b32 s24, s24, 12"); a.i(f"s_add_u32 s24, s24, {WS_ACT}")
    a.i("s_mul_i32 s25, s18, 54"); a.i("s_add_u32 s25, s25, s21"); a.i("s_mul_i32 s25, s25, 5120"); a.i(f"s_add_u32 s25, s25, {WS_WD}")
    a.wait_lg0()
    srd(a, 8, 4, WS_BYTES)
    srd(a, 12, 6, OUT_BYTES)
    ACC = 16
    NK = 14

    def loads(j):
        base = (j % depth) * 36
        order = [("a", 0), ("w", 0), ("a", 1), ("a", 2), ("a", 3), ("w", 1), ("w", 2), ("w", 3), ("w", 4)]
        L = []
        for k, x in order:
            if k == "a":
                L.append(f"buffer_load_dwordx4 {vr(base+x*4, 4, 'a')}, v{4+x}, s[8:11], s24 offen")
            elif x < 4:
                L.append(f"buffer_load_dwordx4 {vr(base+16+x*4, 4, 'a')}, v2, s[8:11], s25 offen offset:{x*1024}")
            else:
                L.append(f"buffer_load_dwordx4 {vr(base+16+x*4, 4, 'a')}, v3, s[8:11], s25 offen")
        def adv():
            a.many("""s_add_u32 s24, s24, 4096
                      s_add_u32 s25, s25, 5120
                      s_add_u32 s29, s29, 1
                      s_cmp_eq_u32 s29, s30
                      s_cselect_b32 s33, s31, 0
                      s_cselect_b32 s34, s32, 0
                      s_cselect_b32 s29, 0, s29
                      s_sub_u32 s24, s24, s33
                      s_sub_u32 s25, s25, s34""")
        L.append(adv)
        return L

    for j in range(depth - 1):
        interleave(a, loads(j), [])
    stamp(a)
    HR = 100
    a.many(f"""v_bfe_u32 v10, v1, 4, 1
              v_lshlrev_b32 v10, 9, v10
              v_and_b32 v11, 15, v1
              v_lshl_add_u32 v10, v11, 4, v10
              v_lshrrev_b32 v12, 5, v1
              v_lshl_add_u32 v10, v12, 3, v10
              v_lshlrev_b32 v11, 2, v11
              s_lshl_b32 s26, s17, 1
              s_lshr_b32 s27, s16, 1
              s_add_u32 s26, s26, s27
              s_mul_i32 s26, s26, 40
              s_mul_i32 s27, s18, 5
              s_add_u32 s26, s26, s27
              s_lshl_b32 s26, s26, 10
              s_and_b32 s27, s16, 1
              s_lshl_b32 s27, s27, 8
              s_add_u32 s27, s27, s26
              s_add_u32 s27, s27, {WS_H}
              s_add_u32 s26, s27, 4096
              s_lshl_b32 s28, s17, 2
              s_add_u32 s28, s28, s16
              s_lshl_b32 s28, s28, 6
              s_add_u32 s28, s28, {WS_M2}""")
    hl = [f"buffer_load_dwordx2 {vr(HR+2*b, 2)}, v10, s[8:11], s27 offen offset:{b*1024}" for b in range(4)]
    hl += [f"buffer_load_dwordx2 {vr(HR+8, 2)}, v10, s[8:11], s26 offen",
           f"buffer_load_dword v{HR+10}, v11, s[8:11], s28 offen"]
    for j in range(NK):
        base = (j % depth) * 36
        M = []
        for b in range(5):
            for r in range(4):
                d = vr(ACC + (r * 5 + b) * 4)
                M.append(mfma(d, vr(base + 16 + b * 4, 4, 'a'), vr(base + r * 4, 4, 'a'), "0" if j == 0 else None))
        side = loads(j + depth - 1) if j + depth - 1 < NK else []
        if j + depth - 1 == NK:
            side = hl
        if j == NK - 1:
            a.i("s_cmp_ge_u32 s16, 2")
            a.i(f"s_cbranch_scc1 L_skip_{name}")
            a.cond_begin()
        interleave(a, M, side)
        if j == NK - 1:
            a.label(f"L_skip_{name}")
            a.cond_end()
        if j in (0, 6):
            stamp(a)
    stamp(a)
    ksplit_reduce(a, ACC, 112)
    stamp(a)
    for b in range(5):
        for jj in range(2):
            h = HR + b * 2 + jj
            a.i(f"v_lshlrev_b32 v8, 16, v{h}")
            a.i(f"v_and_b32 v9, 0xffff0000, v{h}")
            a.i(f"v_add_f32 v8, v8, v{HR+10}")
            a.i(f"v_add_f32 v9, v9, v{HR+10}")
            a.i(f"v_add_f32 v{ACC+b*4+2*jj}, v{ACC+b*4+2*jj}, v8")
            a.i(f"v_add_f32 v{ACC+b*4+2*jj+1}, v{ACC+b*4+2*jj+1}, v9")
    PK = 112
    for b in range(5):
        for jj in range(2):
            a.i(f"v_cvt_pk_bf16_f32 v{PK+b*2+jj}, v{ACC+b*4+2*jj}, v{ACC+b*4+2*jj+1}")
    a.i("v_and_b32 v2, 15, v1"); a.i("v_lshrrev_b32 v3, 4, v1")
    a.i("s_movk_i32 s20, 1280")
    a.i("v_mul_lo_u32 v2, v2, s20")
    a.i("v_and_b32 v4, 1, v3"); a.i("v_lshlrev_b32 v4, 5, v4"); a.i("v_lshrrev_b32 v5, 1, v3"); a.i("v_lshlrev_b32 v5, 4, v5")
    a.i("v_add3_u32 v4, v4, v5, v2")
    a.i("v_lshl_add_u32 v5, v3, 3, v2")
    a.i("s_lshl_b32 s20, s17, 2"); a.i("s_add_u32 s20, s20, s16"); a.i("s_mul_i32 s20, s20, 20480")
    a.i("s_mul_i32 s21, s18, 160"); a.i("s_add_u32 s20, s20, s21")
    for p in range(2):
        r = PK + p * 4
        a.i(f"v_permlane16_swap_b32 v{r}, v{r+2}")
        a.i(f"v_permlane16_swap_b32 v{r+1}, v{r+3}")
        a.i(f"buffer_store_dwordx4 {vr(r)}, v4, s[12:15], s20 offen offset:{p*64}")
    a.i(f"buffer_store_dwordx2 {vr(PK+8, 2)}, v5, s[12:15], s20 offen offset:128")
    epilogue(a, name, kidx, 256)
    return name, kernel_wrap(name, a.text(), 176, depth * 36), 256, 256, 61440


LOG2E = 1.4426950408889634
import struct
def f32(x):
    return "0x%08x" % struct.unpack("<I", struct.pack("<f", x))[0]


def mfma32(d, A, B, C=None):
    c = d if C is None else C
    return f"v_mfma_f32_32x32x16_bf16 {d}, {A}, {B}, {c}"


def gen_p3(kidx, name="p3_kernel", st_flags="", bar_at=0.7, rd_ahead=3, noepi=False, early=True):
    a = Asm()
    prologue(a, name, 256, [(4, KA_WS)])
    a.many("""s_and_b32 s19, s2, 7
              s_lshr_b32 s20, s2, 3
              s_lshr_b32 s17, s19, 1
              s_lshl_b32 s17, s17, 2
              s_lshr_b32 s21, s20, 3
              s_add_u32 s17, s17, s21
              s_and_b32 s18, s19, 1
              s_lshl_b32 s18, s18, 3
              s_and_b32 s21, s20, 7
              s_add_u32 s18, s18, s21
              v_lshlrev_b32 v2, 4, v1
              v_and_b32 v4, 31, v1""")
    a.i(f"s_mul_i32 s24, s18, {280*1024}"); a.i("s_mul_i32 s25, s16, 10240"); a.i("s_add_u32 s24, s24, s25"); a.i(f"s_add_u32 s24, s24, {WS_WGU}")
    a.i("s_lshl_b32 s26, s17, 2"); a.i("s_add_u32 s26, s26, s16"); a.i("s_mul_i32 s27, s26, 40960"); a.i(f"s_add_u32 s27, s27, {WS_H}")
    a.i("v_lshlrev_b32 v5, 5, v4"); a.i("s_lshl_b32 s28, s26, 10"); a.i(f"s_add_u32 s28, s28, {WS_ST2}")
    a.many(f"""s_lshl_b32 s30, s17, 1
              s_lshr_b32 s31, s16, 1
              s_add_u32 s30, s30, s31
              s_mul_i32 s30, s30, 108
              s_mul_i32 s31, s18, 7
              s_add_u32 s30, s30, s31
              s_lshl_b32 s30, s30, 1
              s_and_b32 s31, s16, 1
              s_add_u32 s30, s30, s31
              s_lshl_b32 s30, s30, 10
              s_add_u32 s30, s30, {WS_ACT}
              s_cmp_eq_u32 s18, 15
              s_cselect_b32 s31, 0x7f000000, s30""")
    a.wait_lg0()
    srd(a, 8, 4, WS_BYTES)
    ACC = 16
    ST = 80
    RA2, RSQ = 8, 9
    T = 96
    PK = 88
    WF = 160
    NB = 7

    def dma(blk):
        L = []
        toks = []
        for i in range(10):
            if i % 4 == 0:
                def setm(i=i):
                    a.i(f"s_add_u32 s34, s25, {(blk % 4) * 40960 + i * 1024}")
                    a.i("s_mov_b32 m0, s34")
                    a.i(f"s_add_u32 s35, s24, {blk * 40960 + i * 1024}")
                L.append(setm)
            tk = Tok(); toks.append(tk)
            L.append((f"buffer_load_dwordx4 v2, s[8:11], s35 offen offset:{(i % 4) * 1024} lds", tk))
        return L, toks

    def slab(k0, k1):
        L = []
        for kb in range(k0, k1):
            if kb % 4 == 0 or kb == k0:
                L.append(f"s_add_u32 s36, s27, {(kb // 4) * 4096}")
            L.append(f"buffer_load_dwordx4 {vr(kb*4, 4, 'a')}, v2, s[8:11], s36 offen offset:{(kb % 4) * 1024}")
        return L

    steps = sorted((gu_pos(c, kb), c, kb) for c in range(7) for kb in range(40))
    a.i("v_add_u32 v13, 0x10000, v2"); a.i("v_add_u32 v14, 0x20000, v2")

    def rd(n):
        p, c, kb = steps[n]
        off = ((p // 40) % 4) * 40960 + (p % 40) * 1024
        base = ["v2", "v13", "v14"][off >> 16]
        return f"ds_read_b128 {vr(WF + (n % 8) * 4, 4, 'a')}, {base} offset:{off & 0xffff}"

    def mm(n):
        p, c, kb = steps[n]
        d = vr(ACC + (c % 4) * 16, 16)
        return mfma32(d, vr(WF + (n % 8) * 4, 4, 'a'), vr(kb * 4, 4, 'a'), "0" if kb == 0 else None)

    def epi(c):
        L = []
        g0 = ACC + (c % 4) * 16
        u0 = g0 + 8
        pk = PK + (c % 2) * 4
        for hf in range(2):
            R = range(4 * hf, 4 * hf + 4)
            for j in R:
                L.append(f"v_mul_f32 v{T+j}, v{RA2}, v{g0+j}")
            for j in R:
                L.append(f"v_exp_f32 v{T+j}, v{T+j}")
                L.append(f"v_mul_f32 v{T+8+j}, v{g0+j}, v{u0+j}")
            for j in R:
                L.append(f"v_add_f32 v{T+j}, 1.0, v{T+j}")
            for j in R:
                L.append(f"v_rcp_f32 v{T+j}, v{T+j}")
                L.append(f"v_mul_f32 v{T+8+j}, v{RSQ}, v{T+8+j}")
            for j in R:
                L.append(f"v_mul_f32 v{T+8+j}, v{T+8+j}, v{T+j}")
            for jj in range(2 * hf, 2 * hf + 2):
                L.append(f"v_cvt_pk_bf16_f32 v{pk+jj}, v{T+8+2*jj}, v{T+8+2*jj+1}")
        L.append(f"s_add_u32 s37, {'s30' if c < 3 else 's31'}, {c*2048}")
        L.append(f"buffer_store_dwordx4 {vr(pk)}, v2, s[8:11], s37 offen {st_flags}")
        return L

    def stats():
        return [f"buffer_load_dwordx4 {vr(ST+q*4)}, v5, s[8:11], s28 offen offset:{q*16}" for q in range(2)]

    def stats_fin():
        L = [f"v_add_f32 v{ST}, v{ST}, v{ST+k}" for k in range(1, 8)]
        L.append(f"v_mov_b32 v{ST+1}, {f32(1e-5)}")
        L.append(f"v_fmac_f32 v{ST+1}, {f32(1/640)}, v{ST}")
        L.append(f"v_rsq_f32 v{RA2}, v{ST+1}")
        L.append(f"v_rcp_f32 v{RSQ}, v{ST+1}")
        L.append(f"v_mul_f32 v{RA2}, {f32(-LOG2E)}, v{RA2}")
        return L

    D = [dma(b) for b in range(NB)]
    interleave(a, D[0][0], [])
    interleave(a, slab(0, 8), [])
    stamp(a)
    side = {b: [] for b in range(NB)}
    side_late = {b: [] for b in range(NB)}
    side[0] = slab(8, 20) + D[1][0] + slab(20, 26)
    side_late[0] = slab(26, 32)
    side[1] = slab(32, 40) + stats() + D[2][0]
    side_late[1] = D[3][0]
    side[2] = stats_fin() + epi(0)
    side[3] = epi(1) + epi(2)[:20]
    side[4] = epi(2)[20:] + epi(3)
    side[5] = epi(4)
    side[6] = epi(5)
    for b in (4, 5, 6):
        side_late[b - 2] = D[b][0]
    if noepi:
        for b in (3, 4, 5, 6):
            side[b] = []
    a.wait_tok(D[0][1][-1])
    a.i("s_barrier")
    n = 0
    nrd = 0
    for blk in range(NB):
        main1, main2 = [], []
        cut = int(40 * bar_at)
        for i in range(40):
            tgt = main1 if i < cut else main2
            lim = min(n + rd_ahead + 1, (blk + 1) * 40 if i < cut else min((blk + 2) * 40, NB * 40))
            rds = []
            while nrd < lim:
                rds.append(rd(nrd)); nrd += 1
            def step(rds=rds, n=n):
                for x in rds:
                    a.i(x)
                a.i(mm(n))
            tgt.append(step)
            n += 1
        interleave(a, main1, side[blk])
        if blk + 1 < NB:
            a.wait_tok(D[blk + 1][1][-1])
            a.i("s_barrier")
        interleave(a, main2, side_late[blk])
        if blk in (0, 1, 3):
            stamp(a)
    stamp(a)
    interleave(a, epi(6), [])
    epilogue(a, name, kidx, 256)
    print(name, "instrs", a.ninstr, "nops", a.nops)
    return name, kernel_wrap(name, a.text(), 128, 192), 256, 256, 163840


def build(kernels, path):
    out = []
    for name, _, nwg, blk, lds in kernels:
        out.append(f"; @launch kernel={name} grid=({nwg},1,1) block=({blk},1,1) lds={lds}")
    out.append('.amdgcn_target "amdgcn-amd-amdhsa--gfx950"')
    seen = set()
    for name, txt, *_ in kernels:
        if name not in seen:
            out.append(txt); seen.add(name)
    open(path, "w").write("\n".join(out))
    print(path, sum(len(x) for x in out), "bytes")


def dummy(kidx):
    name = f"z{kidx}_kernel"
    a = Asm()
    prologue(a, name, 256, [(4, KA_WS)])
    a.wait_lg0()
    srd(a, 8, 4, WS_BYTES)
    epilogue(a, name, kidx, 256)
    return name, kernel_wrap(name, a.text(), 24, 0), 256, 256, 0
```

```python
import gen
from gen import *

X_BYTES = 2048 * 1280
WQKV_BYTES = 640 * 3840
SLOT = 36864


def spin(a, lbl, target, vtmp, stmp, srd_dbg, voff):
    a.i(f"v_readfirstlane_b32 s{stmp}, v{vtmp}")
    a.i(f"s_cmp_ge_u32 s{stmp}, {target}")
    a.i(f"s_cbranch_scc1 {lbl}_ok")
    a.raw(f"s_mov_b32 s{stmp+1}, 0")
    a.label(f"{lbl}_loop")
    a.raw("s_sleep 2")
    a.raw(f"buffer_load_dword v{vtmp}, v{voff}, s[{srd_dbg}:{srd_dbg+3}], 0 offen sc1")
    a.raw("s_waitcnt vmcnt(0)")
    a.raw(f"v_readfirstlane_b32 s{stmp}, v{vtmp}")
    a.raw(f"s_add_u32 s{stmp+1}, s{stmp+1}, 1")
    a.raw(f"s_cmp_ge_u32 s{stmp+1}, 0x40000")
    a.raw(f"s_cbranch_scc1 {lbl}_ok")
    a.raw(f"s_cmp_lt_u32 s{stmp}, {target}")
    a.raw(f"s_cbranch_scc1 {lbl}_loop")
    a.label(f"{lbl}_ok")
    a.nop(2)


def p1_gemm(a, role, name, st_flags, rot):
    isq = role == "q"
    ACC = 16
    XF, WFR = 0, 8
    a.many("""v_lshrrev_b32 v96, 3, v1
              v_and_b32 v97, 7, v1
              v_lshrrev_b32 v98, 4, v1
              s_movk_i32 s20, 1280""")
    for i in range(4):
        a.i(f"v_add_u32 v99, {8*i}, v96")
        a.i("v_mul_lo_u32 v99, v99, s20")
        a.i(f"v_add_u32 v100, {4*i}, v98")
        a.i("v_and_b32 v100, 7, v100")
        a.i("v_xor_b32 v100, v100, v97")
        a.i("v_lshl_add_u32 v99, v100, 4, v99")
        a.i(f"v_subrev_u32 v{4+i}, {1024*i}, v99")
    seg = 160 if isq else 1280
    a.i("s_mov_b32 s20, 52429"); a.i("s_movk_i32 s21, 3840")
    for i in range(5):
        a.i(f"v_add_u32 v99, {64*i}, v1")
        a.i("v_mul_lo_u32 v100, v99, s20")
        a.i("v_lshrrev_b32 v100, 20, v100")
        a.i("v_mul_u32_u24 v101, 20, v100")
        a.i("v_sub_u32 v99, v99, v101")
        a.i("v_mul_lo_u32 v100, v100, s21")
        a.i("v_lshl_add_u32 v100, v99, 4, v100")
        a.i("v_cmp_le_u32 vcc, 10, v99")
        a.i(f"v_mov_b32 v101, {seg-160}")
        a.i("v_cndmask_b32 v101, 0, v101, vcc")
        a.i("v_add_u32 v100, v100, v101")
        a.i(f"v_subrev_u32 v{8+i}, {1024*i if i < 4 else 0}, v100")
    a.many("""v_and_b32 v96, 31, v1
              v_lshrrev_b32 v97, 5, v1
              v_bfe_u32 v98, v1, 1, 3
              v_lshlrev_b32 v99, 7, v96
              s_lshl_b32 s20, s16, 12
              v_add_u32 v99, s20, v99""")
    for j in range(4):
        a.i(f"v_add_u32 v100, {2*j}, v97")
        a.i("v_xor_b32 v100, v100, v98")
        a.i(f"v_lshl_add_u32 v{104+j}, v100, 4, v99")
        a.i(f"v_add_u32 v{108+j}, {2*SLOT}, v{104+j}")
    a.many(f"""v_bfe_u32 v98, v1, 2, 2
              v_lshl_add_u32 v98, v97, 3, v98
              v_mul_u32_u24 v98, 320, v98
              v_bfe_u32 v99, v1, 4, 1
              v_lshl_add_u32 v98, v99, 5, v98
              v_and_b32 v99, 3, v1
              v_lshl_add_u32 v112, v99, 3, v98
              v_add_u32 v113, {2*SLOT}, v112
              v_mov_b32 v114, 0""")
    a.many("""s_lshl_b32 s24, s17, 2
              s_add_u32 s24, s24, s16
              s_mul_i32 s24, s24, 40960
              s_mul_i32 s25, s16, 61440""")
    if isq:
        a.i("s_mul_i32 s20, s18, 320")
    else:
        a.i("s_mul_i32 s20, s18, 160"); a.i("s_add_u32 s20, s20, 640")
    a.many("""s_add_u32 s25, s25, s20
              s_mul_i32 s30, s16, 5120
              s_lshl_b32 s31, s16, 12
              s_add_u32 s31, s31, 20480""")

    def dma(st):
        sl = (st % 4) * SLOT
        toks = []
        L = []
        def pre():
            a.many(f"""s_lshl_b32 s26, s29, 7
                      s_add_u32 s26, s26, s24
                      s_mul_i32 s27, s29, {64*3840}
                      s_add_u32 s27, s27, s25
                      s_add_u32 s29, s29, 1
                      s_cmp_eq_u32 s29, 10
                      s_cselect_b32 s29, 0, s29
                      s_add_u32 s34, s30, {sl}
                      s_mov_b32 m0, s34""")
        L.append(pre)
        for i in range(5):
            if i == 4:
                def m2():
                    a.i(f"s_add_u32 s34, s30, {sl + 4096}"); a.i("s_mov_b32 m0, s34")
                L.append(m2)
            tk = Tok(); toks.append(tk)
            L.append((f"buffer_load_dwordx4 v{8+i}, s[56:59], s27 offen offset:{1024*i if i < 4 else 0} lds", tk))
        def m3():
            a.i(f"s_add_u32 s34, s31, {sl}"); a.i("s_mov_b32 m0, s34")
        L.append(m3)
        for i in range(4):
            tk = Tok(); toks.append(tk)
            L.append((f"buffer_load_dwordx4 v{4+i}, s[12:15], s26 offen offset:{1024*i} lds", tk))
        return L, toks

    def reads(n):
        st, j = n // 4, n % 4
        sl = st % 4
        hi = sl >= 2
        off = (sl % 2) * SLOT
        L = [f"ds_read_b128 {vr(XF+(n % 2)*4, 4, 'a')}, v{(108 if hi else 104)+j} offset:{off+20480}"]
        for blk in range(5):
            for u in range(2):
                L.append(f"ds_read_b64_tr_b16 {vr(WFR+(n % 2)*20+blk*4+u*2, 2, 'a')}, v{113 if hi else 112} offset:{off+(16*j+4*u)*320+blk*64}")
        return L

    def mms(n):
        L = []
        for blk in range(5):
            d = vr(ACC + blk * 16, 16)
            w = vr(WFR + (n % 2) * 20 + blk * 4, 4, 'a'); x = vr(XF + (n % 2) * 4, 4, 'a')
            L.append(mfma32(d, w, x, "0" if n == 0 else None) if isq else mfma32(d, x, w, "0" if n == 0 else None))
        return L

    D = [dma(st) for st in range(10)]
    for st in range(3):
        interleave(a, D[st][0], [])
    stamp(a)
    a.wait_tok(D[0][1][-1])
    a.i("s_barrier")
    interleave(a, reads(0), [])
    SV = 120
    a.many(f"""s_lshl_b32 s36, s17, 2
              s_add_u32 s36, s36, s16
              s_lshl_b32 s36, s36, 8
              s_add_u32 s36, s36, {WS_ST1}""")
    if isq:
        a.many(f"""v_lshlrev_b32 v115, 3, v96
                  v_lshlrev_b32 v116, 4, v97
                  s_mul_i32 s37, s18, 640
                  s_add_u32 s37, s37, {WS_CS1}""")
        ein = [f"buffer_load_dwordx2 {vr(SV, 2)}, v115, s[8:11], s36 offen sc1"]
        for k in range(20):
            ein.append(f"buffer_load_dwordx4 {vr(124+4*k)}, v116, s[8:11], s37 offen offset:{32*k} sc1")
    else:
        a.many(f"""v_lshlrev_b32 v115, 5, v97
                  v_lshlrev_b32 v116, 2, v96
                  v_cmp_le_u32 vcc, 16, v96
                  v_mov_b32 v117, {2560-320}
                  v_cndmask_b32 v117, 0, v117, vcc
                  v_add_u32 v117, v117, v116
                  s_mul_i32 s37, s18, 320
                  s_add_u32 s37, s37, {WS_CS1 + 2560 - 4*320}""")
        ein = []
        for q in range(4):
            for h2 in range(2):
                ein.append(f"buffer_load_dwordx4 {vr(SV+q*8+h2*4)}, v115, s[8:11], s36 offen offset:{64*q+16*h2} sc1")
        offs = [("v116", 0), ("v116", 128), ("v117", 256), ("v116", 2560 + 64), ("v116", 2560 + 192)]
        for blk in range(5):
            ein.append(f"buffer_load_dword v{152+blk}, {offs[blk][0]}, s[8:11], s37 offen offset:{offs[blk][1]} sc1")
    for n in range(40):
        st, j = n // 4, n % 4
        side = []
        if j == 3 and st + 1 < 10:
            a.wait_tok(D[st + 1][1][-1])
            a.i("s_barrier")
        if n + 1 < 40:
            side += reads(n + 1)
        extra = []
        if j == 3 and st + 3 < 10:
            extra = D[st + 3][0][:6]
        if j == 0 and st >= 1 and st + 2 < 10:
            extra = D[st + 2][0][6:]
        if n == 29:
            extra = extra + ["buffer_load_dword v118, v114, s[60:63], 0 offen sc1"]
        if n == 33:
            spin(a, f"L_spin_{role}_{name}", 64, 118, 38, 60, 114)
        if n in (33, 34, 35, 36):
            k = (len(ein) + 3) // 4
            extra = extra + ein[(n - 33) * k:(n - 32) * k]
        interleave(a, mms(n), side + extra)
        if n in (3, 19):
            stamp(a)
    stamp(a)
    T = 208
    if isq:
        a.i(f"v_mul_f32 v{SV+1}, v{SV+1}, v{SV}")
        a.i(f"v_sub_f32 v{SV+1}, 0, v{SV+1}")
        a.many(f"""v_bfe_u32 v4, v1, 4, 1
                  v_lshlrev_b32 v4, 10, v4
                  v_lshl_add_u32 v4, v97, 8, v4
                  v_and_b32 v5, 15, v1
                  v_lshl_add_u32 v4, v5, 4, v4
                  s_lshl_b32 s26, s17, 1
                  s_lshr_b32 s27, s16, 1
                  s_add_u32 s26, s26, s27
                  s_mul_i32 s26, s26, 20
                  s_mul_i32 s27, s18, 5
                  s_add_u32 s26, s26, s27
                  s_lshl_b32 s26, s26, 2
                  s_and_b32 s27, s16, 1
                  s_lshl_b32 s27, s27, 1
                  s_add_u32 s26, s26, s27
                  s_lshl_b32 s26, s26, 10
                  s_add_u32 s26, s26, {WS_PQ}""")
        for blk in range(5):
            for hf in range(2):
                R = range(8 * hf, 8 * hf + 8)
                ac = lambda j: ACC + blk * 16 + j
                cs = lambda j: 124 + blk * 16 + j
                for j in R: a.i(f"v_mul_f32 v{cs(j)}, v{SV+1}, v{cs(j)}")
                for j in R: a.i(f"v_fma_f32 v{ac(j)}, v{ac(j)}, v{SV}, v{cs(j)}")
                for j in R: a.i(f"v_mul_f32 v{cs(j)}, {f32(LOG2E)}, v{ac(j)}")
                for j in R:
                    a.i(f"v_exp_f32 v{cs(j)}, v{cs(j)}")
                    a.i(f"v_add_f32 v{ac(j)}, 1.0, v{ac(j)}")
                for j in R: a.i(f"v_med3_f32 v{ac(j)}, v{cs(j)}, v{ac(j)}, 1.0")
                for j in R: a.i(f"v_add_f32 v{ac(j)}, {f32(1e-6)}, v{ac(j)}")
            pk = T + (blk % 2) * 8
            for q in range(4):
                dst = pk + (q & 1) * 4 + (q >> 1) * 2
                for jj in range(2):
                    a.i(f"v_cvt_pk_bf16_f32 v{dst+jj}, v{ACC+blk*16+4*q+2*jj}, v{ACC+blk*16+4*q+2*jj+1}")
            a.i(f"s_add_u32 s27, s26, {blk*4096}")
            a.i(f"buffer_store_dwordx4 {vr(pk)}, v4, s[8:11], s27 offen {st_flags}")
            a.i(f"buffer_store_dwordx4 {vr(pk+4)}, v4, s[8:11], s27 offen offset:512 {st_flags}")
        return
    for j in range(16):
        a.i(f"v_mul_f32 v{SV+2*j+1}, v{SV+2*j+1}, v{SV+2*j}")
    smask(a, 40, 0x0000FFFF0000FFFF)
    P = 160
    for blk in range(5):
        for hf in range(2):
            R = range(8 * hf, 8 * hf + 8)
            ac = lambda j: ACC + blk * 16 + j
            t = lambda j: T + (j % 8)
            t2 = lambda j: T + 8 + (j % 8)
            for j in R: a.i(f"v_mul_f32 v{t(j)}, v{SV+2*j+1}, v{152+blk}")
            for j in R: a.i(f"v_fma_f32 v{ac(j)}, v{ac(j)}, v{SV+2*j}, -v{t(j)}")
            if blk <= 2:
                for j in R: a.i(f"v_mul_f32 v{t(j)}, {f32(LOG2E)}, v{ac(j)}")
                for j in R:
                    a.i(f"v_exp_f32 v{t(j)}, v{t(j)}")
                    a.i(f"v_add_f32 v{t2(j)}, 1.0, v{ac(j)}")
                for j in R: a.i(f"v_med3_f32 v{t(j)}, v{t(j)}, v{t2(j)}, 1.0")
                if blk < 2:
                    for j in R: a.i(f"v_add_f32 v{ac(j)}, {f32(1e-6)}, v{t(j)}")
                else:
                    for j in R: a.i(f"v_add_f32 v{t(j)}, {f32(1e-6)}, v{t(j)}")
                    for j in R: a.i(f"v_cndmask_b32 v{ac(j)}, v{ac(j)}, v{t(j)}, s[40:41]")
            for jj in range(4):
                a.i(f"v_cvt_pk_bf16_f32 v{P+blk*8+hf*4+jj}, v{ac(8*hf+2*jj)}, v{ac(8*hf+2*jj+1)}")
    ONES = 200
    for k in range(4):
        a.i(f"v_mov_b32 v{ONES+k}, 0x3f803f80")
    RW = 26624
    a.many(f"""s_mul_i32 s20, s16, {RW}
              s_add_u32 s20, s20, 256
              v_mul_u32_u24 v4, 1280, v97
              v_lshl_add_u32 v4, v96, 4, v4
              v_add_u32 v4, s20, v4
              v_lshlrev_b32 v5, 4, v97
              v_add_u32 v5, s20, v5""")
    a.wait_lg0()
    a.i("s_barrier")
    prods = [(0, 2, -16), (0, 3, 16), (1, 3, 16), (1, 4, 48), (2, 4, 48)]
    DD = [16, 32, 48, 64, 80, 120, 136, 224]
    for k, (kb, vb, e0) in enumerate(prods):
        for u in range(2):
            a.i(mfma32(vr(DD[k], 16), vr(P + kb * 8 + u * 4), vr(P + vb * 8 + u * 4), "0" if u == 0 else None))
    for kb in range(3):
        for u in range(2):
            a.i(mfma32(vr(DD[5 + kb], 16), vr(P + kb * 8 + u * 4), vr(ONES), "0" if u == 0 else None))
    for k, (kb, vb, e0) in enumerate(prods):
        for qd in range(2 if kb == 2 else 4):
            off = ((8 * kb + 2 * qd) * 80 + e0) * 16
            if off < 0:
                a.i(f"v_subrev_u32 v6, {-off}, v4")
                a.i(f"ds_write_b128 v6, {vr(DD[k]+4*qd)}")
            else:
                a.i(f"ds_write_b128 v4, {vr(DD[k]+4*qd)} offset:{off}")
    a.i("s_mov_b64 s[34:35], exec")
    a.i("s_mov_b32 exec_lo, 1"); a.i("s_mov_b32 exec_hi, 1")
    for kb in range(3):
        for qd in range(2 if kb == 2 else 4):
            a.i(f"ds_write_b128 v5, {vr(DD[5+kb]+4*qd)} offset:{25600 + (8*kb+2*qd)*16}")
    a.i("s_mov_b64 exec, s[34:35]")
    a.many(f"""s_mul_i32 s20, s16, 5
              s_mul_i32 s21, s16, 20
              s_mov_b32 s22, 52429
              s_sub_u32 s23, s18, 4
              s_mul_i32 s26, s23, {13*1024}
              s_add_u32 s26, s26, {WS_KV}
              s_mul_i32 s27, s23, 320
              s_add_u32 s27, s27, {WS_Z}
              s_sub_u32 s27, s27, s26""")
    LA, GA = 160, 168
    for n in range(7):
        a.many(f"""v_add_u32 v6, {64*n}, v1
                  v_mul_lo_u32 v7, v6, s22
                  v_lshrrev_b32 v7, 22, v7
                  v_mul_u32_u24 v8, 80, v7
                  v_sub_u32 v6, v6, v8
                  v_add_u32 v7, s20, v7
                  v_mul_u32_u24 v8, 80, v7
                  v_add_u32 v8, s21, v8
                  v_lshlrev_b32 v8, 4, v8
                  v_lshl_add_u32 v{LA+n}, v6, 2, v8
                  v_lshrrev_b32 v8, 2, v6
                  v_add_u32 v8, s21, v8
                  v_lshrrev_b32 v9, 2, v7
                  v_lshrrev_b32 v10, 4, v8
                  v_lshl_add_u32 v9, v9, 1, v10
                  v_and_b32 v7, 3, v7
                  v_lshl_add_u32 v9, v9, 2, v7
                  v_and_b32 v8, 15, v8
                  v_lshl_add_u32 v9, v9, 4, v8
                  v_and_b32 v6, 3, v6
                  v_lshl_add_u32 v9, v9, 2, v6
                  v_lshlrev_b32 v{GA+n}, 2, v9""")
    a.many(f"""v_subrev_u32 v6, 16, v1
              v_add_u32 v6, s21, v6
              v_lshlrev_b32 v6, 2, v6
              v_add_u32 v7, 25600, v6
              v_add_u32 v6, s27, v6
              v_cmp_le_u32 vcc, 16, v1
              v_cndmask_b32 v{LA+6}, v{LA+6}, v7, vcc
              v_cndmask_b32 v{GA+6}, v{GA+6}, v6, vcc""")
    a.wait_lg0()
    a.i("s_barrier")
    for n in range(7):
        a.i(f"v_add_u32 v{176+n}, {2*RW}, v{LA+n}")
    for n in range(7):
        for w in range(4):
            a.i(f"ds_read_b32 v{16+4*n+w}, v{(LA if w < 2 else 176)+n} offset:{256+(w % 2)*RW}")
    for n in range(7):
        a.i(f"v_add_f32 v{16+4*n}, v{16+4*n}, v{17+4*n}")
        a.i(f"v_add_f32 v{18+4*n}, v{18+4*n}, v{19+4*n}")
        a.i(f"v_add_f32 v{16+4*n}, v{16+4*n}, v{18+4*n}")
        if n == 6:
            a.i("s_mov_b32 exec_lo, -1"); a.i("s_mov_b32 exec_hi, 15")
        a.i(f"buffer_atomic_add_f32 v{16+4*n}, v{GA+n}, s[8:11], s26 offen")
    a.i("s_mov_b64 exec, s[34:35]")


def row_reduce16(a, regs):
    for sh in (8, 4, 2, 1):
        for r in regs:
            a.i(f"v_add_f32_dpp v{r}, v{r}, v{r} row_ror:{sh} row_mask:0xf bank_mask:0xf")


def p1_aux(a, name, st_flags):
    OOB = 0x7f000000
    a.many(f"""v_lshlrev_b32 v2, 4, v1
              v_mov_b32 v4, 0
              v_mov_b32 v5, 0
              v_mov_b32 v6, 0
              v_mov_b32 v7, 0
              s_lshl_b32 s20, s17, 11
              s_lshl_b32 s21, s16, 9
              s_add_u32 s20, s20, s21
              s_add_u32 s20, s20, {WS_KV}
              s_mov_b64 s[34:35], exec
              s_mov_b32 exec_hi, 0""")
    a.i("buffer_store_dwordx4 v[4:7], v2, s[8:11], s20 offen sc1")
    a.i("s_mov_b64 exec, s[34:35]")
    a.i("s_cmp_ge_u32 s17, 30")
    a.i(f"s_cbranch_scc1 L_aux_stats_{name}")
    snap = (a.vm_n, a.vm_done)
    a.many("""v_lshrrev_b32 v8, 3, v1
              v_and_b32 v9, 7, v1
              s_movk_i32 s20, 3840
              v_mul_lo_u32 v8, v8, s20
              v_lshl_add_u32 v8, v9, 4, v8
              s_mul_i32 s20, s16, 614400
              s_lshl_b32 s21, s17, 7
              s_add_u32 s20, s20, s21
              s_mov_b32 s22, 0x3f80
              s_mov_b32 s23, 0x3f800000""")
    for i in range(20):
        a.i(f"buffer_load_dwordx4 {vr(32+4*i)}, v8, s[56:59], s20 offen")
        a.i("s_add_u32 s20, s20, 30720")
    for k in range(8):
        a.i(f"v_mov_b32 v{16+k}, 0")
    for i in range(20):
        for d in range(4):
            a.i(f"v_dot2_f32_bf16 v{16+2*d}, v{32+4*i+d}, s22, v{16+2*d}")
            a.i(f"v_dot2_f32_bf16 v{17+2*d}, v{32+4*i+d}, s23, v{17+2*d}")
    a.nop(4)
    for k in range(8):
        a.i(f"v_add_f32_dpp v{16+k}, v{16+k}, v{16+k} row_ror:8 row_mask:0xf bank_mask:0xf")
    for sw in ("v_permlane16_swap_b32", "v_permlane32_swap_b32"):
        for k in range(8): a.i(f"v_mov_b32 v{24+k}, v{16+k}")
        for k in range(8): a.i(f"{sw} v{16+k}, v{24+k}")
        for k in range(8): a.i(f"v_add_f32 v{16+k}, v{16+k}, v{24+k}")
    a.many("""v_lshlrev_b32 v10, 5, v9
              s_lshl_b32 s20, s16, 8
              v_add_u32 v10, s20, v10
              ds_write_b128 v10, v[16:19]
              ds_write_b128 v10, v[20:23] offset:16""")
    a.wait_lg0()
    a.i("s_barrier")
    a.i("v_lshlrev_b32 v10, 2, v1")
    for w in range(4):
        a.i(f"ds_read_b32 v{16+w}, v10 offset:{256*w}")
    a.many(f"""v_add_f32 v16, v16, v17
              v_add_f32 v18, v18, v19
              v_add_f32 v16, v16, v18
              s_lshl_b32 s20, s17, 8
              s_add_u32 s20, s20, {WS_CS1}
              s_cmp_eq_u32 s16, 0
              s_cselect_b32 s20, s20, {OOB}""")
    a.i("buffer_store_dword v16, v10, s[8:11], s20 offen sc1")
    a.wait_all()
    a.i(f"s_branch L_aux_sig_{name}")
    a.label(f"L_aux_stats_{name}")
    a.fence()
    a.many(f"""v_lshrrev_b32 v8, 4, v1
              v_and_b32 v9, 15, v1
              s_movk_i32 s20, 1280
              v_mul_lo_u32 v10, v8, s20
              v_lshl_add_u32 v10, v9, 4, v10
              s_sub_u32 s21, s17, 30
              s_lshl_b32 s21, s21, 2
              s_add_u32 s21, s21, s16
              s_mul_i32 s20, s21, 20480
              s_mov_b32 s22, 0x3f803f80""")
    for i in range(4):
        for m in range(5):
            a.i(f"buffer_load_dwordx4 {vr(32+20*i+4*m)}, v10, s[12:15], s20 offen offset:{256*m}")
        a.i("s_add_u32 s20, s20, 5120")
    for k in range(8):
        a.i(f"v_mov_b32 v{16+k}, 0")
    for i in range(4):
        for d in range(20):
            r = 32 + 20 * i + d
            a.i(f"v_dot2_f32_bf16 v{16+2*i}, v{r}, s22, v{16+2*i}")
            a.i(f"v_dot2_f32_bf16 v{17+2*i}, v{r}, v{r}, v{17+2*i}")
    a.nop(4)
    row_reduce16(a, range(16, 24))
    for i in range(4):
        s_, q_ = 16 + 2 * i, 17 + 2 * i
        a.many(f"""v_mul_f32 v{q_}, {f32(1/640)}, v{q_}
                  v_mul_f32 v24, {f32(1/640)}, v{s_}
                  v_fma_f32 v{s_}, -v24, v24, v{q_}
                  v_max_f32 v{s_}, 0, v{s_}
                  v_add_f32 v{s_}, {f32(1e-5)}, v{s_}
                  v_rsq_f32 v{s_}, v{s_}
                  v_mov_b32 v{q_}, v24""")
    a.many(f"""v_lshlrev_b32 v10, 3, v8
              s_lshl_b32 s20, s21, 7
              s_add_u32 s20, s20, {WS_ST1}
              s_cmp_lt_u32 s17, 62
              s_cselect_b32 s20, s20, {OOB}
              s_mov_b32 exec_lo, 0x00010001
              s_mov_b32 exec_hi, 0x00010001""")
    for i in range(4):
        a.i(f"buffer_store_dwordx2 {vr(16+2*i, 2)}, v10, s[8:11], s20 offen offset:{32*i} sc1")
    a.i("s_mov_b64 exec, s[34:35]")
    a.i("s_barrier")
    a.wait_all()
    a.label(f"L_aux_sig_{name}")
    a.fence()
    stamp(a)
    a.i("s_barrier")
    a.many("""v_mov_b32 v4, 1
              v_mov_b32 v5, 0
              v_cmp_eq_u32 vcc, 0, v0
              s_and_saveexec_b64 s[34:35], vcc""")
    a.i(f"s_cbranch_execz L_aux_ns_{name}")
    a.raw("buffer_atomic_add v4, v5, s[60:63], 0 offen sc1")
    a.raw("s_waitcnt vmcnt(0)")
    a.label(f"L_aux_ns_{name}")
    a.i("s_mov_b64 exec, -1")
    a.fence()
    a.many("""s_lshl_b32 s18, s17, 2
              s_add_u32 s18, s18, s16
              s_mul_i32 s19, s16, 40960""")
    a.many("""v_lshrrev_b32 v8, 3, v1
              v_and_b32 v9, 7, v1
              v_bfe_u32 v10, v1, 4, 2
              v_lshlrev_b32 v10, 1, v10
              v_xor_b32 v9, v9, v10
              v_xor_b32 v10, 4, v9
              v_mul_u32_u24 v11, 1280, v8
              v_lshl_add_u32 v11, v9, 4, v11
              v_mul_u32_u24 v12, 3456, v8
              v_lshl_add_u32 v13, v10, 4, v12
              v_lshl_add_u32 v12, v9, 4, v12""")
    a.many("""v_lshrrev_b32 v14, 4, v1
              v_bfe_u32 v15, v1, 2, 2
              v_and_b32 v16, 3, v1
              v_lshlrev_b32 v16, 3, v16
              v_add_u32 v16, s19, v16
              v_lshl_add_u32 v17, v14, 2, v15
              v_lshrrev_b32 v18, 1, v14
              v_and_b32 v19, 1, v14
              v_lshl_add_u32 v20, v19, 2, v15
              v_lshl_add_u32 v20, v18, 4, v20
              v_lshl_add_u32 v21, v18, 2, v15""")
    for k, (rowreg, base) in enumerate([(17, 24), (20, 28), (21, 32)]):
        a.i(f"v_bfe_u32 v22, v{rowreg}, 1, 2")
        if k == 2:
            a.i("v_lshlrev_b32 v23, 1, v19")
            a.i("v_xor_b32 v22, v22, v23")
        a.i(f"v_lshl_add_u32 v23, v{rowreg}, 7, v16")
        if k == 2:
            a.i("v_lshl_add_u32 v23, v19, 12, v23")
        for nb in range(4):
            a.i(f"v_xor_b32 v36, {nb}, v22")
            a.i(f"v_lshl_add_u32 v{base+nb}, v36, 5, v23")
    tasks = [("gu", 0, 0), ("gu", 256, 8192), ("wd", 0, 16384), ("wd", 256, 20480), ("wo", 0, 24576), ("gu", 512, 28672), ("wd", 512, 36864)]
    SB = 48
    toks = {}

    def decode(kind, add):
        n, ncg, shift = {"gu": (540, 27, 0), "wd": (540, 10, 228), "wo": (200, 10, 28)}[kind]
        a.i(f"s_add_u32 s24, s18, {256 - shift}")
        a.i("s_and_b32 s24, s24, 255")
        a.i(f"s_add_u32 s24, s24, {add}")
        a.i(f"s_mul_hi_u32 s26, s24, {(1 << 32)//ncg + 1}")
        a.i(f"s_mul_i32 s25, s26, {ncg}")
        a.i("s_sub_u32 s25, s24, s25")
        a.i(f"s_cmp_lt_u32 s24, {n}")
        a.i(f"s_cselect_b32 s27, 0, {OOB}")
    for ti, (kind, add, lo) in enumerate(tasks):
        decode(kind, add)
        stride = 3456 if kind == "gu" else 1280
        a.i(f"s_mul_i32 s28, s26, {32*stride}")
        a.i("s_lshl_b32 s29, s25, 7")
        a.i("s_add_u32 s28, s28, s29")
        a.i("s_add_u32 s28, s28, s27")
        for img in range(2 if kind == "gu" else 1):
            sr = {"gu": (68, 72)[img], "wd": 44, "wo": 64}[kind]
            vo = {"gu": (12, 13)[img], "wd": 11, "wo": 11}[kind]
            for i in range(4):
                a.i(f"s_add_u32 s30, s19, {lo + img*4096 + i*1024}")
                a.i("s_mov_b32 m0, s30")
                a.i(f"s_add_u32 s31, s28, {8*i*stride}")
                tk = Tok(); toks[ti] = tk
                a.i(f"buffer_load_dwordx4 v{vo}, s[{sr}:{sr+3}], s31 offen lds", tk)
    a.many(f"""s_add_u32 s24, s18, {256-28}
              s_and_b32 s24, s24, 255
              s_sub_u32 s24, s24, 200
              s_mul_i32 s33, s24, 12
              s_cmp_lt_u32 s24, 56
              s_cselect_b32 s33, s33, 0x10000
              v_and_b32 v37, 15, v1
              v_mul_u32_u24 v38, 1280, v14
              v_lshl_add_u32 v38, v37, 4, v38
              s_mul_i32 s32, s33, 1280""")
    for i in range(3):
        for m in range(5):
            a.i(f"buffer_load_dwordx4 {vr(128+20*i+4*m)}, v38, s[64:67], s32 offen offset:{256*m}")
        a.i("s_add_u32 s32, s32, 5120")
    R0 = 64
    for ti, (kind, add, lo) in enumerate(tasks):
        decode(kind, add)
        a.wait_tok(toks[ti])
        if kind == "gu":
            for kbl in range(2):
                for nb in range(4):
                    r = R0 + (kbl * 4 + nb) * 4
                    for u in range(2):
                        a.i(f"ds_read_b64_tr_b16 {vr(r+2*u, 2)}, v{32+nb} offset:{lo + (16*kbl+8*u)*128}")
            for nb in range(4):
                a.many(f"""s_lshl_b32 s28, s25, 2
                          s_add_u32 s28, s28, {nb}
                          s_mul_hi_u32 s29, s28, {(1 << 32)//7 + 1}
                          s_mul_i32 s30, s29, 7
                          s_sub_u32 s28, s28, s30
                          s_mul_i32 s29, s29, 280
                          s_lshl_b32 s30, s26, 1
                          s_mul_i32 s31, s30, {G1}
                          s_add_u32 s31, s31, s28
                          s_mul_i32 s36, s28, 40
                          s_add_u32 s36, s36, s30
                          s_cmp_lt_u32 s28, {G1}
                          s_cselect_b32 s31, s31, s36
                          s_cselect_b32 s36, {G1}, 1
                          s_lshl_b32 s36, s36, 10
                          s_add_u32 s29, s29, s31
                          s_lshl_b32 s29, s29, 10
                          s_add_u32 s29, s29, {WS_WGU}
                          s_add_u32 s29, s29, s27
                          s_add_u32 s36, s36, s29""")
                a.i(f"buffer_store_dwordx4 {vr(R0+nb*4)}, v2, s[8:11], s29 offen {st_flags}")
                a.i(f"buffer_store_dwordx4 {vr(R0+(4+nb)*4)}, v2, s[8:11], s36 offen {st_flags}")
        else:
            nks, base, ar, us = (54, WS_WD, 28, 8) if kind == "wd" else (20, WS_WO, 24, 16)
            for nb in range(4):
                r = R0 + 32 + nb * 4
                for u in range(2):
                    a.i(f"ds_read_b64_tr_b16 {vr(r+2*u, 2)}, v{ar+nb} offset:{lo + us*u*128}")
            for nb in range(4):
                a.many(f"""s_lshl_b32 s28, s25, 2
                          s_add_u32 s28, s28, {nb}
                          s_mul_hi_u32 s29, s28, {(1 << 32)//5 + 1}
                          s_mul_i32 s30, s29, 5
                          s_sub_u32 s28, s28, s30
                          s_mul_i32 s29, s29, {nks}
                          s_add_u32 s29, s29, s26
                          s_mul_i32 s29, s29, 5
                          s_add_u32 s29, s29, s28
                          s_lshl_b32 s29, s29, 10
                          s_add_u32 s29, s29, {base}
                          s_add_u32 s29, s29, s27""")
                a.i(f"buffer_store_dwordx4 {vr(R0+32+nb*4)}, v2, s[8:11], s29 offen {st_flags}")
    a.i("s_mov_b32 s22, 0x3f803f80")
    for i in range(3):
        a.i(f"v_mov_b32 v{40+i}, 0")
    for i in range(3):
        for d in range(20):
            a.i(f"v_dot2_f32_bf16 v{40+i}, v{128+20*i+d}, s22, v{40+i}")
    a.nop(4)
    row_reduce16(a, range(40, 43))
    for i in range(3):
        a.many(f"""v_mul_f32 v{40+i}, {f32(1/640)}, v{40+i}
                  v_cvt_pk_bf16_f32 v{40+i}, v{40+i}, v{40+i}
                  v_add_u32 v44, s33, v14
                  v_add_u32 v44, {4*i}, v44
                  v_lshrrev_b32 v45, 5, v44
                  v_lshlrev_b32 v45, 10, v45
                  v_bfe_u32 v46, v44, 2, 2
                  v_lshl_add_u32 v45, v46, 8, v45
                  v_lshl_add_u32 v45, v37, 4, v45
                  v_bfe_u32 v46, v44, 4, 1
                  v_lshl_add_u32 v45, v46, 3, v45
                  v_and_b32 v46, 3, v44
                  v_lshl_add_u32 v45, v46, 1, v45
                  v_cmp_gt_u32 vcc, 640, v44
                  v_mov_b32 v46, {OOB}
                  v_cndmask_b32 v45, v46, v45, vcc
                  s_mov_b32 s20, {WS_RM}""")
        a.i(f"buffer_store_short v{40+i}, v45, s[8:11], s20 offen {st_flags}")


def gen_p1(kidx, name="p1_kernel", st_flags="", rot=True):
    a = Asm()
    prologue(a, name, 256, [(4, KA_WS), (6, KA_X), (20, KA_WQKV), (22, KA_DBG), (24, KA_WO), (26, KA_WG), (28, KA_WU), (30, KA_WD)])
    a.wait_lg0()
    srd(a, 8, 4, WS_BYTES)
    srd(a, 12, 6, X_BYTES)
    srd(a, 56, 20, WQKV_BYTES)
    srd(a, 60, 22, 256)
    srd(a, 64, 24, 640 * 1280)
    srd(a, 68, 26, 640 * 3456)
    srd(a, 72, 28, 640 * 3456)
    srd(a, 44, 30, 1728 * 1280)
    a.many("""s_and_b32 s19, s2, 7
              s_lshr_b32 s20, s2, 3
              s_cmp_lt_u32 s20, 8""")
    a.i(f"s_cbranch_scc0 L_gemm_{name}")
    a.many("""s_lshl_b32 s17, s19, 3
              s_add_u32 s17, s17, s20""")
    ns = getattr(a, "nstamp", 0)
    p1_aux(a, name, st_flags)
    a.i(f"s_branch L_fin_{name}")
    a.label(f"L_gemm_{name}")
    a.reset_state(); a.fence()
    a.nstamp = ns
    a.many("""s_sub_u32 s20, s20, 8
              s_mul_i32 s21, s20, 43
              s_lshr_b32 s21, s21, 8
              s_mul_i32 s22, s21, 6
              s_sub_u32 s22, s20, s22
              s_lshr_b32 s17, s19, 1
              s_lshl_b32 s17, s17, 2
              s_add_u32 s17, s17, s21
              s_and_b32 s23, s19, 1
              s_mul_i32 s29, s22, 3
              s_mul_i32 s24, s21, 7
              s_add_u32 s29, s29, s24
              s_mul_i32 s24, s29, 26
              s_lshr_b32 s24, s24, 8
              s_mul_i32 s24, s24, 10
              s_sub_u32 s29, s29, s24""")
    if not rot:
        a.i("s_mov_b32 s29, 0")
    a.i("s_cmp_lt_u32 s22, 2")
    a.i(f"s_cbranch_scc0 L_kv_{name}")
    a.many("""s_lshl_b32 s18, s23, 1
              s_add_u32 s18, s18, s22""")
    p1_gemm(a, "q", name, st_flags, rot)
    a.i(f"s_branch L_fin_{name}")
    a.label(f"L_kv_{name}")
    a.reset_state(); a.fence()
    a.nstamp = ns
    a.many("""s_lshl_b32 s18, s23, 2
              s_add_u32 s18, s18, s22
              s_add_u32 s18, s18, 2""")
    p1_gemm(a, "kv", name, st_flags, rot)
    a.label(f"L_fin_{name}")
    a.raw("s_waitcnt vmcnt(0) lgkmcnt(0)")
    a.reset_state(); a.fence()
    a.nstamp = 6
    epilogue(a, name, kidx, 256)
    print(name, "instrs", a.ninstr, "nops", a.nops)
    return name, kernel_wrap(name, a.text(), 256, 64), 256, 256, 163840
```

```python
S, D, F, H, DH = 2048, 640, 1728, 32, 20

KB = 1024
def _al(x, a=4096):
    return (x + a - 1) // a * a
_off = 0
def _alloc(n):
    global _off
    o = _off
    _off = _al(_off + n)
    return o

WS_PQ = _alloc(128 * 20 * KB)
WS_H = _alloc(64 * 40 * KB)
WS_ACT = _alloc(64 * 108 * KB)
WS_WO = _alloc(8 * 20 * 5 * KB)
WS_RM = _alloc(20 * KB)
WS_WGU = _alloc(16 * 280 * KB)
WS_WD = _alloc(8 * 54 * 5 * KB)
WS_KV = _alloc(128 * KB)
WS_Z = WS_KV + 8 * 13 * KB
KVZ_BYTES = 8 * 13 * KB + 640 * 4
WS_FLAG = WS_KV + 0x1C000
WS_ST1 = _alloc(2048 * 8)
WS_CS1 = _alloc(1920 * 4)
WS_M2 = _alloc(2048 * 4)
WS_ST2 = _alloc(2048 * 32)
WS_END = _off
WS_STAMP = 0x8000000

def gu_block(t, c):
    b = 7 * t + c
    return b if b < 108 else None

G1 = 4
def gu_pos(c, kb):
    if c < G1:
        return kb * G1 + c
    return c * 40 + kb

KV_PAIRS = [(a, b) for a in range(5) for b in range(5) if abs(a - b) <= 1]
assert all(2 * a + b == i for i, (a, b) in enumerate(KV_PAIRS))

if __name__ == "__main__":
    for k, v in list(globals().items()):
        if k.startswith("WS_"):
            print(k, hex(v))
```

```python
import sys
import gen
gen.STAMPS = False
from gen import *
from gen1 import *
HDR = open("sequential_preLN__linear_attn_block__swiglu_ffn__prompt.s.ref").read().split("; Override launch")[0]
def final(kernels, path):
    build(kernels, path)
    s = open(path).read()
    open(path, "w").write(HDR + s + "\n")
if __name__ == "__main__":
    ks = [gen_p1(0), gen_p2(1), gen_p3(2), gen_p4(3)]
    final(ks, "sequential_preLN__linear_attn_block__swiglu_ffn__prompt.s")
    final(ks + [dummy(4), dummy(5)], "v_plus2.s")
    final(ks + [dummy(4), dummy(5), dummy(6), dummy(7)], "v_plus4.s")
```

```python
import sys
from asmgen import Asm, Tok, vr, kernel_wrap, interleave
from layout import *

STAMP_INS = "s_memrealtime"
STAMPS = False
OUT_BYTES = 2048 * 640 * 2
WS_BYTES = 0x10000000

KA_X, KA_WQKV, KA_WO, KA_BX, KA_WG, KA_WU, KA_WD, KA_OUT, KA_DBG, KA_WS = [8 * i for i in range(10)]


def srd(a, d, ptr, nbytes):
    a.i(f"s_mov_b32 s{d}, s{ptr}")
    a.i(f"s_and_b32 s{d+1}, s{ptr+1}, 0xffff")
    a.i(f"s_mov_b32 s{d+2}, {nbytes}")
    a.i(f"s_mov_b32 s{d+3}, 0x20000")


def stamp(a, wait=False):
    if STAMPS and a.nstamp < 8:
        if wait:
            a.wait_all()
        a.i(f"{STAMP_INS} s[{80+2*a.nstamp}:{81+2*a.nstamp}]")
        a.nstamp += 1


def prologue(a, name, nwg, loads):
    if STAMPS:
        a.nstamp = 0
        for i in range(80, 96):
            a.i(f"s_mov_b32 s{i}, 0")
        stamp(a)
    a.i(f"s_cmp_ge_u32 s2, {nwg}")
    a.i(f"s_cbranch_scc1 L_end_{name}")
    for s, off in loads:
        a.i(f"s_load_dwordx2 s[{s}:{s+1}], s[0:1], {off}")
    a.i("v_lshrrev_b32 v2, 6, v0")
    a.i("v_and_b32 v1, 63, v0")
    a.i("v_readfirstlane_b32 s16, v2")


def epilogue(a, name, kidx, nwg, srd_ws=8):
    if STAMPS:
        stamp(a)
        a.wait_all()
        a.i("s_barrier")
        a.nstamp = 7
        stamp(a)
        a.wait_lg0(True)
        for i in range(16):
            a.i(f"v_mov_b32 v{4+i}, s{80+i}")
        a.i("s_lshl_b32 s3, s2, 6")
        a.i(f"s_add_u32 s3, s3, {WS_STAMP + kidx * 256 * 64}")
        a.i("v_mov_b32 v2, s3")
        a.i("v_cmp_eq_u32 vcc, 0, v0")
        a.i("s_and_saveexec_b64 s[40:41], vcc")
        a.i(f"s_cbranch_execz L_end_{name}")
        for i in range(4):
            a.i(f"buffer_store_dwordx4 v[{4+4*i}:{7+4*i}], v2, s[{srd_ws}:{srd_ws+3}], 0 offen offset:{16*i}")
    a.label(f"L_end_{name}")
    a.i("s_endpgm")


def mfma(d, A, B, C=None):
    c = d if C is None else C
    return f"v_mfma_f32_16x16x32_bf16 {d}, {A}, {B}, {c}"


def ksplit_reduce(a, ACC, TMP, nb=5, f="v", OUT=None, lds0=0):
    if OUT is None:
        OUT = ACC
    a.i("v_lshlrev_b32 v2, 4, v1")
    for rp in (1, 2, 3):
        a.i(f"s_add_u32 s20, s16, {rp}")
        a.i("s_and_b32 s20, s20, 3")
        a.i(f"s_mul_i32 s20, s20, {3*nb*1024}")
        a.i(f"s_add_u32 s20, s20, {lds0 + (rp-1)*nb*1024}")
        a.i(f"v_add_u32 v{2+rp}, s20, v2")
    a.i(f"s_mul_i32 s20, s16, {3*nb*1024}")
    a.i(f"s_add_u32 s20, s20, {lds0}")
    a.i("v_add_u32 v6, s20, v2")
    for rp in (1, 2, 3):
        for b in range(nb):
            a.i(f"ds_write_b128 v{2+rp}, {vr(ACC+(rp*nb+b)*4, 4, f)} offset:{b*1024}")
    if f == "a":
        for k in range(nb * 4):
            a.i(f"v_accvgpr_read_b32 v{OUT+k}, a{ACC+k}")
    a.wait_lg0()
    a.i("s_barrier")
    for b in range(nb):
        for q in range(3):
            a.i(f"ds_read_b128 {vr(TMP+(b*3+q)*4)}, v6 offset:{(q*nb+b)*1024}")
    for b in range(nb):
        for q in range(3):
            for j in range(4):
                a.i(f"v_add_f32 v{OUT+b*4+j}, v{OUT+b*4+j}, v{TMP+(b*3+q)*4+j}")


def smask(a, sp, mask):
    a.i(f"s_mov_b32 s{sp}, 0x{mask & 0xffffffff:08x}")
    a.i(f"s_mov_b32 s{sp+1}, 0x{mask >> 32:08x}")


def gen_p2(kidx, name="p2_kernel", st_flags="", rot=True):
    a = Asm()
    prologue(a, name, 256, [(4, KA_WS), (6, KA_X)])
    a.many("""s_and_b32 s19, s2, 7
              s_lshr_b32 s20, s2, 3
              s_lshl_b32 s17, s19, 2
              s_lshr_b32 s21, s20, 3
              s_add_u32 s17, s17, s21
              s_and_b32 s18, s20, 7""")
    if rot:
        a.many("""s_add_u32 s19, s21, s18
                  s_add_u32 s19, s19, s16
                  s_and_b32 s19, s19, 3""")
    else:
        a.i("s_mov_b32 s19, s16")
    a.many("""v_lshlrev_b32 v2, 4, v1
              v_add_u32 v3, 0x1000, v2
              v_lshrrev_b32 v8, 4, v1
              v_lshlrev_b32 v9, 4, v8""")
    for rp in range(4):
        a.i(f"s_add_u32 s22, s16, {rp}")
        a.i("s_and_b32 s22, s22, 3")
        a.i("s_lshl_b32 s22, s22, 10")
        a.i(f"v_add_u32 v{4+rp}, s22, v2")
    a.many(f"""s_mul_i32 s24, s17, 20
              s_mul_i32 s22, s19, 5
              s_add_u32 s24, s24, s22
              s_lshl_b32 s24, s24, 12
              s_add_u32 s24, s24, {WS_PQ}
              s_mul_i32 s25, s18, 20
              s_add_u32 s25, s25, s22
              s_mul_i32 s25, s25, 5120
              s_add_u32 s25, s25, {WS_WO}
              s_lshl_b32 s26, s22, 10
              s_add_u32 s26, s26, {WS_RM}
              s_mul_i32 s27, s19, {26*1024}
              s_add_u32 s27, s27, {WS_KV}
              s_mul_i32 s28, s19, 640
              s_add_u32 s28, s28, {WS_Z}""")
    for ap in range(5):
        m = 0
        for l in range(64):
            if (16 * ap + 4 * (l >> 4)) // 20 == (l & 3):
                m |= 1 << l
        smask(a, 40 + 2 * ap, m)
    smask(a, 50, 0xFFFFFFFFFFFF0000); smask(a, 52, 0xFFFFFFFF00000000); smask(a, 54, 0xFFFF000000000000)
    a.wait_lg0()
    srd(a, 8, 4, WS_BYTES)
    srd(a, 12, 6, OUT_BYTES)
    KVR, ZR = 16, 120
    KF, ZF = 160, 232
    NUM = [16, 64]; OF = [112, 132]; TT = 152
    ACC, WOF, PQF = 0, 96, 216
    for ab in range(10):
        a.i(f"buffer_load_dwordx4 {vr(ZR+ab*4)}, v9, s[8:11], s28 offen offset:{ab*64}")
    for i in range(26):
        if i % 8 == 0:
            a.i(f"s_add_u32 s29, s27, {i*1024}")
        a.i(f"buffer_load_dwordx4 {vr(KVR+i*4)}, {'v2' if i % 8 < 4 else 'v3'}, s[8:11], s29 offen offset:{(i % 4)*1024}")

    def pq_loads(rp):
        L = []
        for j in range(5):
            L.append(f"s_add_u32 s29, s24, {j*4096}")
            L.append(f"buffer_load_dwordx4 {vr(PQF+(rp % 2)*20+j*4, 4, 'a')}, v{4+rp}, s[8:11], s29 offen")
        return L

    def wo_loads(j):
        L = [f"s_add_u32 s30, s25, {j*5120}"]
        for b in range(5):
            L.append(f"buffer_load_dwordx4 {vr(WOF+(j*6+b)*4, 4, 'a')}, {'v2' if b < 4 else 'v3'}, s[8:11], s30 offen offset:{(b % 4)*1024}")
        L.append(f"buffer_load_dwordx4 {vr(WOF+(j*6+5)*4, 4, 'a')}, {'v2' if j < 4 else 'v3'}, s[8:11], s26 offen offset:{(j % 4)*1024}")
        return L
    interleave(a, pq_loads(0) + pq_loads(1), [])
    stamp(a)
    conv = []
    zf = {}
    for zb in range(2):
        for j in ([0, 1, 2] if zb == 0 else [2, 3, 4]):
            r = ZF + len(zf) * 4
            zf[(zb, j)] = r
            for h in range(2):
                ab = 2 * j + h
                if ab // 5 == zb:
                    for jj in range(2):
                        conv.append(f"v_cvt_pk_bf16_f32 v{r+2*h+jj}, v{ZR+ab*4+2*jj}, v{ZR+ab*4+2*jj+1}")
                    for jj in range(2):
                        conv.append(f"v_cndmask_b32 v{r+2*h+jj}, 0, v{r+2*h+jj}, s[{40+2*(ab % 5)}:{41+2*(ab % 5)}]")
                else:
                    conv += [f"v_mov_b32 v{r+2*h}, 0", f"v_mov_b32 v{r+2*h+1}, 0"]
    kf = {}
    for b in range(10):
        for j in range(5):
            val = [(ab // 5 == b // 5 and abs(ab - b) <= 1) for ab in (2 * j, 2 * j + 1)]
            if not any(val):
                continue
            r = KF + len(kf) * 4
            kf[(b, j)] = r
            for h in range(2):
                ab = 2 * j + h
                if val[h]:
                    src = KVR + (13 * (b // 5) + 2 * (ab % 5) + (b % 5)) * 4
                    for jj in range(2):
                        conv.append(f"v_cvt_pk_bf16_f32 v{r+2*h+jj}, v{src+2*jj}, v{src+2*jj+1}")
                else:
                    conv += [f"v_mov_b32 v{r+2*h}, 0", f"v_mov_b32 v{r+2*h+1}, 0"]
    assert len(kf) == 18 and len(zf) == 6
    wl = sum([wo_loads(j) for j in range(5)], [])
    interleave(a, conv, wl[:14])
    stamp(a)

    def o_mfma(rp):
        N = NUM[rp % 2]
        L = []
        pq = lambda j: vr(PQF + (rp % 2) * 20 + j * 4, 4, 'a')
        for zb in range(2):
            first = True
            for (z2, j), r in zf.items():
                if z2 == zb:
                    L.append(mfma(vr(N + 40 + zb * 4), vr(r), pq(j), "0" if first else None)); first = False
        for b in range(10):
            first = True
            for (b2, j), r in kf.items():
                if b2 == b:
                    L.append(mfma(vr(N + b * 4), vr(r), pq(j), "0" if first else None)); first = False
        return L

    def o_valu(rp):
        N = NUM[rp % 2]; O = OF[rp % 2]
        L = []
        for h in range(8):
            L.append(f"v_add_f32 v{N+40+h}, {f32(1e-6)}, v{N+40+h}")
        for h in range(8):
            L.append(f"v_rcp_f32 v{N+40+h}, v{N+40+h}")
        for gq in range(2):
            d = N + 40 + gq * 4
            for k in range(3):
                L.append(f"v_cndmask_b32 v{TT+gq*3+k}, v{d+k}, v{d+k+1}, s[{50+2*k}:{51+2*k}]")
        for b in range(10):
            gq, bp = b // 5, b % 5
            fr = N + 40 + gq * 4 if bp == 0 else (N + 40 + gq * 4 + 3 if bp == 4 else TT + gq * 3 + bp - 1)
            for jj in range(4):
                L.append(f"v_mul_f32 v{N+b*4+jj}, v{N+b*4+jj}, v{fr}")
            for jj in range(2):
                L.append(f"v_cvt_pk_bf16_f32 v{O+b*2+jj}, v{N+b*4+2*jj}, v{N+b*4+2*jj+1}")
        return L

    def main_mfma(rp):
        O = OF[rp % 2]
        L = []
        for j in range(5):
            for b in range(6):
                L.append(mfma(vr(ACC + (rp * 6 + b) * 4, 4, 'a'), vr(WOF + (j * 6 + b) * 4, 4, 'a'), vr(O + j * 4), "0" if j == 0 else None))
        return L
    XR = 240
    interleave(a, o_mfma(0), wl[14:28])
    interleave(a, o_mfma(1), o_valu(0)[:40] + wl[28:])
    interleave(a, [], o_valu(0)[40:])
    interleave(a, [], pq_loads(2))
    interleave(a, main_mfma(0), o_valu(1) + pq_loads(3))
    stamp(a)
    interleave(a, o_mfma(2) + main_mfma(1), [])
    interleave(a, o_mfma(3), o_valu(2)[:40])
    interleave(a, [], o_valu(2)[40:])
    a.many(f"""v_and_b32 v10, 15, v1
              s_movk_i32 s20, 1280
              v_mul_lo_u32 v11, v10, s20
              v_lshl_add_u32 v11, v8, 3, v11
              v_lshlrev_b32 v12, 3, v10
              s_lshl_b32 s31, s17, 2
              s_add_u32 s31, s31, s16
              s_mul_i32 s32, s31, 20480
              s_mul_i32 s33, s18, 160
              s_add_u32 s32, s32, s33
              s_lshl_b32 s33, s31, 7
              s_add_u32 s33, s33, {WS_ST1}""")
    XR = 160
    xl = [f"buffer_load_dwordx2 {vr(XR+2*b, 2)}, v11, s[12:15], s32 offen offset:{b*32}" for b in range(5)]
    xl.append(f"buffer_load_dword v{XR+10}, v12, s[8:11], s33 offen offset:4")
    interleave(a, main_mfma(2), xl + o_valu(3))
    interleave(a, main_mfma(3), [])
    stamp(a)
    OUT = 176
    ksplit_reduce(a, ACC, 16, nb=6, f="a", OUT=OUT)
    stamp(a)
    a.i(f"v_add_f32 v{XR+10}, v{XR+10}, v{OUT+20}")
    for b in range(5):
        for jj in range(2):
            h = XR + b * 2 + jj
            a.i(f"v_lshlrev_b32 v14, 16, v{h}")
            a.i(f"v_and_b32 v15, 0xffff0000, v{h}")
            a.i(f"v_sub_f32 v14, v14, v{XR+10}")
            a.i(f"v_sub_f32 v15, v15, v{XR+10}")
            a.i(f"v_add_f32 v{OUT+b*4+2*jj}, v{OUT+b*4+2*jj}, v14")
            a.i(f"v_add_f32 v{OUT+b*4+2*jj+1}, v{OUT+b*4+2*jj+1}, v15")
    PK = 200
    for b in range(5):
        for jj in range(2):
            a.i(f"v_cvt_pk_bf16_f32 v{PK+b*2+jj}, v{OUT+b*4+2*jj}, v{OUT+b*4+2*jj+1}")
    a.i(f"v_mul_f32 v14, v{OUT}, v{OUT}")
    for k in range(1, 20):
        a.i(f"v_fmac_f32 v14, v{OUT+k}, v{OUT+k}")
    a.many(f"""v_bfe_u32 v4, v1, 4, 1
              v_lshlrev_b32 v4, 9, v4
              v_lshl_add_u32 v4, v10, 4, v4
              v_lshrrev_b32 v6, 5, v1
              v_lshl_add_u32 v5, v6, 3, v4
              v_lshl_add_u32 v4, v6, 10, v4
              s_lshl_b32 s26, s17, 1
              s_lshr_b32 s27, s16, 1
              s_add_u32 s26, s26, s27
              s_mul_i32 s26, s26, 40
              s_mul_i32 s27, s18, 5
              s_add_u32 s26, s26, s27
              s_lshl_b32 s26, s26, 10
              s_and_b32 s27, s16, 1
              s_lshl_b32 s27, s27, 8
              s_add_u32 s27, s27, s26
              s_add_u32 s27, s27, {WS_H}
              s_add_u32 s26, s27, 4096
              v_mov_b32 v15, v14""")
    for p in range(2):
        r = PK + p * 4
        a.i(f"v_permlane32_swap_b32 v{r}, v{r+2}")
        a.i(f"v_permlane32_swap_b32 v{r+1}, v{r+3}")
        a.i(f"buffer_store_dwordx4 {vr(r)}, v4, s[8:11], s27 offen offset:{p*2048} {st_flags}")
    a.i(f"buffer_store_dwordx2 {vr(PK+8, 2)}, v5, s[8:11], s26 offen {st_flags}")
    a.many("""v_permlane16_swap_b32 v14, v15
              v_add_f32 v14, v14, v15
              v_mov_b32 v15, v14
              v_permlane32_swap_b32 v14, v15
              v_add_f32 v14, v14, v15""")
    a.many(f"""v_lshlrev_b32 v6, 5, v10
              v_lshlrev_b32 v7, 2, v10
              s_lshl_b32 s26, s31, 9
              s_lshl_b32 s27, s18, 2
              s_add_u32 s26, s26, s27
              s_add_u32 s26, s26, {WS_ST2}
              s_lshl_b32 s27, s31, 6
              s_add_u32 s27, s27, {WS_M2}
              s_mov_b64 s[34:35], exec
              s_mov_b64 exec, 0xffff""")
    a.i(f"buffer_store_dword v14, v6, s[8:11], s26 offen {st_flags}")
    a.i(f"buffer_store_dword v{XR+10}, v7, s[8:11], s27 offen {st_flags}")
    a.i("s_mov_b64 exec, s[34:35]")
    epilogue(a, name, kidx, 256)
    print(name, "instrs", a.ninstr, "nops", a.nops)
    return name, kernel_wrap(name, a.text(), 256, 256), 256, 256, 73728


def gen_p4(kidx, xmap="A", depth=3, rot=True, name="p4_kernel"):
    a = Asm()
    prologue(a, name, 256, [(4, KA_WS), (6, KA_OUT)])
    a.i("s_and_b32 s19, s2, 7")
    a.i("s_lshr_b32 s20, s2, 3")
    if xmap == "A":
        a.i("s_lshl_b32 s17, s19, 2"); a.i("s_lshr_b32 s21, s20, 3"); a.i("s_add_u32 s17, s17, s21")
        a.i("s_and_b32 s18, s20, 7")
        a.i("s_lshl_b32 s29, s21, 1"); a.i("s_add_u32 s29, s29, s18"); a.i("s_and_b32 s29, s29, 7")
    elif xmap == "B":
        a.i("s_lshr_b32 s17, s19, 1"); a.i("s_lshl_b32 s17, s17, 3"); a.i("s_lshr_b32 s21, s20, 2"); a.i("s_add_u32 s17, s17, s21")
        a.i("s_and_b32 s18, s19, 1"); a.i("s_lshl_b32 s18, s18, 2"); a.i("s_and_b32 s22, s20, 3"); a.i("s_add_u32 s18, s18, s22")
        a.i("s_lshl_b32 s29, s22, 1"); a.i("s_add_u32 s29, s29, s21"); a.i("s_and_b32 s29, s29, 7")
    if not rot:
        a.i("s_mov_b32 s29, 0")
    a.i("s_mul_i32 s29, s29, 7"); a.i("s_lshr_b32 s29, s29, 2")
    a.i("v_lshlrev_b32 v2, 4, v1")
    a.i("v_add_u32 v3, 0x1000, v2")
    a.i("s_mul_i32 s21, s16, 14")
    a.i("s_cmp_eq_u32 s16, 3")
    a.i("s_cselect_b32 s21, 41, s21")
    a.i("s_cmp_ge_u32 s16, 2")
    a.i("s_cselect_b32 s30, 13, 14")
    a.i("s_lshl_b32 s31, s30, 12")
    a.i("s_mul_i32 s32, s30, 5120")
    a.i("s_add_u32 s21, s21, s29")
    a.many("""v_lshrrev_b32 v8, 5, v1
              v_lshlrev_b32 v8, 11, v8
              v_bfe_u32 v9, v1, 4, 1
              v_lshl_add_u32 v8, v9, 9, v8
              v_and_b32 v9, 15, v1
              v_lshl_add_u32 v8, v9, 4, v8""")
    for rp in range(4):
        a.i(f"s_add_u32 s22, s16, {rp}")
        a.i("s_and_b32 s23, s22, 1")
        a.i("s_lshl_b32 s23, s23, 8")
        a.i("s_and_b32 s22, s22, 2")
        a.i("s_lshl_b32 s22, s22, 9")
        a.i("s_add_u32 s22, s22, s23")
        a.i(f"v_add_u32 v{4+rp}, s22, v8")
    a.i("s_mul_i32 s24, s17, 54"); a.i("s_add_u32 s24, s24, s21"); a.i("s_lshl_b32 s24, s24, 12"); a.i(f"s_add_u32 s24, s24, {WS_ACT}")
    a.i("s_mul_i32 s25, s18, 54"); a.i("s_add_u32 s25, s25, s21"); a.i("s_mul_i32 s25, s25, 5120"); a.i(f"s_add_u32 s25, s25, {WS_WD}")
    a.wait_lg0()
    srd(a, 8, 4, WS_BYTES)
    srd(a, 12, 6, OUT_BYTES)
    ACC = 16
    NK = 14

    def loads(j):
        base = (j % depth) * 36
        order = [("a", 0), ("w", 0), ("a", 1), ("a", 2), ("a", 3), ("w", 1), ("w", 2), ("w", 3), ("w", 4)]
        L = []
        for k, x in order:
            if k == "a":
                L.append(f"buffer_load_dwordx4 {vr(base+x*4, 4, 'a')}, v{4+x}, s[8:11], s24 offen")
            elif x < 4:
                L.append(f"buffer_load_dwordx4 {vr(base+16+x*4, 4, 'a')}, v2, s[8:11], s25 offen offset:{x*1024}")
            else:
                L.append(f"buffer_load_dwordx4 {vr(base+16+x*4, 4, 'a')}, v3, s[8:11], s25 offen")
        def adv():
            a.many("""s_add_u32 s24, s24, 4096
                      s_add_u32 s25, s25, 5120
                      s_add_u32 s29, s29, 1
                      s_cmp_eq_u32 s29, s30
                      s_cselect_b32 s33, s31, 0
                      s_cselect_b32 s34, s32, 0
                      s_cselect_b32 s29, 0, s29
                      s_sub_u32 s24, s24, s33
                      s_sub_u32 s25, s25, s34""")
        L.append(adv)
        return L

    for j in range(depth - 1):
        interleave(a, loads(j), [])
    stamp(a)
    HR = 100
    a.many(f"""v_bfe_u32 v10, v1, 4, 1
              v_lshlrev_b32 v10, 9, v10
              v_and_b32 v11, 15, v1
              v_lshl_add_u32 v10, v11, 4, v10
              v_lshrrev_b32 v12, 5, v1
              v_lshl_add_u32 v10, v12, 3, v10
              v_lshlrev_b32 v11, 2, v11
              s_lshl_b32 s26, s17, 1
              s_lshr_b32 s27, s16, 1
              s_add_u32 s26, s26, s27
              s_mul_i32 s26, s26, 40
              s_mul_i32 s27, s18, 5
              s_add_u32 s26, s26, s27
              s_lshl_b32 s26, s26, 10
              s_and_b32 s27, s16, 1
              s_lshl_b32 s27, s27, 8
              s_add_u32 s27, s27, s26
              s_add_u32 s27, s27, {WS_H}
              s_add_u32 s26, s27, 4096
              s_lshl_b32 s28, s17, 2
              s_add_u32 s28, s28, s16
              s_lshl_b32 s28, s28, 6
              s_add_u32 s28, s28, {WS_M2}""")
    hl = [f"buffer_load_dwordx2 {vr(HR+2*b, 2)}, v10, s[8:11], s27 offen offset:{b*1024}" for b in range(4)]
    hl += [f"buffer_load_dwordx2 {vr(HR+8, 2)}, v10, s[8:11], s26 offen",
           f"buffer_load_dword v{HR+10}, v11, s[8:11], s28 offen"]
    for j in range(NK):
        base = (j % depth) * 36
        M = []
        for b in range(5):
            for r in range(4):
                d = vr(ACC + (r * 5 + b) * 4)
                M.append(mfma(d, vr(base + 16 + b * 4, 4, 'a'), vr(base + r * 4, 4, 'a'), "0" if j == 0 else None))
        side = loads(j + depth - 1) if j + depth - 1 < NK else []
        if j + depth - 1 == NK:
            side = hl
        if j == NK - 1:
            a.i("s_cmp_ge_u32 s16, 2")
            a.i(f"s_cbranch_scc1 L_skip_{name}")
            a.cond_begin()
        interleave(a, M, side)
        if j == NK - 1:
            a.label(f"L_skip_{name}")
            a.cond_end()
        if j in (0, 6):
            stamp(a)
    stamp(a)
    ksplit_reduce(a, ACC, 112)
    stamp(a)
    for b in range(5):
        for jj in range(2):
            h = HR + b * 2 + jj
            a.i(f"v_lshlrev_b32 v8, 16, v{h}")
            a.i(f"v_and_b32 v9, 0xffff0000, v{h}")
            a.i(f"v_add_f32 v8, v8, v{HR+10}")
            a.i(f"v_add_f32 v9, v9, v{HR+10}")
            a.i(f"v_add_f32 v{ACC+b*4+2*jj}, v{ACC+b*4+2*jj}, v8")
            a.i(f"v_add_f32 v{ACC+b*4+2*jj+1}, v{ACC+b*4+2*jj+1}, v9")
    PK = 112
    for b in range(5):
        for jj in range(2):
            a.i(f"v_cvt_pk_bf16_f32 v{PK+b*2+jj}, v{ACC+b*4+2*jj}, v{ACC+b*4+2*jj+1}")
    a.i("v_and_b32 v2, 15, v1"); a.i("v_lshrrev_b32 v3, 4, v1")
    a.i("s_movk_i32 s20, 1280")
    a.i("v_mul_lo_u32 v2, v2, s20")
    a.i("v_and_b32 v4, 1, v3"); a.i("v_lshlrev_b32 v4, 5, v4"); a.i("v_lshrrev_b32 v5, 1, v3"); a.i("v_lshlrev_b32 v5, 4, v5")
    a.i("v_add3_u32 v4, v4, v5, v2")
    a.i("v_lshl_add_u32 v5, v3, 3, v2")
    a.i("s_lshl_b32 s20, s17, 2"); a.i("s_add_u32 s20, s20, s16"); a.i("s_mul_i32 s20, s20, 20480")
    a.i("s_mul_i32 s21, s18, 160"); a.i("s_add_u32 s20, s20, s21")
    for p in range(2):
        r = PK + p * 4
        a.i(f"v_permlane16_swap_b32 v{r}, v{r+2}")
        a.i(f"v_permlane16_swap_b32 v{r+1}, v{r+3}")
        a.i(f"buffer_store_dwordx4 {vr(r)}, v4, s[12:15], s20 offen offset:{p*64}")
    a.i(f"buffer_store_dwordx2 {vr(PK+8, 2)}, v5, s[12:15], s20 offen offset:128")
    epilogue(a, name, kidx, 256)
    return name, kernel_wrap(name, a.text(), 176, depth * 36), 256, 256, 61440


LOG2E = 1.4426950408889634
import struct
def f32(x):
    return "0x%08x" % struct.unpack("<I", struct.pack("<f", x))[0]


def mfma32(d, A, B, C=None):
    c = d if C is None else C
    return f"v_mfma_f32_32x32x16_bf16 {d}, {A}, {B}, {c}"


def gen_p3(kidx, name="p3_kernel", st_flags="", bar_at=0.7, rd_ahead=3, noepi=False, early=True):
    a = Asm()
    prologue(a, name, 256, [(4, KA_WS)])
    a.many("""s_and_b32 s19, s2, 7
              s_lshr_b32 s20, s2, 3
              s_lshr_b32 s17, s19, 1
              s_lshl_b32 s17, s17, 2
              s_lshr_b32 s21, s20, 3
              s_add_u32 s17, s17, s21
              s_and_b32 s18, s19, 1
              s_lshl_b32 s18, s18, 3
              s_and_b32 s21, s20, 7
              s_add_u32 s18, s18, s21
              v_lshlrev_b32 v2, 4, v1
              v_and_b32 v4, 31, v1""")
    a.i(f"s_mul_i32 s24, s18, {280*1024}"); a.i("s_mul_i32 s25, s16, 10240"); a.i("s_add_u32 s24, s24, s25"); a.i(f"s_add_u32 s24, s24, {WS_WGU}")
    a.i("s_lshl_b32 s26, s17, 2"); a.i("s_add_u32 s26, s26, s16"); a.i("s_mul_i32 s27, s26, 40960"); a.i(f"s_add_u32 s27, s27, {WS_H}")
    a.i("v_lshlrev_b32 v5, 5, v4"); a.i("s_lshl_b32 s28, s26, 10"); a.i(f"s_add_u32 s28, s28, {WS_ST2}")
    a.many(f"""s_lshl_b32 s30, s17, 1
              s_lshr_b32 s31, s16, 1
              s_add_u32 s30, s30, s31
              s_mul_i32 s30, s30, 108
              s_mul_i32 s31, s18, 7
              s_add_u32 s30, s30, s31
              s_lshl_b32 s30, s30, 1
              s_and_b32 s31, s16, 1
              s_add_u32 s30, s30, s31
              s_lshl_b32 s30, s30, 10
              s_add_u32 s30, s30, {WS_ACT}
              s_cmp_eq_u32 s18, 15
              s_cselect_b32 s31, 0x7f000000, s30""")
    a.wait_lg0()
    srd(a, 8, 4, WS_BYTES)
    ACC = 16
    ST = 80
    RA2, RSQ = 8, 9
    T = 96
    PK = 88
    WF = 160
    NB = 7

    def dma(blk):
        L = []
        toks = []
        for i in range(10):
            if i % 4 == 0:
                def setm(i=i):
                    a.i(f"s_add_u32 s34, s25, {(blk % 4) * 40960 + i * 1024}")
                    a.i("s_mov_b32 m0, s34")
                    a.i(f"s_add_u32 s35, s24, {blk * 40960 + i * 1024}")
                L.append(setm)
            tk = Tok(); toks.append(tk)
            L.append((f"buffer_load_dwordx4 v2, s[8:11], s35 offen offset:{(i % 4) * 1024} lds", tk))
        return L, toks

    def slab(k0, k1):
        L = []
        for kb in range(k0, k1):
            if kb % 4 == 0 or kb == k0:
                L.append(f"s_add_u32 s36, s27, {(kb // 4) * 4096}")
            L.append(f"buffer_load_dwordx4 {vr(kb*4, 4, 'a')}, v2, s[8:11], s36 offen offset:{(kb % 4) * 1024}")
        return L

    steps = sorted((gu_pos(c, kb), c, kb) for c in range(7) for kb in range(40))
    a.i("v_add_u32 v13, 0x10000, v2"); a.i("v_add_u32 v14, 0x20000, v2")

    def rd(n):
        p, c, kb = steps[n]
        off = ((p // 40) % 4) * 40960 + (p % 40) * 1024
        base = ["v2", "v13", "v14"][off >> 16]
        return f"ds_read_b128 {vr(WF + (n % 8) * 4, 4, 'a')}, {base} offset:{off & 0xffff}"

    def mm(n):
        p, c, kb = steps[n]
        d = vr(ACC + (c % 4) * 16, 16)
        return mfma32(d, vr(WF + (n % 8) * 4, 4, 'a'), vr(kb * 4, 4, 'a'), "0" if kb == 0 else None)

    def epi(c):
        L = []
        g0 = ACC + (c % 4) * 16
        u0 = g0 + 8
        pk = PK + (c % 2) * 4
        for hf in range(2):
            R = range(4 * hf, 4 * hf + 4)
            for j in R:
                L.append(f"v_mul_f32 v{T+j}, v{RA2}, v{g0+j}")
            for j in R:
                L.append(f"v_exp_f32 v{T+j}, v{T+j}")
                L.append(f"v_mul_f32 v{T+8+j}, v{g0+j}, v{u0+j}")
            for j in R:
                L.append(f"v_add_f32 v{T+j}, 1.0, v{T+j}")
            for j in R:
                L.append(f"v_rcp_f32 v{T+j}, v{T+j}")
                L.append(f"v_mul_f32 v{T+8+j}, v{RSQ}, v{T+8+j}")
            for j in R:
                L.append(f"v_mul_f32 v{T+8+j}, v{T+8+j}, v{T+j}")
            for jj in range(2 * hf, 2 * hf + 2):
                L.append(f"v_cvt_pk_bf16_f32 v{pk+jj}, v{T+8+2*jj}, v{T+8+2*jj+1}")
        L.append(f"s_add_u32 s37, {'s30' if c < 3 else 's31'}, {c*2048}")
        L.append(f"buffer_store_dwordx4 {vr(pk)}, v2, s[8:11], s37 offen {st_flags}")
        return L

    def stats():
        return [f"buffer_load_dwordx4 {vr(ST+q*4)}, v5, s[8:11], s28 offen offset:{q*16}" for q in range(2)]

    def stats_fin():
        L = [f"v_add_f32 v{ST}, v{ST}, v{ST+k}" for k in range(1, 8)]
        L.append(f"v_mov_b32 v{ST+1}, {f32(1e-5)}")
        L.append(f"v_fmac_f32 v{ST+1}, {f32(1/640)}, v{ST}")
        L.append(f"v_rsq_f32 v{RA2}, v{ST+1}")
        L.append(f"v_rcp_f32 v{RSQ}, v{ST+1}")
        L.append(f"v_mul_f32 v{RA2}, {f32(-LOG2E)}, v{RA2}")
        return L

    D = [dma(b) for b in range(NB)]
    interleave(a, D[0][0], [])
    interleave(a, slab(0, 8), [])
    stamp(a)
    side = {b: [] for b in range(NB)}
    side_late = {b: [] for b in range(NB)}
    side[0] = slab(8, 20) + D[1][0] + slab(20, 26)
    side_late[0] = slab(26, 32)
    side[1] = slab(32, 40) + stats() + D[2][0]
    side_late[1] = D[3][0]
    side[2] = stats_fin() + epi(0)
    side[3] = epi(1) + epi(2)[:20]
    side[4] = epi(2)[20:] + epi(3)
    side[5] = epi(4)
    side[6] = epi(5)
    for b in (4, 5, 6):
        side_late[b - 2] = D[b][0]
    if noepi:
        for b in (3, 4, 5, 6):
            side[b] = []
    a.wait_tok(D[0][1][-1])
    a.i("s_barrier")
    n = 0
    nrd = 0
    for blk in range(NB):
        main1, main2 = [], []
        cut = int(40 * bar_at)
        for i in range(40):
            tgt = main1 if i < cut else main2
            lim = min(n + rd_ahead + 1, (blk + 1) * 40 if i < cut else min((blk + 2) * 40, NB * 40))
            rds = []
            while nrd < lim:
                rds.append(rd(nrd)); nrd += 1
            def step(rds=rds, n=n):
                for x in rds:
                    a.i(x)
                a.i(mm(n))
            tgt.append(step)
            n += 1
        interleave(a, main1, side[blk])
        if blk + 1 < NB:
            a.wait_tok(D[blk + 1][1][-1])
            a.i("s_barrier")
        interleave(a, main2, side_late[blk])
        if blk in (0, 1, 3):
            stamp(a)
    stamp(a)
    interleave(a, epi(6), [])
    epilogue(a, name, kidx, 256)
    print(name, "instrs", a.ninstr, "nops", a.nops)
    return name, kernel_wrap(name, a.text(), 128, 192), 256, 256, 163840


def build(kernels, path):
    out = []
    for name, _, nwg, blk, lds in kernels:
        out.append(f"; @launch kernel={name} grid=({nwg},1,1) block=({blk},1,1) lds={lds}")
    out.append('.amdgcn_target "amdgcn-amd-amdhsa--gfx950"')
    seen = set()
    for name, txt, *_ in kernels:
        if name not in seen:
            out.append(txt); seen.add(name)
    open(path, "w").write("\n".join(out))
    print(path, sum(len(x) for x in out), "bytes")


def dummy(kidx):
    name = f"z{kidx}_kernel"
    a = Asm()
    prologue(a, name, 256, [(4, KA_WS)])
    a.wait_lg0()
    srd(a, 8, 4, WS_BYTES)
    epilogue(a, name, kidx, 256)
    return name, kernel_wrap(name, a.text(), 24, 0), 256, 256, 0
```

```python
import gen
from gen import *

X_BYTES = 2048 * 1280
WQKV_BYTES = 640 * 3840
SLOT = 36864
POLL = 17


def spin(a, lbl, target, vtmp, stmp, srd_dbg, voff):
    a.i(f"v_readfirstlane_b32 s{stmp}, v{vtmp}")
    a.i(f"s_cmp_ge_u32 s{stmp}, {target}")
    a.i(f"s_cbranch_scc1 {lbl}_ok")
    a.raw(f"s_mov_b32 s{stmp+1}, 0")
    a.label(f"{lbl}_loop")
    a.raw("s_sleep 2")
    a.raw(f"buffer_load_dword v{vtmp}, v{voff}, s[{srd_dbg}:{srd_dbg+3}], 0 offen sc1")
    a.raw("s_waitcnt vmcnt(0)")
    a.raw(f"v_readfirstlane_b32 s{stmp}, v{vtmp}")
    a.raw(f"s_add_u32 s{stmp+1}, s{stmp+1}, 1")
    a.raw(f"s_cmp_ge_u32 s{stmp+1}, 0x40000")
    a.raw(f"s_cbranch_scc1 {lbl}_ok")
    a.raw(f"s_cmp_lt_u32 s{stmp}, {target}")
    a.raw(f"s_cbranch_scc1 {lbl}_loop")
    a.label(f"{lbl}_ok")
    a.nop(2)


def p1_gemm(a, role, name, st_flags, rot, dbg=""):
    isq = role == "q"
    ACC = 16
    XF, WFR = 0, 8
    a.many("""v_lshrrev_b32 v96, 3, v1
              v_and_b32 v97, 7, v1
              v_lshrrev_b32 v98, 4, v1
              s_movk_i32 s20, 1280""")
    for i in range(4):
        a.i(f"v_add_u32 v99, {8*i}, v96")
        a.i("v_mul_lo_u32 v99, v99, s20")
        a.i(f"v_add_u32 v100, {4*i}, v98")
        a.i("v_and_b32 v100, 7, v100")
        a.i("v_xor_b32 v100, v100, v97")
        a.i("v_lshl_add_u32 v99, v100, 4, v99")
        a.i(f"v_subrev_u32 v{4+i}, {1024*i}, v99")
    seg = 160 if isq else 1280
    a.i("s_mov_b32 s20, 52429"); a.i("s_movk_i32 s21, 3840")
    for i in range(5):
        a.i(f"v_add_u32 v99, {64*i}, v1")
        a.i("v_mul_lo_u32 v100, v99, s20")
        a.i("v_lshrrev_b32 v100, 20, v100")
        a.i("v_mul_u32_u24 v101, 20, v100")
        a.i("v_sub_u32 v99, v99, v101")
        a.i("v_mul_lo_u32 v100, v100, s21")
        a.i("v_lshl_add_u32 v100, v99, 4, v100")
        a.i("v_cmp_le_u32 vcc, 10, v99")
        a.i(f"v_mov_b32 v101, {seg-160}")
        a.i("v_cndmask_b32 v101, 0, v101, vcc")
        a.i("v_add_u32 v100, v100, v101")
        a.i(f"v_subrev_u32 v{8+i}, {1024*i if i < 4 else 0}, v100")
    a.many("""v_and_b32 v96, 31, v1
              v_lshrrev_b32 v97, 5, v1
              v_bfe_u32 v98, v1, 1, 3
              v_lshlrev_b32 v99, 7, v96
              s_lshl_b32 s20, s16, 12
              v_add_u32 v99, s20, v99""")
    for j in range(4):
        a.i(f"v_add_u32 v100, {2*j}, v97")
        a.i("v_xor_b32 v100, v100, v98")
        a.i(f"v_lshl_add_u32 v{104+j}, v100, 4, v99")
        a.i(f"v_add_u32 v{108+j}, {2*SLOT}, v{104+j}")
    a.many(f"""v_bfe_u32 v98, v1, 2, 2
              v_lshl_add_u32 v98, v97, 3, v98
              v_mul_u32_u24 v98, 320, v98
              v_bfe_u32 v99, v1, 4, 1
              v_lshl_add_u32 v98, v99, 5, v98
              v_and_b32 v99, 3, v1
              v_lshl_add_u32 v112, v99, 3, v98
              v_add_u32 v113, {2*SLOT}, v112
              v_mov_b32 v114, 0""")
    a.many("""s_lshl_b32 s24, s17, 2
              s_add_u32 s24, s24, s16
              s_mul_i32 s24, s24, 40960
              s_mul_i32 s25, s16, 61440""")
    if isq:
        a.i("s_mul_i32 s20, s18, 320")
    else:
        a.i("s_mul_i32 s20, s18, 160"); a.i("s_add_u32 s20, s20, 640")
    a.many("""s_add_u32 s25, s25, s20
              s_mul_i32 s30, s16, 5120
              s_lshl_b32 s31, s16, 12
              s_add_u32 s31, s31, 20480""")

    def dma(st):
        sl = (st % 4) * SLOT
        toks = []
        L = []
        def pre():
            a.many(f"""s_lshl_b32 s26, s29, 7
                      s_add_u32 s26, s26, s24
                      s_mul_i32 s27, s29, {64*3840}
                      s_add_u32 s27, s27, s25
                      s_add_u32 s29, s29, 1
                      s_cmp_eq_u32 s29, 10
                      s_cselect_b32 s29, 0, s29
                      s_add_u32 s34, s30, {sl}
                      s_mov_b32 m0, s34""")
        L.append(pre)
        for i in range(5):
            if i == 4:
                def m2():
                    a.i(f"s_add_u32 s34, s30, {sl + 4096}"); a.i("s_mov_b32 m0, s34")
                L.append(m2)
            tk = Tok(); toks.append(tk)
            L.append((f"buffer_load_dwordx4 v{8+i}, s[56:59], s27 offen offset:{1024*i if i < 4 else 0} lds", tk))
        def m3():
            a.i(f"s_add_u32 s34, s31, {sl}"); a.i("s_mov_b32 m0, s34")
        L.append(m3)
        for i in range(4):
            tk = Tok(); toks.append(tk)
            L.append((f"buffer_load_dwordx4 v{4+i}, s[12:15], s26 offen offset:{1024*i} lds", tk))
        return L, toks

    def reads(n):
        st, j = n // 4, n % 4
        sl = st % 4
        hi = sl >= 2
        off = (sl % 2) * SLOT
        L = [f"ds_read_b128 {vr(XF+(n % 2)*4, 4, 'a')}, v{(108 if hi else 104)+j} offset:{off+20480}"]
        for blk in range(5):
            for u in range(2):
                L.append(f"ds_read_b64_tr_b16 {vr(WFR+(n % 2)*20+blk*4+u*2, 2, 'a')}, v{113 if hi else 112} offset:{off+(16*j+4*u)*320+blk*64}")
        return L

    def mms(n):
        L = []
        for blk in range(5):
            d = vr(ACC + blk * 16, 16)
            w = vr(WFR + (n % 2) * 20 + blk * 4, 4, 'a'); x = vr(XF + (n % 2) * 4, 4, 'a')
            L.append(mfma32(d, w, x, "0" if n == 0 else None) if isq else mfma32(d, x, w, "0" if n == 0 else None))
        return L

    D = [dma(st) for st in range(10)]
    for st in range(3):
        interleave(a, D[st][0], [])
    stamp(a)
    a.wait_tok(D[0][1][-1])
    a.i("s_barrier")
    interleave(a, reads(0), [])
    SV = 120
    a.many(f"""s_lshl_b32 s36, s17, 2
              s_add_u32 s36, s36, s16
              s_lshl_b32 s36, s36, 7
              s_add_u32 s36, s36, {WS_ST1}
              s_add_u32 s43, s36, 8192
              v_lshlrev_b32 v115, 2, v96
              v_lshlrev_b32 v116, 26, v97
              v_lshl_add_u32 v116, v116, 4, v115
              v_lshlrev_b32 v119, 4, v97
              s_mov_b32 s42, {f32(LOG2E)}""")
    ein = [f"buffer_load_dword v157, v115, s[8:11], s43 offen sc1"]
    if isq:
        a.many(f"""s_mul_i32 s37, s18, 640
                  s_add_u32 s37, s37, {WS_CS1}""")
        for blk in range(5):
            ein.append(f"buffer_load_dword v{152+blk}, v116, s[8:11], s37 offen offset:{128*blk} sc1")
        ein.append(f"buffer_load_dword v{SV}, v115, s[8:11], s36 offen sc1")
    else:
        a.many(f"""v_cmp_le_u32 vcc, 16, v96
                  v_mov_b32 v117, {2560-320}
                  v_cndmask_b32 v117, 0, v117, vcc
                  v_add_u32 v117, v117, v116
                  s_mul_i32 s37, s18, 320
                  s_add_u32 s37, s37, {WS_CS1 + 2560 - 4*320}""")
        offs = [("v116", 0), ("v116", 128), ("v117", 256), ("v116", 2560 + 64), ("v116", 2560 + 192)]
        for blk in range(5):
            ein.append(f"buffer_load_dword v{152+blk}, {offs[blk][0]}, s[8:11], s37 offen offset:{offs[blk][1]} sc1")
        for q in range(4):
            ein.append(f"buffer_load_dwordx4 {vr(SV+q*4)}, v119, s[8:11], s36 offen offset:{32*q} sc1")
    CW, CX = 160, 180
    corr = []
    for blk in range(5):
        r = CW + 4 * blk; c = 152 + blk
        corr += [f"v_cvt_pk_bf16_f32 v{r}, v{c}, v{c}", f"v_lshlrev_b32 v{r+1}, 16, v{r}", f"v_sub_f32 v{r+1}, v{c}, v{r+1}",
                 f"v_cvt_pk_bf16_f32 v{r+1}, v{r+1}, 0", f"v_mov_b32 v{r+2}, 0", f"v_mov_b32 v{r+3}, 0"]
    corr += ["v_sub_f32 v157, 0, v157", f"v_cvt_pk_bf16_f32 v{CX+1}, v157, 0", f"v_lshlrev_b32 v{CX}, 16, v{CX+1}",
             f"v_sub_f32 v{CX}, v157, v{CX}", f"v_cvt_pk_bf16_f32 v{CX}, v157, v{CX}", f"v_mov_b32 v{CX+2}, 0", f"v_mov_b32 v{CX+3}, 0"]
    RW = 20992
    L0 = 2 * SLOT
    LA, GA = 240, 248
    pre = []
    if not isq:
        pre += f"""s_mul_i32 s44, s16, 5
              s_mul_i32 s45, s16, 20
              s_mov_b32 s46, 52429
              s_sub_u32 s47, s18, 4
              s_mul_i32 s48, s47, {13*1024}
              s_add_u32 s48, s48, {WS_KV}
              s_mul_i32 s49, s47, 320
              s_add_u32 s49, s49, {WS_Z}
              s_sub_u32 s49, s49, s48
              s_mul_i32 s50, s16, {RW}
              s_add_u32 s50, s50, {L0}""".split("\n")
        for n in range(7):
            pre += f"""v_add_u32 v184, {64*n}, v1
                  v_mul_lo_u32 v185, v184, s46
                  v_lshrrev_b32 v185, 22, v185
                  v_mul_u32_u24 v186, 80, v185
                  v_sub_u32 v184, v184, v186
                  v_add_u32 v185, s44, v185
                  v_lshrrev_b32 v186, 2, v184
                  v_add_u32 v186, s45, v186
                  v_lshrrev_b32 v187, 3, v185
                  v_min_u32 v187, 1, v187
                  v_lshlrev_b32 v187, 5, v187
                  v_sub_u32 v187, v186, v187
                  v_add_u32 v187, 16, v187
                  v_lshl_add_u32 v187, v185, 6, v187
                  v_and_b32 v184, 3, v184
                  v_lshl_add_u32 v187, v187, 2, v184
                  v_lshlrev_b32 v{LA+n}, 2, v187
                  v_lshrrev_b32 v187, 2, v185
                  v_lshrrev_b32 v188, 4, v186
                  v_lshl_add_u32 v187, v187, 1, v188
                  v_and_b32 v185, 3, v185
                  v_lshl_add_u32 v187, v187, 2, v185
                  v_and_b32 v186, 15, v186
                  v_lshl_add_u32 v187, v187, 4, v186
                  v_lshl_add_u32 v187, v187, 2, v184
                  v_lshlrev_b32 v{GA+n}, 2, v187""".split("\n")
        pre += f"""v_subrev_u32 v184, 16, v1
              v_add_u32 v184, s45, v184
              v_lshlrev_b32 v184, 2, v184
              v_add_u32 v185, 20480, v184
              v_add_u32 v184, s49, v184
              v_cmp_le_u32 s[40:41], 16, v1
              v_cndmask_b32 v{LA+6}, v{LA+6}, v185, s[40:41]
              v_cndmask_b32 v{GA+6}, v{GA+6}, v184, s[40:41]
              v_lshlrev_b32 v190, 10, v97
              v_lshl_add_u32 v190, v96, 4, v190
              v_add_u32 v190, s50, v190
              v_lshlrev_b32 v191, 4, v97
              v_add_u32 v191, s50, v191""".split("\n")
    else:
        pre += f"""v_bfe_u32 v190, v1, 4, 1
                  v_lshlrev_b32 v190, 10, v190
                  v_lshl_add_u32 v190, v97, 8, v190
                  v_and_b32 v191, 15, v1
                  v_lshl_add_u32 v190, v191, 4, v190
                  s_lshl_b32 s48, s17, 1
                  s_lshr_b32 s49, s16, 1
                  s_add_u32 s48, s48, s49
                  s_mul_i32 s48, s48, 20
                  s_mul_i32 s49, s18, 5
                  s_add_u32 s48, s48, s49
                  s_lshl_b32 s48, s48, 2
                  s_and_b32 s49, s16, 1
                  s_lshl_b32 s49, s49, 1
                  s_add_u32 s48, s48, s49
                  s_lshl_b32 s48, s48, 10
                  s_add_u32 s48, s48, {WS_PQ}""".split("\n")
    pre = [x.strip() for x in pre if x.strip()]
    NPRE = 14
    for n in range(40):
        st, j = n // 4, n % 4
        side = []
        if j == 3 and st + 1 < 10:
            a.wait_tok(D[st + 1][1][-1])
            a.i("s_barrier")
        if n + 1 < 40:
            side += reads(n + 1)
        extra = []
        if j == 3 and st + 3 < 10:
            extra = D[st + 3][0][:6]
        if j == 0 and st >= 1 and st + 2 < 10:
            extra = D[st + 2][0][6:]
        if 1 <= n <= NPRE:
            k = (len(pre) + NPRE - 1) // NPRE
            extra = extra + pre[(n - 1) * k:n * k]
        if n == POLL:
            extra = extra + ["buffer_load_dword v118, v114, s[60:63], 0 offen sc1"]
        if n == POLL + 4:
            spin(a, f"L_spin_{role}_{name}", 64, 118, 38, 60, 114)
        if n in (POLL + 5, POLL + 6):
            k = (len(ein) + 1) // 2
            extra = extra + ein[(n - POLL - 5) * k:(n - POLL - 4) * k]
        if n in (36, 37, 38):
            k = (len(corr) + 2) // 3
            extra = extra + corr[(n - 36) * k:(n - 35) * k]
        interleave(a, mms(n), side + extra)
        if n in (3, 19):
            stamp(a)
    stamp(a)
    T = 208

    def cmf(blk):
        d = vr(ACC + blk * 16, 16)
        return mfma32(d, vr(CW + 4 * blk), vr(CX)) if isq else mfma32(d, vr(CX), vr(CW + 4 * blk))

    def phi(blk, hf, dst_is_acc=True):
        R = range(8 * hf, 8 * hf + 8)
        ac = lambda j: ACC + blk * 16 + j
        t = lambda j: T + (j % 8)
        t2 = lambda j: (ac(j) if dst_is_acc else T + 8 + (j % 8))
        rs = lambda j: (SV if isq else SV + j)
        L = []
        for j in R: L.append(f"v_fma_f32 v{t2(j)}, v{ac(j)}, v{rs(j)}, 1.0")
        for j in R: L.append(f"v_fma_f32 v{t(j)}, v{t2(j)}, s42, -s42")
        for j in R: L.append(f"v_exp_f32 v{t(j)}, v{t(j)}")
        for j in R: L.append(f"v_med3_f32 v{t2(j)}, v{t(j)}, v{t2(j)}, 1.0")
        for j in R: L.append(f"v_add_f32 v{t2(j)}, {f32(1e-6)}, v{t2(j)}")
        return L
    if isq:
        for blk in range(5):
            a.i(cmf(blk))
        for blk in range(5):
            for x in phi(blk, 0) + phi(blk, 1):
                a.i(x)
            pk = 224 + (blk % 2) * 8
            for q in range(4):
                dst = pk + (q & 1) * 4 + (q >> 1) * 2
                for jj in range(2):
                    a.i(f"v_cvt_pk_bf16_f32 v{dst+jj}, v{ACC+blk*16+4*q+2*jj}, v{ACC+blk*16+4*q+2*jj+1}")
            a.i(f"s_add_u32 s27, s48, {blk*4096}")
            a.i(f"buffer_store_dwordx4 {vr(pk)}, v190, s[8:11], s27 offen {st_flags}")
            a.i(f"buffer_store_dwordx4 {vr(pk+4)}, v190, s[8:11], s27 offen offset:512 {st_flags}")
        return
    smask(a, 40, 0x0000FFFF0000FFFF)
    P = {0: 136, 1: 144, 2: 192, 3: 200, 4: 224}
    ONES = 232
    for blk in (0, 2, 3, 1, 4):
        a.i(cmf(blk))
    for k in range(4):
        a.i(f"v_mov_b32 v{ONES+k}, 0x3f803f80")

    def fin(blk):
        L = []
        for hf in range(2):
            R = range(8 * hf, 8 * hf + 8)
            ac = lambda j: ACC + blk * 16 + j
            if blk < 2:
                L += phi(blk, hf)
            else:
                if blk == 2:
                    L += phi(blk, hf, False)
                for j in R: L.append(f"v_mul_f32 v{ac(j)}, v{ac(j)}, v{SV+j}")
                if blk == 2:
                    for j in R: L.append(f"v_cndmask_b32 v{ac(j)}, v{ac(j)}, v{T+8+(j % 8)}, s[40:41]")
            for jj in range(4):
                L.append(f"v_cvt_pk_bf16_f32 v{P[blk]+hf*4+jj}, v{ac(8*hf+2*jj)}, v{ac(8*hf+2*jj+1)}")
        return L
    def prod(kb, vb, d):
        return [mfma32(vr(d, 16), vr(P[kb] + u * 4), vr(P[vb] + u * 4) if vb is not None else vr(ONES), "0" if u == 0 else None) for u in range(2)]
    def wr(kb, vb, d):
        L = []
        for qd in range(2 if kb == 2 else 4):
            if vb is None:
                L.append(f"ds_write_b128 v191, {vr(d+4*qd)} offset:{20480 + (8*kb+2*qd)*16}")
            else:
                es = {(0, 2): 0, (0, 3): 32, (1, 3): 0, (1, 4): 32, (2, 4): 32}[(kb, vb)]
                L.append(f"ds_write_b128 v190, {vr(d+4*qd)} offset:{((8*kb+2*qd)*64 + es)*16}")
        return L
    A0, A1, A2, A3, A4 = [ACC + 16 * b for b in range(5)]
    interleave(a, fin(0) + fin(2) + fin(3), [])
    interleave(a, prod(0, 2, A0) + prod(0, 3, A2) + prod(0, None, A3) + prod(2, None, 160), fin(1))
    interleave(a, prod(1, 3, A1) + prod(1, None, 100), fin(4) + wr(0, 2, A0) + wr(0, 3, A2))
    interleave(a, prod(1, 4, A4) + prod(2, 4, A0), wr(1, 3, A1))
    a.i("s_mov_b32 exec_lo, 1"); a.i("s_mov_b32 exec_hi, 1")
    interleave(a, wr(0, None, A3) + wr(2, None, 160) + wr(1, None, 100), [])
    a.i("s_mov_b64 exec, -1")
    interleave(a, wr(1, 4, A4) + wr(2, 4, A0), [])
    for n in range(7):
        a.i(f"v_add_u32 v{136+n}, {L0 + 2*RW}, v{LA+n}")
        a.i(f"v_add_u32 v{144+n}, {L0}, v{LA+n}")
    a.wait_lg0()
    a.i("s_barrier")
    for n in range(7):
        for w in range(4):
            a.i(f"ds_read_b32 v{32+4*n+w}, v{(144 if w < 2 else 136)+n} offset:{(w % 2)*RW}")
    for n in range(7):
        a.i(f"v_add_f32 v{32+4*n}, v{32+4*n}, v{33+4*n}")
        a.i(f"v_add_f32 v{34+4*n}, v{34+4*n}, v{35+4*n}")
        a.i(f"v_add_f32 v{32+4*n}, v{32+4*n}, v{34+4*n}")
        if n == 6:
            a.i("s_mov_b32 exec_hi, 15")
        a.i(f"buffer_atomic_add_f32 v{32+4*n}, v{GA+n}, s[8:11], s48 offen")
    a.i("s_mov_b64 exec, -1")


def row_reduce16(a, regs):
    for sh in (8, 4, 2, 1):
        for r in regs:
            a.i(f"v_add_f32_dpp v{r}, v{r}, v{r} row_ror:{sh} row_mask:0xf bank_mask:0xf")


def p1_aux(a, name, st_flags):
    OOB = 0x7f000000
    a.many(f"""v_lshlrev_b32 v2, 4, v1
              v_mov_b32 v4, 0
              v_mov_b32 v5, 0
              v_mov_b32 v6, 0
              v_mov_b32 v7, 0
              s_lshl_b32 s20, s17, 11
              s_lshl_b32 s21, s16, 9
              s_add_u32 s20, s20, s21
              s_add_u32 s20, s20, {WS_KV}
              s_mov_b64 s[34:35], exec
              s_mov_b32 exec_hi, 0""")
    a.i("buffer_store_dwordx4 v[4:7], v2, s[8:11], s20 offen sc1")
    a.i("s_mov_b64 exec, s[34:35]")
    a.many(f"""s_lshl_b32 s20, s17, 2
              s_add_u32 s20, s20, s16
              s_lshl_b32 s21, s20, 12
              s_add_u32 s21, s21, {WS_WGU + (15*280 + 3)*1024}
              s_cmp_lt_u32 s20, 40
              s_cselect_b32 s21, s21, {OOB}""")
    a.i("buffer_store_dwordx4 v[4:7], v2, s[8:11], s21 offen")
    a.i("s_cmp_ge_u32 s17, 30")
    a.i(f"s_cbranch_scc1 L_aux_stats_{name}")
    snap = (a.vm_n, a.vm_done)
    a.many("""v_lshrrev_b32 v8, 3, v1
              v_and_b32 v9, 7, v1
              s_movk_i32 s20, 3840
              v_mul_lo_u32 v8, v8, s20
              v_lshl_add_u32 v8, v9, 4, v8
              s_mul_i32 s20, s16, 614400
              s_lshl_b32 s21, s17, 7
              s_add_u32 s20, s20, s21
              s_mov_b32 s22, 0x3f80
              s_mov_b32 s23, 0x3f800000""")
    for i in range(20):
        a.i(f"buffer_load_dwordx4 {vr(32+4*i)}, v8, s[56:59], s20 offen")
        a.i("s_add_u32 s20, s20, 30720")
    for k in range(8):
        a.i(f"v_mov_b32 v{16+k}, 0")
    for i in range(20):
        for d in range(4):
            a.i(f"v_dot2_f32_bf16 v{16+2*d}, v{32+4*i+d}, s22, v{16+2*d}")
            a.i(f"v_dot2_f32_bf16 v{17+2*d}, v{32+4*i+d}, s23, v{17+2*d}")
    a.nop(4)
    for k in range(8):
        a.i(f"v_add_f32_dpp v{16+k}, v{16+k}, v{16+k} row_ror:8 row_mask:0xf bank_mask:0xf")
    for sw in ("v_permlane16_swap_b32", "v_permlane32_swap_b32"):
        for k in range(8): a.i(f"v_mov_b32 v{24+k}, v{16+k}")
        for k in range(8): a.i(f"{sw} v{16+k}, v{24+k}")
        for k in range(8): a.i(f"v_add_f32 v{16+k}, v{16+k}, v{24+k}")
    a.many("""v_lshlrev_b32 v10, 5, v9
              s_lshl_b32 s20, s16, 8
              v_add_u32 v10, s20, v10
              ds_write_b128 v10, v[16:19]
              ds_write_b128 v10, v[20:23] offset:16""")
    a.wait_lg0()
    a.i("s_barrier")
    a.i("v_lshlrev_b32 v10, 2, v1")
    for w in range(4):
        a.i(f"ds_read_b32 v{16+w}, v10 offset:{256*w}")
    a.many(f"""v_add_f32 v16, v16, v17
              v_add_f32 v18, v18, v19
              v_add_f32 v16, v16, v18
              s_lshl_b32 s20, s17, 8
              s_add_u32 s20, s20, {WS_CS1}
              s_cmp_eq_u32 s16, 0
              s_cselect_b32 s20, s20, {OOB}""")
    a.i("buffer_store_dword v16, v10, s[8:11], s20 offen sc1")
    a.wait_all()
    a.i(f"s_branch L_aux_sig_{name}")
    a.label(f"L_aux_stats_{name}")
    a.fence()
    a.many(f"""v_lshrrev_b32 v8, 4, v1
              v_and_b32 v9, 15, v1
              s_movk_i32 s20, 1280
              v_mul_lo_u32 v10, v8, s20
              v_lshl_add_u32 v10, v9, 4, v10
              s_sub_u32 s21, s17, 30
              s_lshl_b32 s21, s21, 2
              s_add_u32 s21, s21, s16
              s_mul_i32 s20, s21, 20480
              s_mov_b32 s22, 0x3f803f80""")
    for i in range(4):
        for m in range(5):
            a.i(f"buffer_load_dwordx4 {vr(32+20*i+4*m)}, v10, s[12:15], s20 offen offset:{256*m}")
        a.i("s_add_u32 s20, s20, 5120")
    for k in range(8):
        a.i(f"v_mov_b32 v{16+k}, 0")
    for i in range(4):
        for d in range(20):
            r = 32 + 20 * i + d
            a.i(f"v_dot2_f32_bf16 v{16+2*i}, v{r}, s22, v{16+2*i}")
            a.i(f"v_dot2_f32_bf16 v{17+2*i}, v{r}, v{r}, v{17+2*i}")
    a.nop(4)
    row_reduce16(a, range(16, 24))
    for i in range(4):
        s_, q_ = 16 + 2 * i, 17 + 2 * i
        a.many(f"""v_mul_f32 v{q_}, {f32(1/640)}, v{q_}
                  v_mul_f32 v24, {f32(1/640)}, v{s_}
                  v_fma_f32 v{s_}, -v24, v24, v{q_}
                  v_max_f32 v{s_}, 0, v{s_}
                  v_add_f32 v{s_}, {f32(1e-5)}, v{s_}
                  v_rsq_f32 v{s_}, v{s_}
                  v_mov_b32 v{q_}, v24""")
    a.many(f"""v_lshlrev_b32 v10, 2, v8
              s_lshl_b32 s20, s21, 6
              s_add_u32 s20, s20, {WS_ST1}
              s_cmp_lt_u32 s17, 62
              s_cselect_b32 s20, s20, {OOB}
              s_add_u32 s21, s20, 8192
              s_mov_b32 exec_lo, 0x00010001
              s_mov_b32 exec_hi, 0x00010001""")
    for i in range(4):
        a.i(f"buffer_store_dword v{16+2*i}, v10, s[8:11], s20 offen offset:{16*i} sc1")
        a.i(f"buffer_store_dword v{17+2*i}, v10, s[8:11], s21 offen offset:{16*i} sc1")
    a.i("s_mov_b64 exec, s[34:35]")
    a.i("s_barrier")
    a.wait_all()
    a.label(f"L_aux_sig_{name}")
    a.fence()
    stamp(a)
    a.i("s_barrier")
    a.many("""v_mov_b32 v4, 1
              v_mov_b32 v5, 0
              v_cmp_eq_u32 vcc, 0, v0
              s_and_saveexec_b64 s[34:35], vcc""")
    a.i(f"s_cbranch_execz L_aux_ns_{name}")
    a.raw("buffer_atomic_add v4, v5, s[60:63], 0 offen sc1")
    a.raw("s_waitcnt vmcnt(0)")
    a.label(f"L_aux_ns_{name}")
    a.i("s_mov_b64 exec, -1")
    a.fence()
    a.many("""s_lshl_b32 s18, s17, 2
              s_add_u32 s18, s18, s16
              s_mul_i32 s19, s16, 40960""")
    a.many("""v_lshrrev_b32 v8, 3, v1
              v_and_b32 v9, 7, v1
              v_bfe_u32 v10, v1, 4, 2
              v_lshlrev_b32 v10, 1, v10
              v_xor_b32 v9, v9, v10
              v_xor_b32 v10, 4, v9
              v_mul_u32_u24 v11, 1280, v8
              v_lshl_add_u32 v11, v9, 4, v11
              v_mul_u32_u24 v12, 3456, v8
              v_lshl_add_u32 v13, v10, 4, v12
              v_lshl_add_u32 v12, v9, 4, v12""")
    a.many("""v_lshrrev_b32 v14, 4, v1
              v_bfe_u32 v15, v1, 2, 2
              v_and_b32 v16, 3, v1
              v_lshlrev_b32 v16, 3, v16
              v_add_u32 v16, s19, v16
              v_lshl_add_u32 v17, v14, 2, v15
              v_lshrrev_b32 v18, 1, v14
              v_and_b32 v19, 1, v14
              v_lshl_add_u32 v20, v19, 2, v15
              v_lshl_add_u32 v20, v18, 4, v20
              v_lshl_add_u32 v21, v18, 2, v15""")
    for k, (rowreg, base) in enumerate([(17, 24), (20, 28), (21, 32)]):
        a.i(f"v_bfe_u32 v22, v{rowreg}, 1, 2")
        if k == 2:
            a.i("v_lshlrev_b32 v23, 1, v19")
            a.i("v_xor_b32 v22, v22, v23")
        a.i(f"v_lshl_add_u32 v23, v{rowreg}, 7, v16")
        if k == 2:
            a.i("v_lshl_add_u32 v23, v19, 12, v23")
        for nb in range(4):
            a.i(f"v_xor_b32 v36, {nb}, v22")
            a.i(f"v_lshl_add_u32 v{base+nb}, v36, 5, v23")
    tasks = [("gu", 0, 0), ("gu", 256, 8192), ("wd", 0, 16384), ("wd", 256, 20480), ("wo", 0, 24576), ("gu", 512, 28672), ("wd", 512, 36864)]
    SB = 48
    toks = {}

    def decode(kind, add):
        n, ncg, shift = {"gu": (540, 27, 0), "wd": (540, 10, 228), "wo": (200, 10, 28)}[kind]
        a.i(f"s_add_u32 s24, s18, {256 - shift}")
        a.i("s_and_b32 s24, s24, 255")
        a.i(f"s_add_u32 s24, s24, {add}")
        a.i(f"s_mul_hi_u32 s26, s24, {(1 << 32)//ncg + 1}")
        a.i(f"s_mul_i32 s25, s26, {ncg}")
        a.i("s_sub_u32 s25, s24, s25")
        a.i(f"s_cmp_lt_u32 s24, {n}")
        a.i(f"s_cselect_b32 s27, 0, {OOB}")
    for ti, (kind, add, lo) in enumerate(tasks):
        decode(kind, add)
        stride = 3456 if kind == "gu" else 1280
        a.i(f"s_mul_i32 s28, s26, {32*stride}")
        a.i("s_lshl_b32 s29, s25, 7")
        a.i("s_add_u32 s28, s28, s29")
        a.i("s_add_u32 s28, s28, s27")
        for img in range(2 if kind == "gu" else 1):
            sr = {"gu": (68, 72)[img], "wd": 44, "wo": 64}[kind]
            vo = {"gu": (12, 13)[img], "wd": 11, "wo": 11}[kind]
            for i in range(4):
                a.i(f"s_add_u32 s30, s19, {lo + img*4096 + i*1024}")
                a.i("s_mov_b32 m0, s30")
                a.i(f"s_add_u32 s31, s28, {8*i*stride}")
                tk = Tok(); toks[ti] = tk
                a.i(f"buffer_load_dwordx4 v{vo}, s[{sr}:{sr+3}], s31 offen lds", tk)
    a.many(f"""s_add_u32 s24, s18, {256-28}
              s_and_b32 s24, s24, 255
              s_sub_u32 s24, s24, 200
              s_mul_i32 s33, s24, 12
              s_cmp_lt_u32 s24, 56
              s_cselect_b32 s33, s33, 0x10000
              v_and_b32 v37, 15, v1
              v_mul_u32_u24 v38, 1280, v14
              v_lshl_add_u32 v38, v37, 4, v38
              s_mul_i32 s32, s33, 1280""")
    for i in range(3):
        for m in range(5):
            a.i(f"buffer_load_dwordx4 {vr(128+20*i+4*m)}, v38, s[64:67], s32 offen offset:{256*m}")
        a.i("s_add_u32 s32, s32, 5120")
    R0 = 64
    for ti, (kind, add, lo) in enumerate(tasks):
        decode(kind, add)
        a.wait_tok(toks[ti])
        if kind == "gu":
            for kbl in range(2):
                for nb in range(4):
                    r = R0 + (kbl * 4 + nb) * 4
                    for u in range(2):
                        a.i(f"ds_read_b64_tr_b16 {vr(r+2*u, 2)}, v{32+nb} offset:{lo + (16*kbl+8*u)*128}")
            for nb in range(4):
                a.many(f"""s_lshl_b32 s28, s25, 2
                          s_add_u32 s28, s28, {nb}
                          s_mul_hi_u32 s29, s28, {(1 << 32)//7 + 1}
                          s_mul_i32 s30, s29, 7
                          s_sub_u32 s28, s28, s30
                          s_mul_i32 s29, s29, 280
                          s_lshl_b32 s30, s26, 1
                          s_mul_i32 s31, s30, {G1}
                          s_add_u32 s31, s31, s28
                          s_mul_i32 s36, s28, 40
                          s_add_u32 s36, s36, s30
                          s_cmp_lt_u32 s28, {G1}
                          s_cselect_b32 s31, s31, s36
                          s_cselect_b32 s36, {G1}, 1
                          s_lshl_b32 s36, s36, 10
                          s_add_u32 s29, s29, s31
                          s_lshl_b32 s29, s29, 10
                          s_add_u32 s29, s29, {WS_WGU}
                          s_add_u32 s29, s29, s27
                          s_add_u32 s36, s36, s29""")
                a.i(f"buffer_store_dwordx4 {vr(R0+nb*4)}, v2, s[8:11], s29 offen {st_flags}")
                a.i(f"buffer_store_dwordx4 {vr(R0+(4+nb)*4)}, v2, s[8:11], s36 offen {st_flags}")
        else:
            nks, base, ar, us = (54, WS_WD, 28, 8) if kind == "wd" else (20, WS_WO, 24, 16)
            for nb in range(4):
                r = R0 + 32 + nb * 4
                for u in range(2):
                    a.i(f"ds_read_b64_tr_b16 {vr(r+2*u, 2)}, v{ar+nb} offset:{lo + us*u*128}")
            for nb in range(4):
                a.many(f"""s_lshl_b32 s28, s25, 2
                          s_add_u32 s28, s28, {nb}
                          s_mul_hi_u32 s29, s28, {(1 << 32)//5 + 1}
                          s_mul_i32 s30, s29, 5
                          s_sub_u32 s28, s28, s30
                          s_mul_i32 s29, s29, {nks}
                          s_add_u32 s29, s29, s26
                          s_mul_i32 s29, s29, 5
                          s_add_u32 s29, s29, s28
                          s_lshl_b32 s29, s29, 10
                          s_add_u32 s29, s29, {base}
                          s_add_u32 s29, s29, s27""")
                a.i(f"buffer_store_dwordx4 {vr(R0+32+nb*4)}, v2, s[8:11], s29 offen {st_flags}")
    a.i("s_mov_b32 s22, 0x3f803f80")
    for i in range(3):
        a.i(f"v_mov_b32 v{40+i}, 0")
    for i in range(3):
        for d in range(20):
            a.i(f"v_dot2_f32_bf16 v{40+i}, v{128+20*i+d}, s22, v{40+i}")
    a.nop(4)
    row_reduce16(a, range(40, 43))
    for i in range(3):
        a.many(f"""v_mul_f32 v{40+i}, {f32(1/640)}, v{40+i}
                  v_cvt_pk_bf16_f32 v{40+i}, v{40+i}, v{40+i}
                  v_add_u32 v44, s33, v14
                  v_add_u32 v44, {4*i}, v44
                  v_lshrrev_b32 v45, 5, v44
                  v_lshlrev_b32 v45, 10, v45
                  v_bfe_u32 v46, v44, 2, 2
                  v_lshl_add_u32 v45, v46, 8, v45
                  v_lshl_add_u32 v45, v37, 4, v45
                  v_bfe_u32 v46, v44, 4, 1
                  v_lshl_add_u32 v45, v46, 3, v45
                  v_and_b32 v46, 3, v44
                  v_lshl_add_u32 v45, v46, 1, v45
                  v_cmp_gt_u32 vcc, 640, v44
                  v_mov_b32 v46, {OOB}
                  v_cndmask_b32 v45, v46, v45, vcc
                  s_mov_b32 s20, {WS_RM}""")
        a.i(f"buffer_store_short v{40+i}, v45, s[8:11], s20 offen {st_flags}")


def gen_p1(kidx, name="p1_kernel", st_flags="", rot=True, dbg=""):
    a = Asm()
    prologue(a, name, 256, [(4, KA_WS), (6, KA_X), (20, KA_WQKV), (22, KA_DBG), (24, KA_WO), (26, KA_WG), (28, KA_WU), (30, KA_WD)])
    a.wait_lg0()
    srd(a, 8, 4, WS_BYTES)
    srd(a, 12, 6, X_BYTES)
    srd(a, 56, 20, WQKV_BYTES)
    srd(a, 60, 22, 256)
    srd(a, 64, 24, 640 * 1280)
    srd(a, 68, 26, 640 * 3456)
    srd(a, 72, 28, 640 * 3456)
    srd(a, 44, 30, 1728 * 1280)
    a.many("""s_and_b32 s19, s2, 7
              s_lshr_b32 s20, s2, 3
              s_cmp_lt_u32 s20, 8""")
    a.i(f"s_cbranch_scc0 L_gemm_{name}")
    a.many("""s_lshl_b32 s17, s19, 3
              s_add_u32 s17, s17, s20""")
    ns = getattr(a, "nstamp", 0)
    p1_aux(a, name, st_flags)
    a.i(f"s_branch L_fin_{name}")
    a.label(f"L_gemm_{name}")
    a.reset_state(); a.fence()
    a.nstamp = ns
    a.many("""s_sub_u32 s20, s20, 8
              s_mul_i32 s21, s20, 43
              s_lshr_b32 s21, s21, 8
              s_mul_i32 s22, s21, 6
              s_sub_u32 s22, s20, s22
              s_lshr_b32 s17, s19, 1
              s_lshl_b32 s17, s17, 2
              s_add_u32 s17, s17, s21
              s_and_b32 s23, s19, 1
              s_mul_i32 s29, s22, 3
              s_mul_i32 s24, s21, 7
              s_add_u32 s29, s29, s24
              s_mul_i32 s24, s29, 26
              s_lshr_b32 s24, s24, 8
              s_mul_i32 s24, s24, 10
              s_sub_u32 s29, s29, s24""")
    if not rot:
        a.i("s_mov_b32 s29, 0")
    a.i("s_cmp_lt_u32 s22, 2")
    a.i(f"s_cbranch_scc0 L_kv_{name}")
    a.many("""s_lshl_b32 s18, s23, 1
              s_add_u32 s18, s18, s22""")
    p1_gemm(a, "q", name, st_flags, rot, dbg)
    a.i(f"s_branch L_fin_{name}")
    a.label(f"L_kv_{name}")
    a.reset_state(); a.fence()
    a.nstamp = ns
    a.many("""s_lshl_b32 s18, s23, 2
              s_add_u32 s18, s18, s22
              s_add_u32 s18, s18, 2""")
    p1_gemm(a, "kv", name, st_flags, rot, dbg)
    a.label(f"L_fin_{name}")
    if gen.STAMPS:
        a.raw("s_waitcnt vmcnt(0) lgkmcnt(0)")
        a.reset_state(); a.fence()
    a.nstamp = 6
    epilogue(a, name, kidx, 256)
    print(name, "instrs", a.ninstr, "nops", a.nops)
    return name, kernel_wrap(name, a.text(), 256, 64), 256, 256, 163840
```

```python
import gen
from gen import *
from asmgen import regs_of


P4_ROT = False
P2_ROT = True
SYNC_FINE = -1
POLL_SLEEP = 2
def signal_and_wait(a, name, phase, between=None):
    a.wait_vm0()
    a.wait_lg0()
    if SYNC_FINE == phase: stamp(a)
    a.i("s_barrier")
    if SYNC_FINE == phase: stamp(a)
    lbl = f"L_sy{phase}_{name}"
    a.i("s_cmp_lg_u32 s16, 0")
    a.i(f"s_cbranch_scc1 {lbl}_b")
    a.raw(f"s_mov_b32 s20, {WS_FLAG + phase*2048}")
    a.raw("v_mov_b32 v4, s63")
    a.raw("v_mov_b32 v5, 1")
    a.raw("s_mov_b64 exec, 1")
    a.raw("buffer_store_dword v5, v4, s[8:11], s20 offen sc1")
    a.raw("s_mov_b64 exec, -1")
    a.raw("v_and_b32 v4, 15, v1")
    a.raw("v_lshlrev_b32 v4, 2, v4")
    a.raw("v_add_u32 v4, s64, v4")
    a.raw("s_mov_b32 s21, 0")
    for k in range(3):
        a.raw(f"buffer_load_dword v{5+k}, v4, s[8:11], s20 offen sc1")
        a.raw(f"s_sleep {POLL_SLEEP}")
    a.label(f"{lbl}_p")
    for k in range(4):
        a.raw(f"buffer_load_dword v{5+(k+3) % 4}, v4, s[8:11], s20 offen sc1")
        a.raw("s_waitcnt vmcnt(3)")
        a.raw(f"v_cmp_ne_u32 vcc, 1, v{5+k}")
        a.raw("s_nop 1")
        a.raw(f"s_cbranch_vccz {lbl}_w")
        a.raw(f"s_sleep {POLL_SLEEP}")
    a.raw("s_add_u32 s21, s21, 1")
    a.raw("s_cmp_lt_u32 s21, 0x20000")
    a.raw(f"s_cbranch_scc1 {lbl}_p")
    a.label(f"{lbl}_w")
    if SYNC_FINE == phase:
        stamp(a); a.raw("s_mov_b32 s34, s21")
    a.raw("s_barrier")
    if SYNC_FINE == phase: stamp(a)
    a.raw("s_waitcnt vmcnt(0)")
    n0 = len(a.lines)
    a.fence()
    if between:
        between()
    copy = a.lines[n0:]
    a.raw(f"s_branch {lbl}_j")
    a.label(f"{lbl}_b")
    a.lines += copy
    a.raw("s_barrier")
    a.label(f"{lbl}_j")
    a.fence()


def touches(a, sbase, nl_wave, vtmp, dst, add=0):
    L = []
    n = (nl_wave + 63) // 64
    for i in range(n):
        def f(i=i):
            if (i + 1) * 64 > nl_wave:
                a.i(f"v_min_u32 v{vtmp}, {nl_wave-1-64*i}, v1")
                a.i(f"v_lshlrev_b32 v{vtmp}, 7, v{vtmp}")
            else:
                a.i(f"v_lshlrev_b32 v{vtmp}, 7, v1")
            a.i(f"s_add_u32 s35, s{sbase}, {add + 8192*i}")
            a.i(f"buffer_load_dword v{dst}, v{vtmp}, s[8:11], s35 offen")
        L.append(f)
    return L


def p3_dma(a, blk, vlane):
    L = []
    toks = []
    for i in range(10):
        if i % 4 == 0:
            def setm(i=i):
                a.i(f"s_add_u32 s68, s67, {(blk % 4) * 40960 + i * 1024}")
                a.i("s_mov_b32 m0, s68")
                a.i(f"s_add_u32 s69, {'s66' if blk < 4 else 's59'}, {blk * 40960 + i * 1024}")
            L.append(setm)
        tk = Tok(); toks.append(tk)
        L.append((f"buffer_load_dwordx4 v{vlane}, s[8:11], s69 offen offset:{(i % 4) * 1024} lds", tk))
    return L, toks


def red_setup(a, stride, lds0, vbase):
    for rp in (1, 2, 3):
        a.i(f"s_add_u32 s20, s16, {rp}")
        a.i("s_and_b32 s20, s20, 3")
        a.i(f"s_mul_i32 s20, s20, {3*stride}")
        a.i(f"s_add_u32 s20, s20, {lds0 + (rp-1)*stride}")
        a.i(f"v_add_u32 v{vbase+rp-1}, s20, v2")
    a.i(f"s_mul_i32 s20, s16, {3*stride}")
    a.i(f"s_add_u32 s20, s20, {lds0}")
    a.i(f"v_add_u32 v{vbase+3}, s20, v2")


def mix(x, y):
    out = []
    k = 0
    for i, e in enumerate(x):
        out.append(e)
        while k < len(y) and (k + 1) * len(x) <= (i + 1) * len(y):
            out.append(y[k]); k += 1
    return out + y[k:]


def body_p2(a, pre_dma, tch0, tch, tch2):
    SF = "sc1"
    a.many(f"""s_add_u32 s19, s62, s18
              s_mul_i32 s19, s19, {1 if P2_ROT else 0}
              s_add_u32 s19, s19, s16
              s_and_b32 s19, s19, 3
              v_lshlrev_b32 v2, 4, v1
              v_add_u32 v3, 0x1000, v2
              v_lshrrev_b32 v8, 4, v1
              v_lshlrev_b32 v9, 4, v8""")
    a.many(f"""s_mul_i32 s22, s19, 5
              s_mul_i32 s27, s19, {26*1024}
              s_add_u32 s27, s27, {WS_KV}
              s_mul_i32 s28, s19, 640
              s_add_u32 s28, s28, {WS_Z}""")
    a.wait_lg0()
    srd(a, 8, 4, WS_BYTES)
    KVR, ZR = 16, 120
    KF, ZF = 160, 232
    NUM = [16, 64]; OF = [112, 132]; TT = 152
    ACC, WOF, PQF = 0, 96, 216
    ORDER = [1, 2, 3, 0]

    def z_loads(gq):
        return [f"buffer_load_dwordx4 {vr(ZR+ab*4)}, v9, s[8:11], s28 offen offset:{ab*64}" for ab in range(5 * gq, 5 * gq + 5)]

    def kv_loads(gq):
        L = []
        for i in range(13 * gq, 13 * gq + 13):
            if i % 8 == 0 or i == 13 * gq:
                L.append(f"s_add_u32 s29, s27, {(i // 8) * 8192}")
            L.append(f"buffer_load_dwordx4 {vr(KVR+i*4)}, {'v2' if i % 8 < 4 else 'v3'}, s[8:11], s29 offen offset:{(i % 4)*1024}")
        return L
    interleave(a, tch0 + z_loads(0) + kv_loads(0), [])
    srd(a, 12, 6, OUT_BYTES)
    srd(a, 96, 52, OUT_BYTES)
    for k, rp in enumerate(ORDER):
        a.i(f"s_add_u32 s23, s16, {rp}")
        a.i("s_and_b32 s23, s23, 3")
        a.i("s_lshl_b32 s23, s23, 10")
        a.i(f"v_add_u32 v{4+k}, s23, v2")
    a.many(f"""s_mul_i32 s24, s17, 20
              s_add_u32 s24, s24, s22
              s_lshl_b32 s24, s24, 12
              s_add_u32 s24, s24, {WS_PQ}
              s_mul_i32 s25, s18, 20
              s_add_u32 s25, s25, s22
              s_mul_i32 s25, s25, 5120
              s_add_u32 s25, s25, {WS_WO}
              s_lshl_b32 s26, s22, 10
              s_add_u32 s26, s26, {WS_RM}""")

    def pq_loads(k):
        L = []
        for j in range(5):
            L.append(f"s_add_u32 s29, s24, {j*4096}")
            L.append(f"buffer_load_dwordx4 {vr(PQF+(k % 2)*20+j*4, 4, 'a')}, v{4+k}, s[8:11], s29 offen")
        return L

    def wo_loads(j):
        L = [f"s_add_u32 s30, s25, {j*5120}"]
        for b in range(5):
            L.append(f"buffer_load_dwordx4 {vr(WOF+(j*6+b)*4, 4, 'a')}, {'v2' if b < 4 else 'v3'}, s[8:11], s30 offen offset:{(b % 4)*1024}")
        L.append(f"buffer_load_dwordx4 {vr(WOF+(j*6+5)*4, 4, 'a')}, {'v2' if j < 4 else 'v3'}, s[8:11], s26 offen offset:{(j % 4)*1024}")
        return L
    interleave(a, pq_loads(0) + z_loads(1) + kv_loads(1) + pq_loads(1), [])
    for ap in range(5):
        m = 0
        for l in range(64):
            if (16 * ap + 4 * (l >> 4)) // 20 == (l & 3):
                m |= 1 << l
        smask(a, 40 + 2 * ap, m)
    smask(a, 50, 0xFFFFFFFFFFFF0000); smask(a, 52, 0xFFFFFFFF00000000); smask(a, 54, 0xFFFF000000000000)
    if P2_FINE: stamp(a)
    conv = [[], []]
    zf = {}
    for zb in range(2):
        for j in ([0, 1, 2] if zb == 0 else [2, 3, 4]):
            r = ZF + len(zf) * 4
            zf[(zb, j)] = r
            for h in range(2):
                ab = 2 * j + h
                if ab // 5 == zb:
                    for jj in range(2):
                        conv[zb].append(f"v_cvt_pk_bf16_f32 v{r+2*h+jj}, v{ZR+ab*4+2*jj}, v{ZR+ab*4+2*jj+1}")
                    for jj in range(2):
                        conv[zb].append(f"v_cndmask_b32 v{r+2*h+jj}, 0, v{r+2*h+jj}, s[{40+2*(ab % 5)}:{41+2*(ab % 5)}]")
                else:
                    conv[zb] += [f"v_mov_b32 v{r+2*h}, 0", f"v_mov_b32 v{r+2*h+1}, 0"]
    kf = {}
    for b in range(10):
        for j in range(5):
            val = [(ab // 5 == b // 5 and abs(ab - b) <= 1) for ab in (2 * j, 2 * j + 1)]
            if not any(val):
                continue
            r = KF + len(kf) * 4
            kf[(b, j)] = r
            for h in range(2):
                ab = 2 * j + h
                if val[h]:
                    src = KVR + (13 * (b // 5) + 2 * (ab % 5) + (b % 5)) * 4
                    for jj in range(2):
                        conv[b // 5].append(f"v_cvt_pk_bf16_f32 v{r+2*h+jj}, v{src+2*jj}, v{src+2*jj+1}")
                else:
                    conv[b // 5] += [f"v_mov_b32 v{r+2*h}, 0", f"v_mov_b32 v{r+2*h+1}, 0"]
    wl = sum([wo_loads(j) for j in range(5)], [])

    def o_mfma(k):
        N = NUM[k % 2]
        L = []
        pq = lambda j: vr(PQF + (k % 2) * 20 + j * 4, 4, 'a')
        for zb in range(2):
            first = True
            for (z2, j), r in zf.items():
                if z2 == zb:
                    L.append(mfma(vr(N + 40 + zb * 4), vr(r), pq(j), "0" if first else None)); first = False
            for b in range(5 * zb, 5 * zb + 5):
                first = True
                for (b2, j), r in kf.items():
                    if b2 == b:
                        L.append(mfma(vr(N + b * 4), vr(r), pq(j), "0" if first else None)); first = False
        return L

    def o_valu(k):
        N = NUM[k % 2]; O = OF[k % 2]
        L = []
        for gq in range(2):
            d = N + 40 + gq * 4
            for h in range(4):
                L.append(f"v_add_f32 v{d+h}, {f32(1e-6)}, v{d+h}")
            for h in range(4):
                L.append(f"v_rcp_f32 v{d+h}, v{d+h}")
            for q in range(3):
                L.append(f"v_cndmask_b32 v{TT+gq*3+q}, v{d+q}, v{d+q+1}, s[{50+2*q}:{51+2*q}]")
            for b in range(5 * gq, 5 * gq + 5):
                bp = b % 5
                fr = d if bp == 0 else (d + 3 if bp == 4 else TT + gq * 3 + bp - 1)
                for jj in range(4):
                    L.append(f"v_mul_f32 v{N+b*4+jj}, v{N+b*4+jj}, v{fr}")
                for jj in range(2):
                    L.append(f"v_cvt_pk_bf16_f32 v{O+b*2+jj}, v{N+b*4+2*jj}, v{N+b*4+2*jj+1}")
        return L

    def main_mfma(k):
        O = OF[k % 2]; rp = ORDER[k]
        L = []
        for j in range(5):
            for b in range(6):
                L.append(mfma(vr(ACC + (rp * 6 + b) * 4, 4, 'a'), vr(WOF + (j * 6 + b) * 4, 4, 'a'), vr(O + j * 4), "0" if j == 0 else None))
        return L

    def red_wr(k):
        rp = ORDER[k]
        L = [f"ds_write_b128 v{10+rp-1}, {vr(ACC+(rp*6+b)*4, 4, 'a')} offset:{b*1024}" for b in range(5)]
        def mean_wr():
            a.i("s_mov_b64 exec, 0xffff")
            a.i(f"ds_write_b128 v{10+rp-1}, {vr(ACC+(rp*6+5)*4, 4, 'a')} offset:5120")
            a.i("s_mov_b64 exec, -1")
        return L + [mean_wr]
    interleave(a, conv[0] + conv[1], wl[:14])
    if P2_FINE: stamp(a)
    red_setup(a, 5376, 81920, 10)
    a.i("s_mov_b32 s58, s20")
    interleave(a, o_mfma(0), wl[14:24])
    interleave(a, o_mfma(1), mix(o_valu(0)[:44], wl[24:]))
    interleave(a, [], mix(o_valu(0)[44:], pq_loads(2)))
    if P2_FINE: stamp(a)
    xs = f"""s_lshl_b32 s31, s17, 2
              s_add_u32 s31, s31, s16
              s_mul_i32 s32, s31, 20480
              s_mul_i32 s33, s18, 160
              s_add_u32 s32, s32, s33
              s_lshl_b32 s33, s31, 6
              s_add_u32 s33, s33, {WS_ST1 + 8192}
              s_mul_i32 s34, s16, 3072
              s_add_u32 s34, s34, 146432
              s_mov_b32 m0, s34
              s_movk_i32 s20, 0x199a
              v_and_b32 v14, 15, v1
              v_lshlrev_b32 v9, 2, v14""".split("\n")
    xtok = []
    for i in range(3):
        xs += [f"v_add_u32 v15, {64*i}, v1", "v_mul_u32_u24 v158, s20, v15", "v_lshrrev_b32 v158, 16, v158",
               f"v_mul_u32_u24 v158, {1280-160}, v158", "v_lshl_add_u32 v15, v15, 4, v158"]
        if i:
            xs.append(f"v_subrev_u32 v15, {1024*i}, v15")
        tk = Tok(); xtok.append(tk)
        xs.append((f"buffer_load_dwordx4 v15, s[12:15], s32 offen offset:{1024*i} lds", tk))
    xs.append("buffer_load_dword v159, v9, s[8:11], s33 offen")
    xs = [x.strip() if isinstance(x, str) else x for x in xs]
    interleave(a, main_mfma(0), mix(o_valu(1)[:60], pq_loads(3)))
    interleave(a, o_mfma(2), o_valu(1)[60:] + red_wr(0) + xs)
    interleave(a, main_mfma(1), mix(o_valu(2)[:60], pre_dma[:10]))
    interleave(a, o_mfma(3), mix(o_valu(2)[60:] + red_wr(1), pre_dma[10:17]))
    if P2_FINE: stamp(a)
    XR = 160
    xl = [f"v_mul_u32_u24 v15, 160, v14", "v_lshl_add_u32 v15, v8, 3, v15", "v_add_u32 v15, s34, v15"]
    xl += [(f"ds_read_b64 {vr(XR+2*b, 2)}, v15 offset:{b*32}", None, xtok) for b in range(5)]
    xl.append(f"v_mov_b32 v{XR+10}, v159")
    interleave(a, main_mfma(2), mix(o_valu(3)[:60], pre_dma[17:]))
    interleave(a, [], o_valu(3)[60:] + red_wr(2) + tch2 + xl)
    a.wait_lg0()
    a.i("s_barrier")
    if P2_FINE: stamp(a)
    PS = 176
    side = []
    side += ["v_lshlrev_b32 v7, 4, v14", "v_add_u32 v7, s58, v7"]
    for q in range(3):
        side.append(f"ds_read_b32 v{76+q*4}, v7 offset:{q*5376+5120}")
    for b in range(5):
        for q in range(3):
            side.append(f"ds_read_b128 {vr(16+(b*3+q)*4)}, v13 offset:{q*5376+b*1024}")
    for b in (5, 0, 1, 2, 3, 4):
        for j in range(4 if b < 5 else 1):
            side.append(f"v_add_f32 v{PS+b*4+j}, v{16+b*12+j}, v{16+b*12+4+j}")
            side.append(f"v_add_f32 v{PS+b*4+j}, v{PS+b*4+j}, v{16+b*12+8+j}")
        if b == 5:
            side.append(f"v_add_f32 v{XR+10}, v{XR+10}, v{PS+20}")
    for b in range(5):
        for jj in range(2):
            h = XR + b * 2 + jj
            side.append(f"v_lshlrev_b32 v4, 16, v{h}")
            side.append(f"v_and_b32 v5, 0xffff0000, v{h}")
            side.append(f"v_add_f32 v{PS+b*4+2*jj}, v{PS+b*4+2*jj}, v4")
            side.append(f"v_add_f32 v{PS+b*4+2*jj+1}, v{PS+b*4+2*jj+1}, v5")
    side += f"""v_bfe_u32 v4, v1, 4, 1
              v_lshlrev_b32 v4, 9, v4
              v_lshl_add_u32 v4, v14, 4, v4
              v_lshrrev_b32 v6, 5, v1
              v_lshl_add_u32 v5, v6, 3, v4
              v_lshl_add_u32 v4, v6, 10, v4
              s_lshl_b32 s26, s17, 1
              s_lshr_b32 s27, s16, 1
              s_add_u32 s26, s26, s27
              s_mul_i32 s26, s26, 40
              s_mul_i32 s27, s18, 5
              s_add_u32 s26, s26, s27
              s_lshl_b32 s26, s26, 10
              s_and_b32 s27, s16, 1
              s_lshl_b32 s27, s27, 8
              s_add_u32 s27, s27, s26
              s_add_u32 s27, s27, {WS_H}
              s_add_u32 s26, s27, 4096
              v_lshlrev_b32 v6, 5, v14
              s_lshl_b32 s28, s31, 9
              s_lshl_b32 s29, s18, 2
              s_add_u32 s28, s28, s29
              s_add_u32 s28, s28, {WS_ST2}
              s_lshl_b32 s29, s31, 6
              s_add_u32 s29, s29, {WS_M2}""".split("\n")
    interleave(a, main_mfma(3), tch[2:] + [x.strip() for x in side])
    if P2_FINE: stamp(a)
    OUT = 16
    a.i(f"v_accvgpr_read_b32 v7, a{ACC+20}")
    for k in range(20):
        a.i(f"v_accvgpr_read_b32 v{OUT+k}, a{ACC+k}")
    a.i(f"v_add_f32 v{XR+10}, v{XR+10}, v7")
    for k in range(20):
        a.i(f"v_add_f32 v{OUT+k}, v{OUT+k}, v{PS+k}")
    for k in range(20):
        a.i(f"v_sub_f32 v{OUT+k}, v{OUT+k}, v{XR+10}")
    PK = 200
    for b in range(5):
        for jj in range(2):
            a.i(f"v_cvt_pk_bf16_f32 v{PK+b*2+jj}, v{OUT+b*4+2*jj}, v{OUT+b*4+2*jj+1}")
    for p in range(2):
        r = PK + p * 4
        a.i(f"v_permlane32_swap_b32 v{r}, v{r+2}")
        a.i(f"v_permlane32_swap_b32 v{r+1}, v{r+3}")
        a.i(f"buffer_store_dwordx4 {vr(r)}, v4, s[8:11], s27 offen offset:{p*2048} {SF}")
    a.i(f"buffer_store_dwordx2 {vr(PK+8, 2)}, v5, s[8:11], s26 offen {SF}")
    a.i(f"v_mul_f32 v14, v{OUT}, v{OUT}")
    a.i(f"v_mul_f32 v15, v{OUT+1}, v{OUT+1}")
    for k in range(2, 20):
        a.i(f"v_fmac_f32 v{14 + k % 2}, v{OUT+k}, v{OUT+k}")
    a.many("""v_add_f32 v14, v14, v15
              v_mov_b32 v15, v14
              v_permlane16_swap_b32 v14, v15
              v_add_f32 v14, v14, v15
              v_mov_b32 v15, v14
              v_permlane32_swap_b32 v14, v15
              v_add_f32 v14, v14, v15
              s_mov_b64 exec, 0xffff""")
    a.i(f"buffer_store_dword v14, v6, s[8:11], s28 offen {SF}")
    a.i(f"buffer_store_dword v{XR+10}, v9, s[8:11], s29 offen {SF}")
    a.i("s_mov_b64 exec, -1")


P3_STAMPS = (3,)
P2_FINE = False
T1N = 3
SYNC_FINE = -1
W4TOK = []
P4_NPRE = 10


def p4_wreg(j, b):
    n = j * 5 + b
    if j >= P4_NPRE:
        return vr(64 + (n - P4_NPRE * 5) * 4, 4, 'a')
    if n < 34:
        return vr(120 + n * 4)
    return vr(192 + (n - 34) * 4, 4, 'a')


def p4_setup(a):
    a.many(f"""s_lshl_b32 s72, s62, 1
              s_add_u32 s72, s72, s18
              s_and_b32 s72, s72, 7
              s_mul_i32 s72, s72, {7 if P4_ROT else 0}
              s_lshr_b32 s72, s72, 2
              s_mov_b32 s73, s72
              s_mul_i32 s21, s16, 14
              s_cmp_eq_u32 s16, 3
              s_cselect_b32 s21, 41, s21
              s_cmp_ge_u32 s16, 2
              s_cselect_b32 s74, 13, 14
              s_cselect_b32 s78, 0x7f000000, 0
              s_lshl_b32 s75, s74, 12
              s_mul_i32 s76, s74, 5120
              s_add_u32 s21, s21, s72
              s_mul_i32 s70, s17, 54
              s_add_u32 s70, s70, s21
              s_lshl_b32 s70, s70, 12
              s_add_u32 s70, s70, {WS_ACT}
              s_mul_i32 s71, s18, 54
              s_add_u32 s71, s71, s21
              s_mul_i32 s71, s71, 5120
              s_add_u32 s71, s71, {WS_WD}""")


def p4_wloads(a, j):
    L = []
    if j == 13:
        L.append("s_add_u32 s71, s71, s78")
    for b in range(5):
        L.append(f"buffer_load_dwordx4 {p4_wreg(j, b)}, {'v2' if b < 4 else 'v3'}, s[8:11], s71 offen offset:{(b % 4)*1024}")
    def adv():
        a.many("""s_add_u32 s71, s71, 5120
                  s_add_u32 s73, s73, 1
                  s_cmp_eq_u32 s73, s74
                  s_cselect_b32 s77, s76, 0
                  s_cselect_b32 s73, 0, s73
                  s_sub_u32 s71, s71, s77""")
    L.append(adv)
    return L


AQ_TOTAL = [0]
def body_p3(a, D, bar_at=0.7, rd_ahead=3, dbg="", pace0=1, pace1=2, arate=3, w0=36, wstep=4.8):
    SF = "sc1"
    a.many(f"""v_lshlrev_b32 v2, 4, v1
              v_add_u32 v3, 0x1000, v2
              v_and_b32 v4, 31, v1
              s_lshl_b32 s26, s60, 2
              s_add_u32 s26, s26, s16
              s_mul_i32 s27, s26, 40960
              s_add_u32 s27, s27, {WS_H}
              v_lshlrev_b32 v5, 5, v4
              s_lshl_b32 s28, s26, 10
              s_add_u32 s28, s28, {WS_ST2}""")
    ACC = 16; ST = 80; RA2, RSQ = 8, 9; T = 96; PK = 88; WF = 160; NB = 7

    def slab(k0, k1):
        L = []
        for kb in range(k0, k1):
            if kb % 4 == 0 or kb == k0:
                L.append(f"s_add_u32 s36, s27, {(kb // 4) * 4096}")
            L.append(f"buffer_load_dwordx4 {vr(kb*4, 4, 'a')}, v2, s[8:11], s36 offen offset:{(kb % 4) * 1024} {'' if 'plain' in dbg else 'sc1'}")
        return L
    interleave(a, slab(0, 8), [])
    a.many(f"""s_lshl_b32 s30, s60, 1
              s_lshr_b32 s31, s16, 1
              s_add_u32 s30, s30, s31
              s_mul_i32 s30, s30, 108
              s_mul_i32 s31, s61, 7
              s_add_u32 s30, s30, s31
              s_lshl_b32 s30, s30, 1
              s_and_b32 s31, s16, 1
              s_add_u32 s30, s30, s31
              s_lshl_b32 s30, s30, 10
              s_add_u32 s30, s30, {WS_ACT}
              s_cmp_eq_u32 s61, 15
              s_cselect_b32 s31, 0x7f000000, s30
              v_add_u32 v13, 0x10000, v2
              v_add_u32 v14, 0x20000, v2""")
    p4_setup(a)
    if "altw4" in dbg:
        a.many(f"""s_xor_b32 s20, s61, 8
                  s_min_u32 s20, s20, 14
                  s_mul_i32 s71, s20, {280*1024}
                  s_mul_i32 s20, s16, {70*1024}
                  s_add_u32 s71, s71, s20
                  s_add_u32 s71, s71, {WS_WGU}
                  s_mov_b32 s73, 0""")
    if "norotw4" in dbg:
        a.many(f"""s_mul_i32 s20, s72, 5120
                  s_sub_u32 s71, s71, s20
                  s_mov_b32 s73, 0""")
    steps = sorted((gu_pos(c, kb), c, kb) for c in range(7) for kb in range(40))

    def rd(n):
        p, c, kb = steps[n]
        off = ((p // 40) % 4) * 40960 + (p % 40) * 1024
        base = ["v2", "v13", "v14"][off >> 16]
        return f"ds_read_b128 {vr(WF + (n % 8) * 4, 4, 'a')}, {base} offset:{off & 0xffff}"

    def mm(n):
        p, c, kb = steps[n]
        d = vr(ACC + (c % 4) * 16, 16)
        return mfma32(d, vr(WF + (n % 8) * 4, 4, 'a'), vr(kb * 4, 4, 'a'), "0" if kb == 0 else None)

    def epi(c):
        L = []
        g0 = ACC + (c % 4) * 16
        u0 = g0 + 8
        pk = PK + (c % 2) * 4
        for hf in range(2):
            R = range(4 * hf, 4 * hf + 4)
            for j in R:
                L.append(f"v_mul_f32 v{T+j}, v{RA2}, v{g0+j}")
            for j in R:
                L.append(f"v_exp_f32 v{T+j}, v{T+j}")
                L.append(f"v_mul_f32 v{T+8+j}, v{g0+j}, v{u0+j}")
            for j in R:
                L.append(f"v_add_f32 v{T+j}, 1.0, v{T+j}")
            for j in R:
                L.append(f"v_rcp_f32 v{T+j}, v{T+j}")
                L.append(f"v_mul_f32 v{T+8+j}, v{RSQ}, v{T+8+j}")
            for j in R:
                L.append(f"v_mul_f32 v{T+8+j}, v{T+8+j}, v{T+j}")
            for jj in range(2 * hf, 2 * hf + 2):
                L.append(f"v_cvt_pk_bf16_f32 v{pk+jj}, v{T+8+2*jj}, v{T+8+2*jj+1}")
        L.append(f"s_add_u32 s37, {'s30' if c < 3 else 's31'}, {c*2048}")
        L.append(f"buffer_store_dwordx4 {vr(pk)}, v2, s[8:11], s37 offen {SF}")
        return L

    stats = [f"buffer_load_dwordx4 {vr(ST+q*4)}, v5, s[8:11], s28 offen offset:{q*16} sc1" for q in range(2)]
    sfin = [f"v_add_f32 v{ST}, v{ST}, v{ST+k}" for k in range(1, 8)]
    sfin += [f"v_mov_b32 v{ST+1}, {f32(1e-5)}", f"v_fmac_f32 v{ST+1}, {f32(1/640)}, v{ST}", f"v_rsq_f32 v{RA2}, v{ST+1}",
             f"v_rcp_f32 v{RSQ}, v{ST+1}", f"v_mul_f32 v{RA2}, {f32(-LOG2E)}, v{RA2}"]
    W4 = [p4_wloads(a, j) for j in range(P4_NPRE)]
    cut = int(40 * bar_at)

    def groups(L):
        out, cur = [], []
        for x in L:
            cur.append(x)
            t = x[0] if isinstance(x, tuple) else x
            if isinstance(t, str) and t.startswith("buffer_"):
                out.append(cur); cur = []
        if cur:
            out[-1] = out[-1] + cur
        return out
    vq = []
    vq += [(0, g) for g in groups(slab(8, 40) + stats)]
    for b in (4, 5, 6):
        vq += [(40 * (b - 3) + cut, g) for g in groups(D[b][0])]
    wq = [(w0 + int(wstep * k), g) for k, g in enumerate(groups(sum(W4, [])))]
    if "now4" in dbg:
        for j in range(P4_NPRE):
            for b in range(5):
                for r in regs_of(p4_wreg(j, b)): a.ever.add(r)
        wq = []
    if "hotw4" in dbg:
        wq = [(e, [x.replace("s71", "s27") if isinstance(x, str) else x for x in g]) for e, g in wq]
    if "latew4" in dbg:
        wq = [(160, g) for _, g in wq]
    aq = [(80, [x]) for x in sfin]
    for c in range(6):
        aq += [(160 if c < 4 else 40 * (c + 1), [x]) for x in epi(c)]

    def emit(items):
        for x in items:
            if callable(x): x()
            elif isinstance(x, tuple): a.i(*x)
            else: a.i(x)
    NB = 7
    a.wait_tok(D[0][1][-1], D[1][1][-1])
    a.i("s_barrier")
    nrd = 0
    last_v = -99
    for n in range(NB * 40):
        blk, i = n // 40, n % 40
        if i == cut and 1 <= blk < NB - 1:
            a.wait_tok(D[blk + 1][1][-1])
            a.i("s_barrier")
        if i == 0 and blk >= 4:
            need = sum(len(epi(c)) for c in range(blk - 3)) + len(sfin)
            while AQ_TOTAL[0] - len(aq) < need if False else (len(sfin) + sum(len(epi(c)) for c in range(6)) - len(aq)) < need:
                emit(aq.pop(0)[1])
        lim = min(n + rd_ahead + 1, (blk + 1) * 40 if (i < cut and blk >= 1) else min((blk + 2) * 40, NB * 40))
        while nrd < lim:
            a.i(rd(nrd)); nrd += 1
        a.i(mm(n))
        pace = pace0 if n < 60 else pace1
        if n - last_v >= pace:
            if vq and vq[0][0] <= n:
                emit(vq.pop(0)[1]); last_v = n
            elif wq and wq[0][0] <= n:
                emit(wq.pop(0)[1]); last_v = n
        k = 0
        while aq and aq[0][0] <= n and k < arate:
            emit(aq.pop(0)[1]); k += 1
        if i == 39 and blk in P3_STAMPS:
            stamp(a)
    assert not vq
    for q in (aq, wq):
        while q:
            emit(q.pop(0)[1])
    interleave(a, epi(6), [])


def body_p4(a, name, depth=4):
    ACC = 16
    NK = 14
    ORDER = [1, 2, 3, 0]
    a.many("""v_lshrrev_b32 v8, 5, v1
              v_lshlrev_b32 v8, 11, v8
              v_bfe_u32 v9, v1, 4, 1
              v_lshl_add_u32 v8, v9, 9, v8
              v_and_b32 v9, 15, v1
              v_lshl_add_u32 v8, v9, 4, v8""")
    for k, rp in enumerate(ORDER):
        a.i(f"s_add_u32 s22, s16, {rp}")
        a.i("s_and_b32 s23, s22, 1")
        a.i("s_lshl_b32 s23, s23, 8")
        a.i("s_and_b32 s22, s22, 2")
        a.i("s_lshl_b32 s22, s22, 9")
        a.i("s_add_u32 s22, s22, s23")
        a.i(f"v_add_u32 v{4+k}, s22, v8")

    def aloads(j):
        base = (j % depth) * 16
        L = []
        if j == NK - 1:
            L.append("s_add_u32 s70, s70, s78")
        L += [f"buffer_load_dwordx4 {vr(base+x*4, 4, 'a')}, v{4+x}, s[8:11], s70 offen sc1" for x in range(4)]
        def adv():
            a.many("""s_add_u32 s70, s70, 4096
                      s_add_u32 s72, s72, 1
                      s_cmp_eq_u32 s72, s74
                      s_cselect_b32 s77, s75, 0
                      s_cselect_b32 s72, 0, s72
                      s_sub_u32 s70, s70, s77""")
        if j < NK - 1:
            L.append(adv)
        return L
    for j in range(depth - 1):
        interleave(a, aloads(j), [])
    HR = 100
    a.many(f"""v_bfe_u32 v10, v1, 4, 1
              v_lshlrev_b32 v10, 9, v10
              v_lshl_add_u32 v10, v9, 4, v10
              v_lshrrev_b32 v12, 5, v1
              v_lshl_add_u32 v10, v12, 3, v10
              v_lshlrev_b32 v11, 2, v9
              s_lshl_b32 s26, s17, 1
              s_lshr_b32 s27, s16, 1
              s_add_u32 s26, s26, s27
              s_mul_i32 s26, s26, 40
              s_mul_i32 s27, s18, 5
              s_add_u32 s26, s26, s27
              s_lshl_b32 s26, s26, 10
              s_and_b32 s27, s16, 1
              s_lshl_b32 s27, s27, 8
              s_add_u32 s27, s27, s26
              s_add_u32 s27, s27, {WS_H}
              s_add_u32 s26, s27, 4096
              s_lshl_b32 s28, s17, 2
              s_add_u32 s28, s28, s16
              s_lshl_b32 s28, s28, 6
              s_add_u32 s28, s28, {WS_M2}""")
    red_setup(a, 5120, 0, 96)
    hl = [f"buffer_load_dwordx2 {vr(HR+2*b, 2)}, v10, s[8:11], s27 offen offset:{b*1024} sc1" for b in range(4)]
    hl += [f"buffer_load_dwordx2 {vr(HR+8, 2)}, v10, s[8:11], s26 offen sc1",
           f"buffer_load_dword v{HR+10}, v11, s[8:11], s28 offen sc1"]

    def mm(j, k):
        rp = ORDER[k]
        return [mfma(vr(ACC + (rp * 5 + b) * 4), p4_wreg(j, b), vr((j % depth) * 16 + k * 4, 4, 'a'), "0" if j == 0 else None) for b in range(5)]
    NT = 3
    for j in range(NK - NT):
        M = []
        for b in range(5):
            for k in range(4):
                M.append(mm(j, k)[b])
        side = aloads(j + depth - 1) if j + depth - 1 < NK else []
        if j == 2:
            side = side + hl
        interleave(a, M, side)
    wr = lambda k: [f"ds_write_b128 v{96+ORDER[k]-1}, {vr(ACC+(ORDER[k]*5+b)*4)} offset:{b*1024}" for b in range(5)]
    tail = lambda k: sum([mm(j, k) for j in range(NK - NT, NK)], [])
    interleave(a, tail(0), [])
    interleave(a, tail(1), wr(0), start=4)
    interleave(a, tail(2), wr(1), start=4)
    side = f"""v_lshrrev_b32 v3, 4, v1
              s_movk_i32 s20, 1280
              v_mul_lo_u32 v2, v9, s20
              v_and_b32 v4, 1, v3
              v_lshlrev_b32 v4, 5, v4
              v_lshrrev_b32 v5, 1, v3
              v_lshlrev_b32 v5, 4, v5
              v_add3_u32 v4, v4, v5, v2
              v_lshl_add_u32 v5, v3, 3, v2
              s_lshl_b32 s20, s17, 2
              s_add_u32 s20, s20, s16
              s_mul_i32 s20, s20, 20480
              s_mul_i32 s21, s18, 160
              s_add_u32 s20, s20, s21""".split("\n")
    PS = 180
    for b in range(5):
        for jj in range(2):
            h = HR + b * 2 + jj
            side.append(f"v_lshlrev_b32 v{PS+b*4+2*jj}, 16, v{h}")
            side.append(f"v_and_b32 v{PS+b*4+2*jj+1}, 0xffff0000, v{h}")
    side += [f"v_add_f32 v{PS+k}, v{PS+k}, v{HR+10}" for k in range(20)]
    interleave(a, tail(3), wr(2) + [x.strip() for x in side], start=3)
    a.wait_lg0()
    a.i("s_barrier")
    for b in range(5):
        for q in range(3):
            a.i(f"ds_read_b128 {vr(120+(b*3+q)*4)}, v99 offset:{(q*5+b)*1024}")
    for k in range(20):
        a.i(f"v_add_f32 v{ACC+k}, v{ACC+k}, v{PS+k}")
    PK = 112
    for b in range(5):
        for j in range(4):
            a.i(f"v_add_f32 v{120+b*12+j}, v{120+b*12+j}, v{124+b*12+j}")
            a.i(f"v_add_f32 v{ACC+b*4+j}, v{ACC+b*4+j}, v{128+b*12+j}")
        for j in range(4):
            a.i(f"v_add_f32 v{ACC+b*4+j}, v{ACC+b*4+j}, v{120+b*12+j}")
        for jj in range(2):
            a.i(f"v_cvt_pk_bf16_f32 v{PK+(b % 4)*2+jj}, v{ACC+b*4+2*jj}, v{ACC+b*4+2*jj+1}")
        if b % 2 == 1:
            r = PK + (b // 2) * 4
            a.i(f"v_permlane16_swap_b32 v{r}, v{r+2}")
            a.i(f"v_permlane16_swap_b32 v{r+1}, v{r+3}")
            a.i(f"buffer_store_dwordx4 {vr(r)}, v4, s[96:99], s20 offen offset:{(b // 2)*64}")
    a.i(f"buffer_store_dwordx2 {vr(PK, 2)}, v5, s[96:99], s20 offen offset:128")


def gen_b(kidx, name="pb_kernel", dbg="", p3kw={}):
    a = Asm()
    prologue(a, name, 256, [(4, KA_WS), (6, KA_X), (52, KA_OUT)])
    a.many(f"""s_and_b32 s19, s2, 7
              s_lshr_b32 s20, s2, 3
              s_lshr_b32 s62, s20, 3
              s_and_b32 s18, s20, 7
              s_lshr_b32 s60, s19, 1
              s_lshl_b32 s60, s60, 2
              s_add_u32 s60, s60, s62
              s_and_b32 s21, s19, 1
              s_lshl_b32 s17, s60, 1
              s_add_u32 s17, s17, s21
              s_lshl_b32 s61, s21, 3
              s_add_u32 s61, s61, s18
              s_lshl_b32 s64, s60, 7
              s_lshl_b32 s63, s61, 2
              s_add_u32 s63, s63, s64
              s_mul_i32 s66, s61, {280*1024}
              s_mul_i32 s67, s16, 10240
              s_add_u32 s66, s66, s67
              s_add_u32 s66, s66, {WS_WGU}
              s_cmp_eq_u32 s61, 15
              s_cselect_b32 s59, 0x7f000000, s66
              s_nop 0""")
    D = [p3_dma(a, b, 2) for b in range(7)]
    a.many(f"""s_lshl_b32 s22, s20, 2
              s_add_u32 s22, s22, s16
              s_lshl_b32 s23, s62, 2
              s_add_u32 s23, s23, s16
              s_mul_i32 s65, s61, {280*1024}
              s_add_u32 s65, s65, {WS_WGU}
              s_mul_i32 s70, s23, {40*128}
              s_add_u32 s70, s70, s65
              s_mul_i32 s71, s23, {140*128}
              s_add_u32 s71, s71, s65
              s_mul_i32 s79, s18, {270*1024}
              s_mul_i32 s72, s23, {135*128}
              s_add_u32 s79, s79, s72
              s_add_u32 s79, s79, {WS_WD}
              s_mul_i32 s72, s22, {52*128}
              s_add_u32 s72, s72, {WS_WO}
              s_lshl_b32 s73, s18, 2
              s_add_u32 s73, s73, s16
              s_mul_i32 s73, s73, {20*128}
              s_mul_i32 s74, s17, {80*1024}
              s_add_u32 s73, s73, s74
              s_add_u32 s73, s73, {WS_PQ}
              s_mul_i32 s74, s22, {7*128}
              s_add_u32 s74, s74, {WS_KV}""")
    body_p2(a, D[0][0] + D[1][0], [], [], [])
    if "fine" not in dbg and SYNC_FINE != 1:
        stamp(a)
    signal_and_wait(a, name, 0, between=lambda: interleave(a, D[2][0] + D[3][0], []))
    if SYNC_FINE != 1: stamp(a)
    body_p3(a, D, dbg=dbg, **p3kw)
    stamp(a)
    signal_and_wait(a, name, 1, between=lambda: interleave(a, sum([p4_wloads(a, j) for j in range(P4_NPRE, 14)], []), []))
    stamp(a)
    body_p4(a, name)
    epilogue(a, name, kidx, 256)
    print(name, "instrs", a.ninstr, "nops", a.nops)
    return name, kernel_wrap(name, a.text(), 256, 256), 256, 256, 163840
```

```python
import sys
import gen
gen.STAMPS = False
from gen import *
from gen1 import *
from genb import *
HDR = open("sequential_preLN__linear_attn_block__swiglu_ffn__prompt.s.ref").read().split("; Override launch")[0]
def final(kernels, path):
    build(kernels, path)
    s = open(path).read()
    open(path, "w").write(HDR + s + "\n")
if __name__ == "__main__":
    out = sys.argv[1] if len(sys.argv) > 1 else "sequential_preLN__linear_attn_block__swiglu_ffn__prompt.s"
    final([gen_p1(0, st_flags="sc1"), gen_b(1, p3kw=dict(arate=2, wstep=3.8))], out)
```

```python
import sys
from asmgen import Asm, Tok, vr, kernel_wrap, interleave
from layout import *

STAMP_INS = "s_memrealtime"
STAMPS = False
OUT_BYTES = 2048 * 640 * 2
WS_BYTES = 0x10000000

KA_X, KA_WQKV, KA_WO, KA_BX, KA_WG, KA_WU, KA_WD, KA_OUT, KA_DBG, KA_WS = [8 * i for i in range(10)]


def srd(a, d, ptr, nbytes):
    a.i(f"s_mov_b32 s{d}, s{ptr}")
    a.i(f"s_and_b32 s{d+1}, s{ptr+1}, 0xffff")
    a.i(f"s_mov_b32 s{d+2}, {nbytes}")
    a.i(f"s_mov_b32 s{d+3}, 0x20000")


def stamp(a, wait=False):
    if STAMPS and a.nstamp < 8:
        if wait:
            a.wait_all()
        a.i(f"{STAMP_INS} s[{80+2*a.nstamp}:{81+2*a.nstamp}]")
        a.nstamp += 1


def prologue(a, name, nwg, loads):
    if STAMPS:
        a.nstamp = 0
        for i in range(80, 96):
            a.i(f"s_mov_b32 s{i}, 0")
        stamp(a)
    a.i(f"s_cmp_ge_u32 s2, {nwg}")
    a.i(f"s_cbranch_scc1 L_end_{name}")
    for s, off in loads:
        a.i(f"s_load_dwordx2 s[{s}:{s+1}], s[0:1], {off}")
    a.i("v_lshrrev_b32 v2, 6, v0")
    a.i("v_and_b32 v1, 63, v0")
    a.i("v_readfirstlane_b32 s16, v2")


DBG_STAMPS = None
def epilogue(a, name, kidx, nwg, srd_ws=8):
    if STAMPS and DBG_STAMPS:
        stamp(a)
        a.wait_all()
        a.i("s_barrier")
        a.nstamp = 7
        stamp(a)
        a.wait_lg0(True)
        sd, lst = DBG_STAMPS
        for i in range(1, 8):
            a.i(f"s_sub_u32 s{80+2*i}, s{80+2*i}, s80")
            a.i(f"v_mov_b32 v{3+i}, s{80+2*i}")
        a.i("v_mov_b32 v11, s80")
        a.i("s_mov_b32 s3, 0x7f000000")
        for wg, off in lst:
            a.i(f"s_cmp_eq_u32 s2, {wg}")
            a.i(f"s_cselect_b32 s3, {off*4}, s3")
        a.i("v_mov_b32 v2, s3")
        a.i("v_cmp_eq_u32 vcc, 0, v0")
        a.i("s_and_saveexec_b64 s[40:41], vcc")
        a.i(f"s_cbranch_execz L_end_{name}")
        for i in range(2):
            a.i(f"buffer_store_dwordx4 v[{4+4*i}:{7+4*i}], v2, s[{sd}:{sd+3}], 0 offen offset:{16*i}")
    elif STAMPS:
        stamp(a)
        a.wait_all()
        a.i("s_barrier")
        a.nstamp = 7
        stamp(a)
        a.wait_lg0(True)
        for i in range(16):
            a.i(f"v_mov_b32 v{4+i}, s{80+i}")
        a.i("s_lshl_b32 s3, s2, 6")
        a.i(f"s_add_u32 s3, s3, {WS_STAMP + kidx * 256 * 64}")
        a.i("v_mov_b32 v2, s3")
        a.i("v_cmp_eq_u32 vcc, 0, v0")
        a.i("s_and_saveexec_b64 s[40:41], vcc")
        a.i(f"s_cbranch_execz L_end_{name}")
        for i in range(4):
            a.i(f"buffer_store_dwordx4 v[{4+4*i}:{7+4*i}], v2, s[{srd_ws}:{srd_ws+3}], 0 offen offset:{16*i}")
    a.label(f"L_end_{name}")
    a.i("s_endpgm")


def mfma(d, A, B, C=None):
    c = d if C is None else C
    return f"v_mfma_f32_16x16x32_bf16 {d}, {A}, {B}, {c}"


def ksplit_reduce(a, ACC, TMP, nb=5, f="v", OUT=None, lds0=0):
    if OUT is None:
        OUT = ACC
    a.i("v_lshlrev_b32 v2, 4, v1")
    for rp in (1, 2, 3):
        a.i(f"s_add_u32 s20, s16, {rp}")
        a.i("s_and_b32 s20, s20, 3")
        a.i(f"s_mul_i32 s20, s20, {3*nb*1024}")
        a.i(f"s_add_u32 s20, s20, {lds0 + (rp-1)*nb*1024}")
        a.i(f"v_add_u32 v{2+rp}, s20, v2")
    a.i(f"s_mul_i32 s20, s16, {3*nb*1024}")
    a.i(f"s_add_u32 s20, s20, {lds0}")
    a.i("v_add_u32 v6, s20, v2")
    for rp in (1, 2, 3):
        for b in range(nb):
            a.i(f"ds_write_b128 v{2+rp}, {vr(ACC+(rp*nb+b)*4, 4, f)} offset:{b*1024}")
    if f == "a":
        for k in range(nb * 4):
            a.i(f"v_accvgpr_read_b32 v{OUT+k}, a{ACC+k}")
    a.wait_lg0()
    a.i("s_barrier")
    for b in range(nb):
        for q in range(3):
            a.i(f"ds_read_b128 {vr(TMP+(b*3+q)*4)}, v6 offset:{(q*nb+b)*1024}")
    for b in range(nb):
        for q in range(3):
            for j in range(4):
                a.i(f"v_add_f32 v{OUT+b*4+j}, v{OUT+b*4+j}, v{TMP+(b*3+q)*4+j}")


def smask(a, sp, mask):
    a.i(f"s_mov_b32 s{sp}, 0x{mask & 0xffffffff:08x}")
    a.i(f"s_mov_b32 s{sp+1}, 0x{mask >> 32:08x}")


def gen_p2(kidx, name="p2_kernel", st_flags="", rot=True):
    a = Asm()
    prologue(a, name, 256, [(4, KA_WS), (6, KA_X)])
    a.many("""s_and_b32 s19, s2, 7
              s_lshr_b32 s20, s2, 3
              s_lshl_b32 s17, s19, 2
              s_lshr_b32 s21, s20, 3
              s_add_u32 s17, s17, s21
              s_and_b32 s18, s20, 7""")
    if rot:
        a.many("""s_add_u32 s19, s21, s18
                  s_add_u32 s19, s19, s16
                  s_and_b32 s19, s19, 3""")
    else:
        a.i("s_mov_b32 s19, s16")
    a.many("""v_lshlrev_b32 v2, 4, v1
              v_add_u32 v3, 0x1000, v2
              v_lshrrev_b32 v8, 4, v1
              v_lshlrev_b32 v9, 4, v8""")
    for rp in range(4):
        a.i(f"s_add_u32 s22, s16, {rp}")
        a.i("s_and_b32 s22, s22, 3")
        a.i("s_lshl_b32 s22, s22, 10")
        a.i(f"v_add_u32 v{4+rp}, s22, v2")
    a.many(f"""s_mul_i32 s24, s17, 20
              s_mul_i32 s22, s19, 5
              s_add_u32 s24, s24, s22
              s_lshl_b32 s24, s24, 12
              s_add_u32 s24, s24, {WS_PQ}
              s_mul_i32 s25, s18, 20
              s_add_u32 s25, s25, s22
              s_mul_i32 s25, s25, 5120
              s_add_u32 s25, s25, {WS_WO}
              s_lshl_b32 s26, s22, 10
              s_add_u32 s26, s26, {WS_RM}
              s_mul_i32 s27, s19, {26*1024}
              s_add_u32 s27, s27, {WS_KV}
              s_mul_i32 s28, s19, 640
              s_add_u32 s28, s28, {WS_Z}""")
    for ap in range(5):
        m = 0
        for l in range(64):
            if (16 * ap + 4 * (l >> 4)) // 20 == (l & 3):
                m |= 1 << l
        smask(a, 40 + 2 * ap, m)
    smask(a, 50, 0xFFFFFFFFFFFF0000); smask(a, 52, 0xFFFFFFFF00000000); smask(a, 54, 0xFFFF000000000000)
    a.wait_lg0()
    srd(a, 8, 4, WS_BYTES)
    srd(a, 12, 6, OUT_BYTES)
    KVR, ZR = 16, 120
    KF, ZF = 160, 232
    NUM = [16, 64]; OF = [112, 132]; TT = 152
    ACC, WOF, PQF = 0, 96, 216
    for ab in range(10):
        a.i(f"buffer_load_dwordx4 {vr(ZR+ab*4)}, v9, s[8:11], s28 offen offset:{ab*64}")
    for i in range(26):
        if i % 8 == 0:
            a.i(f"s_add_u32 s29, s27, {i*1024}")
        a.i(f"buffer_load_dwordx4 {vr(KVR+i*4)}, {'v2' if i % 8 < 4 else 'v3'}, s[8:11], s29 offen offset:{(i % 4)*1024}")

    def pq_loads(rp):
        L = []
        for j in range(5):
            L.append(f"s_add_u32 s29, s24, {j*4096}")
            L.append(f"buffer_load_dwordx4 {vr(PQF+(rp % 2)*20+j*4, 4, 'a')}, v{4+rp}, s[8:11], s29 offen")
        return L

    def wo_loads(j):
        L = [f"s_add_u32 s30, s25, {j*5120}"]
        for b in range(5):
            L.append(f"buffer_load_dwordx4 {vr(WOF+(j*6+b)*4, 4, 'a')}, {'v2' if b < 4 else 'v3'}, s[8:11], s30 offen offset:{(b % 4)*1024}")
        L.append(f"buffer_load_dwordx4 {vr(WOF+(j*6+5)*4, 4, 'a')}, {'v2' if j < 4 else 'v3'}, s[8:11], s26 offen offset:{(j % 4)*1024}")
        return L
    interleave(a, pq_loads(0) + pq_loads(1), [])
    stamp(a)
    conv = []
    zf = {}
    for zb in range(2):
        for j in ([0, 1, 2] if zb == 0 else [2, 3, 4]):
            r = ZF + len(zf) * 4
            zf[(zb, j)] = r
            for h in range(2):
                ab = 2 * j + h
                if ab // 5 == zb:
                    for jj in range(2):
                        conv.append(f"v_cvt_pk_bf16_f32 v{r+2*h+jj}, v{ZR+ab*4+2*jj}, v{ZR+ab*4+2*jj+1}")
                    for jj in range(2):
                        conv.append(f"v_cndmask_b32 v{r+2*h+jj}, 0, v{r+2*h+jj}, s[{40+2*(ab % 5)}:{41+2*(ab % 5)}]")
                else:
                    conv += [f"v_mov_b32 v{r+2*h}, 0", f"v_mov_b32 v{r+2*h+1}, 0"]
    kf = {}
    for b in range(10):
        for j in range(5):
            val = [(ab // 5 == b // 5 and abs(ab - b) <= 1) for ab in (2 * j, 2 * j + 1)]
            if not any(val):
                continue
            r = KF + len(kf) * 4
            kf[(b, j)] = r
            for h in range(2):
                ab = 2 * j + h
                if val[h]:
                    src = KVR + (13 * (b // 5) + 2 * (ab % 5) + (b % 5)) * 4
                    for jj in range(2):
                        conv.append(f"v_cvt_pk_bf16_f32 v{r+2*h+jj}, v{src+2*jj}, v{src+2*jj+1}")
                else:
                    conv += [f"v_mov_b32 v{r+2*h}, 0", f"v_mov_b32 v{r+2*h+1}, 0"]
    assert len(kf) == 18 and len(zf) == 6
    wl = sum([wo_loads(j) for j in range(5)], [])
    interleave(a, conv, wl[:14])
    stamp(a)

    def o_mfma(rp):
        N = NUM[rp % 2]
        L = []
        pq = lambda j: vr(PQF + (rp % 2) * 20 + j * 4, 4, 'a')
        for zb in range(2):
            first = True
            for (z2, j), r in zf.items():
                if z2 == zb:
                    L.append(mfma(vr(N + 40 + zb * 4), vr(r), pq(j), "0" if first else None)); first = False
        for b in range(10):
            first = True
            for (b2, j), r in kf.items():
                if b2 == b:
                    L.append(mfma(vr(N + b * 4), vr(r), pq(j), "0" if first else None)); first = False
        return L

    def o_valu(rp):
        N = NUM[rp % 2]; O = OF[rp % 2]
        L = []
        for h in range(8):
            L.append(f"v_add_f32 v{N+40+h}, {f32(1e-6)}, v{N+40+h}")
        for h in range(8):
            L.append(f"v_rcp_f32 v{N+40+h}, v{N+40+h}")
        for gq in range(2):
            d = N + 40 + gq * 4
            for k in range(3):
                L.append(f"v_cndmask_b32 v{TT+gq*3+k}, v{d+k}, v{d+k+1}, s[{50+2*k}:{51+2*k}]")
        for b in range(10):
            gq, bp = b // 5, b % 5
            fr = N + 40 + gq * 4 if bp == 0 else (N + 40 + gq * 4 + 3 if bp == 4 else TT + gq * 3 + bp - 1)
            for jj in range(4):
                L.append(f"v_mul_f32 v{N+b*4+jj}, v{N+b*4+jj}, v{fr}")
            for jj in range(2):
                L.append(f"v_cvt_pk_bf16_f32 v{O+b*2+jj}, v{N+b*4+2*jj}, v{N+b*4+2*jj+1}")
        return L

    def main_mfma(rp):
        O = OF[rp % 2]
        L = []
        for j in range(5):
            for b in range(6):
                L.append(mfma(vr(ACC + (rp * 6 + b) * 4, 4, 'a'), vr(WOF + (j * 6 + b) * 4, 4, 'a'), vr(O + j * 4), "0" if j == 0 else None))
        return L
    XR = 240
    interleave(a, o_mfma(0), wl[14:28])
    interleave(a, o_mfma(1), o_valu(0)[:40] + wl[28:])
    interleave(a, [], o_valu(0)[40:])
    interleave(a, [], pq_loads(2))
    interleave(a, main_mfma(0), o_valu(1) + pq_loads(3))
    stamp(a)
    interleave(a, o_mfma(2) + main_mfma(1), [])
    interleave(a, o_mfma(3), o_valu(2)[:40])
    interleave(a, [], o_valu(2)[40:])
    a.many(f"""v_and_b32 v10, 15, v1
              s_movk_i32 s20, 1280
              v_mul_lo_u32 v11, v10, s20
              v_lshl_add_u32 v11, v8, 3, v11
              v_lshlrev_b32 v12, 3, v10
              s_lshl_b32 s31, s17, 2
              s_add_u32 s31, s31, s16
              s_mul_i32 s32, s31, 20480
              s_mul_i32 s33, s18, 160
              s_add_u32 s32, s32, s33
              s_lshl_b32 s33, s31, 7
              s_add_u32 s33, s33, {WS_ST1}""")
    XR = 160
    xl = [f"buffer_load_dwordx2 {vr(XR+2*b, 2)}, v11, s[12:15], s32 offen offset:{b*32}" for b in range(5)]
    xl.append(f"buffer_load_dword v{XR+10}, v12, s[8:11], s33 offen offset:4")
    interleave(a, main_mfma(2), xl + o_valu(3))
    interleave(a, main_mfma(3), [])
    stamp(a)
    OUT = 176
    ksplit_reduce(a, ACC, 16, nb=6, f="a", OUT=OUT)
    stamp(a)
    a.i(f"v_add_f32 v{XR+10}, v{XR+10}, v{OUT+20}")
    for b in range(5):
        for jj in range(2):
            h = XR + b * 2 + jj
            a.i(f"v_lshlrev_b32 v14, 16, v{h}")
            a.i(f"v_and_b32 v15, 0xffff0000, v{h}")
            a.i(f"v_sub_f32 v14, v14, v{XR+10}")
            a.i(f"v_sub_f32 v15, v15, v{XR+10}")
            a.i(f"v_add_f32 v{OUT+b*4+2*jj}, v{OUT+b*4+2*jj}, v14")
            a.i(f"v_add_f32 v{OUT+b*4+2*jj+1}, v{OUT+b*4+2*jj+1}, v15")
    PK = 200
    for b in range(5):
        for jj in range(2):
            a.i(f"v_cvt_pk_bf16_f32 v{PK+b*2+jj}, v{OUT+b*4+2*jj}, v{OUT+b*4+2*jj+1}")
    a.i(f"v_mul_f32 v14, v{OUT}, v{OUT}")
    for k in range(1, 20):
        a.i(f"v_fmac_f32 v14, v{OUT+k}, v{OUT+k}")
    a.many(f"""v_bfe_u32 v4, v1, 4, 1
              v_lshlrev_b32 v4, 9, v4
              v_lshl_add_u32 v4, v10, 4, v4
              v_lshrrev_b32 v6, 5, v1
              v_lshl_add_u32 v5, v6, 3, v4
              v_lshl_add_u32 v4, v6, 10, v4
              s_lshl_b32 s26, s17, 1
              s_lshr_b32 s27, s16, 1
              s_add_u32 s26, s26, s27
              s_mul_i32 s26, s26, 40
              s_mul_i32 s27, s18, 5
              s_add_u32 s26, s26, s27
              s_lshl_b32 s26, s26, 10
              s_and_b32 s27, s16, 1
              s_lshl_b32 s27, s27, 8
              s_add_u32 s27, s27, s26
              s_add_u32 s27, s27, {WS_H}
              s_add_u32 s26, s27, 4096
              v_mov_b32 v15, v14""")
    for p in range(2):
        r = PK + p * 4
        a.i(f"v_permlane32_swap_b32 v{r}, v{r+2}")
        a.i(f"v_permlane32_swap_b32 v{r+1}, v{r+3}")
        a.i(f"buffer_store_dwordx4 {vr(r)}, v4, s[8:11], s27 offen offset:{p*2048} {st_flags}")
    a.i(f"buffer_store_dwordx2 {vr(PK+8, 2)}, v5, s[8:11], s26 offen {st_flags}")
    a.many("""v_permlane16_swap_b32 v14, v15
              v_add_f32 v14, v14, v15
              v_mov_b32 v15, v14
              v_permlane32_swap_b32 v14, v15
              v_add_f32 v14, v14, v15""")
    a.many(f"""v_lshlrev_b32 v6, 5, v10
              v_lshlrev_b32 v7, 2, v10
              s_lshl_b32 s26, s31, 9
              s_lshl_b32 s27, s18, 2
              s_add_u32 s26, s26, s27
              s_add_u32 s26, s26, {WS_ST2}
              s_lshl_b32 s27, s31, 6
              s_add_u32 s27, s27, {WS_M2}
              s_mov_b64 s[34:35], exec
              s_mov_b64 exec, 0xffff""")
    a.i(f"buffer_store_dword v14, v6, s[8:11], s26 offen {st_flags}")
    a.i(f"buffer_store_dword v{XR+10}, v7, s[8:11], s27 offen {st_flags}")
    a.i("s_mov_b64 exec, s[34:35]")
    epilogue(a, name, kidx, 256)
    print(name, "instrs", a.ninstr, "nops", a.nops)
    return name, kernel_wrap(name, a.text(), 256, 256), 256, 256, 73728


def gen_p4(kidx, xmap="A", depth=3, rot=True, name="p4_kernel"):
    a = Asm()
    prologue(a, name, 256, [(4, KA_WS), (6, KA_OUT)])
    a.i("s_and_b32 s19, s2, 7")
    a.i("s_lshr_b32 s20, s2, 3")
    if xmap == "A":
        a.i("s_lshl_b32 s17, s19, 2"); a.i("s_lshr_b32 s21, s20, 3"); a.i("s_add_u32 s17, s17, s21")
        a.i("s_and_b32 s18, s20, 7")
        a.i("s_lshl_b32 s29, s21, 1"); a.i("s_add_u32 s29, s29, s18"); a.i("s_and_b32 s29, s29, 7")
    elif xmap == "B":
        a.i("s_lshr_b32 s17, s19, 1"); a.i("s_lshl_b32 s17, s17, 3"); a.i("s_lshr_b32 s21, s20, 2"); a.i("s_add_u32 s17, s17, s21")
        a.i("s_and_b32 s18, s19, 1"); a.i("s_lshl_b32 s18, s18, 2"); a.i("s_and_b32 s22, s20, 3"); a.i("s_add_u32 s18, s18, s22")
        a.i("s_lshl_b32 s29, s22, 1"); a.i("s_add_u32 s29, s29, s21"); a.i("s_and_b32 s29, s29, 7")
    if not rot:
        a.i("s_mov_b32 s29, 0")
    a.i("s_mul_i32 s29, s29, 7"); a.i("s_lshr_b32 s29, s29, 2")
    a.i("v_lshlrev_b32 v2, 4, v1")
    a.i("v_add_u32 v3, 0x1000, v2")
    a.i("s_mul_i32 s21, s16, 14")
    a.i("s_cmp_eq_u32 s16, 3")
    a.i("s_cselect_b32 s21, 41, s21")
    a.i("s_cmp_ge_u32 s16, 2")
    a.i("s_cselect_b32 s30, 13, 14")
    a.i("s_lshl_b32 s31, s30, 12")
    a.i("s_mul_i32 s32, s30, 5120")
    a.i("s_add_u32 s21, s21, s29")
    a.many("""v_lshrrev_b32 v8, 5, v1
              v_lshlrev_b32 v8, 11, v8
              v_bfe_u32 v9, v1, 4, 1
              v_lshl_add_u32 v8, v9, 9, v8
              v_and_b32 v9, 15, v1
              v_lshl_add_u32 v8, v9, 4, v8""")
    for rp in range(4):
        a.i(f"s_add_u32 s22, s16, {rp}")
        a.i("s_and_b32 s23, s22, 1")
        a.i("s_lshl_b32 s23, s23, 8")
        a.i("s_and_b32 s22, s22, 2")
        a.i("s_lshl_b32 s22, s22, 9")
        a.i("s_add_u32 s22, s22, s23")
        a.i(f"v_add_u32 v{4+rp}, s22, v8")
    a.i("s_mul_i32 s24, s17, 54"); a.i("s_add_u32 s24, s24, s21"); a.i("s_lshl_b32 s24, s24, 12"); a.i(f"s_add_u32 s24, s24, {WS_ACT}")
    a.i("s_mul_i32 s25, s18, 54"); a.i("s_add_u32 s25, s25, s21"); a.i("s_mul_i32 s25, s25, 5120"); a.i(f"s_add_u32 s25, s25, {WS_WD}")
    a.wait_lg0()
    srd(a, 8, 4, WS_BYTES)
    srd(a, 12, 6, OUT_BYTES)
    ACC = 16
    NK = 14

    def loads(j):
        base = (j % depth) * 36
        order = [("a", 0), ("w", 0), ("a", 1), ("a", 2), ("a", 3), ("w", 1), ("w", 2), ("w", 3), ("w", 4)]
        L = []
        for k, x in order:
            if k == "a":
                L.append(f"buffer_load_dwordx4 {vr(base+x*4, 4, 'a')}, v{4+x}, s[8:11], s24 offen")
            elif x < 4:
                L.append(f"buffer_load_dwordx4 {vr(base+16+x*4, 4, 'a')}, v2, s[8:11], s25 offen offset:{x*1024}")
            else:
                L.append(f"buffer_load_dwordx4 {vr(base+16+x*4, 4, 'a')}, v3, s[8:11], s25 offen")
        def adv():
            a.many("""s_add_u32 s24, s24, 4096
                      s_add_u32 s25, s25, 5120
                      s_add_u32 s29, s29, 1
                      s_cmp_eq_u32 s29, s30
                      s_cselect_b32 s33, s31, 0
                      s_cselect_b32 s34, s32, 0
                      s_cselect_b32 s29, 0, s29
                      s_sub_u32 s24, s24, s33
                      s_sub_u32 s25, s25, s34""")
        L.append(adv)
        return L

    for j in range(depth - 1):
        interleave(a, loads(j), [])
    stamp(a)
    HR = 100
    a.many(f"""v_bfe_u32 v10, v1, 4, 1
              v_lshlrev_b32 v10, 9, v10
              v_and_b32 v11, 15, v1
              v_lshl_add_u32 v10, v11, 4, v10
              v_lshrrev_b32 v12, 5, v1
              v_lshl_add_u32 v10, v12, 3, v10
              v_lshlrev_b32 v11, 2, v11
              s_lshl_b32 s26, s17, 1
              s_lshr_b32 s27, s16, 1
              s_add_u32 s26, s26, s27
              s_mul_i32 s26, s26, 40
              s_mul_i32 s27, s18, 5
              s_add_u32 s26, s26, s27
              s_lshl_b32 s26, s26, 10
              s_and_b32 s27, s16, 1
              s_lshl_b32 s27, s27, 8
              s_add_u32 s27, s27, s26
              s_add_u32 s27, s27, {WS_H}
              s_add_u32 s26, s27, 4096
              s_lshl_b32 s28, s17, 2
              s_add_u32 s28, s28, s16
              s_lshl_b32 s28, s28, 6
              s_add_u32 s28, s28, {WS_M2}""")
    hl = [f"buffer_load_dwordx2 {vr(HR+2*b, 2)}, v10, s[8:11], s27 offen offset:{b*1024}" for b in range(4)]
    hl += [f"buffer_load_dwordx2 {vr(HR+8, 2)}, v10, s[8:11], s26 offen",
           f"buffer_load_dword v{HR+10}, v11, s[8:11], s28 offen"]
    for j in range(NK):
        base = (j % depth) * 36
        M = []
        for b in range(5):
            for r in range(4):
                d = vr(ACC + (r * 5 + b) * 4)
                M.append(mfma(d, vr(base + 16 + b * 4, 4, 'a'), vr(base + r * 4, 4, 'a'), "0" if j == 0 else None))
        side = loads(j + depth - 1) if j + depth - 1 < NK else []
        if j + depth - 1 == NK:
            side = hl
        if j == NK - 1:
            a.i("s_cmp_ge_u32 s16, 2")
            a.i(f"s_cbranch_scc1 L_skip_{name}")
            a.cond_begin()
        interleave(a, M, side)
        if j == NK - 1:
            a.label(f"L_skip_{name}")
            a.cond_end()
        if j in (0, 6):
            stamp(a)
    stamp(a)
    ksplit_reduce(a, ACC, 112)
    stamp(a)
    for b in range(5):
        for jj in range(2):
            h = HR + b * 2 + jj
            a.i(f"v_lshlrev_b32 v8, 16, v{h}")
            a.i(f"v_and_b32 v9, 0xffff0000, v{h}")
            a.i(f"v_add_f32 v8, v8, v{HR+10}")
            a.i(f"v_add_f32 v9, v9, v{HR+10}")
            a.i(f"v_add_f32 v{ACC+b*4+2*jj}, v{ACC+b*4+2*jj}, v8")
            a.i(f"v_add_f32 v{ACC+b*4+2*jj+1}, v{ACC+b*4+2*jj+1}, v9")
    PK = 112
    for b in range(5):
        for jj in range(2):
            a.i(f"v_cvt_pk_bf16_f32 v{PK+b*2+jj}, v{ACC+b*4+2*jj}, v{ACC+b*4+2*jj+1}")
    a.i("v_and_b32 v2, 15, v1"); a.i("v_lshrrev_b32 v3, 4, v1")
    a.i("s_movk_i32 s20, 1280")
    a.i("v_mul_lo_u32 v2, v2, s20")
    a.i("v_and_b32 v4, 1, v3"); a.i("v_lshlrev_b32 v4, 5, v4"); a.i("v_lshrrev_b32 v5, 1, v3"); a.i("v_lshlrev_b32 v5, 4, v5")
    a.i("v_add3_u32 v4, v4, v5, v2")
    a.i("v_lshl_add_u32 v5, v3, 3, v2")
    a.i("s_lshl_b32 s20, s17, 2"); a.i("s_add_u32 s20, s20, s16"); a.i("s_mul_i32 s20, s20, 20480")
    a.i("s_mul_i32 s21, s18, 160"); a.i("s_add_u32 s20, s20, s21")
    for p in range(2):
        r = PK + p * 4
        a.i(f"v_permlane16_swap_b32 v{r}, v{r+2}")
        a.i(f"v_permlane16_swap_b32 v{r+1}, v{r+3}")
        a.i(f"buffer_store_dwordx4 {vr(r)}, v4, s[12:15], s20 offen offset:{p*64}")
    a.i(f"buffer_store_dwordx2 {vr(PK+8, 2)}, v5, s[12:15], s20 offen offset:128")
    epilogue(a, name, kidx, 256)
    return name, kernel_wrap(name, a.text(), 176, depth * 36), 256, 256, 61440


LOG2E = 1.4426950408889634
import struct
def f32(x):
    return "0x%08x" % struct.unpack("<I", struct.pack("<f", x))[0]


def mfma32(d, A, B, C=None):
    c = d if C is None else C
    return f"v_mfma_f32_32x32x16_bf16 {d}, {A}, {B}, {c}"


def gen_p3(kidx, name="p3_kernel", st_flags="", bar_at=0.7, rd_ahead=3, noepi=False, early=True):
    a = Asm()
    prologue(a, name, 256, [(4, KA_WS)])
    a.many("""s_and_b32 s19, s2, 7
              s_lshr_b32 s20, s2, 3
              s_lshr_b32 s17, s19, 1
              s_lshl_b32 s17, s17, 2
              s_lshr_b32 s21, s20, 3
              s_add_u32 s17, s17, s21
              s_and_b32 s18, s19, 1
              s_lshl_b32 s18, s18, 3
              s_and_b32 s21, s20, 7
              s_add_u32 s18, s18, s21
              v_lshlrev_b32 v2, 4, v1
              v_and_b32 v4, 31, v1""")
    a.i(f"s_mul_i32 s24, s18, {280*1024}"); a.i("s_mul_i32 s25, s16, 10240"); a.i("s_add_u32 s24, s24, s25"); a.i(f"s_add_u32 s24, s24, {WS_WGU}")
    a.i("s_lshl_b32 s26, s17, 2"); a.i("s_add_u32 s26, s26, s16"); a.i("s_mul_i32 s27, s26, 40960"); a.i(f"s_add_u32 s27, s27, {WS_H}")
    a.i("v_lshlrev_b32 v5, 5, v4"); a.i("s_lshl_b32 s28, s26, 10"); a.i(f"s_add_u32 s28, s28, {WS_ST2}")
    a.many(f"""s_lshl_b32 s30, s17, 1
              s_lshr_b32 s31, s16, 1
              s_add_u32 s30, s30, s31
              s_mul_i32 s30, s30, 108
              s_mul_i32 s31, s18, 7
              s_add_u32 s30, s30, s31
              s_lshl_b32 s30, s30, 1
              s_and_b32 s31, s16, 1
              s_add_u32 s30, s30, s31
              s_lshl_b32 s30, s30, 10
              s_add_u32 s30, s30, {WS_ACT}
              s_cmp_eq_u32 s18, 15
              s_cselect_b32 s31, 0x7f000000, s30""")
    a.wait_lg0()
    srd(a, 8, 4, WS_BYTES)
    ACC = 16
    ST = 80
    RA2, RSQ = 8, 9
    T = 96
    PK = 88
    WF = 160
    NB = 7

    def dma(blk):
        L = []
        toks = []
        for i in range(10):
            if i % 4 == 0:
                def setm(i=i):
                    a.i(f"s_add_u32 s34, s25, {(blk % 4) * 40960 + i * 1024}")
                    a.i("s_mov_b32 m0, s34")
                    a.i(f"s_add_u32 s35, s24, {blk * 40960 + i * 1024}")
                L.append(setm)
            tk = Tok(); toks.append(tk)
            L.append((f"buffer_load_dwordx4 v2, s[8:11], s35 offen offset:{(i % 4) * 1024} lds", tk))
        return L, toks

    def slab(k0, k1):
        L = []
        for kb in range(k0, k1):
            if kb % 4 == 0 or kb == k0:
                L.append(f"s_add_u32 s36, s27, {(kb // 4) * 4096}")
            L.append(f"buffer_load_dwordx4 {vr(kb*4, 4, 'a')}, v2, s[8:11], s36 offen offset:{(kb % 4) * 1024}")
        return L

    steps = sorted((gu_pos(c, kb), c, kb) for c in range(7) for kb in range(40))
    a.i("v_add_u32 v13, 0x10000, v2"); a.i("v_add_u32 v14, 0x20000, v2")

    def rd(n):
        p, c, kb = steps[n]
        off = ((p // 40) % 4) * 40960 + (p % 40) * 1024
        base = ["v2", "v13", "v14"][off >> 16]
        return f"ds_read_b128 {vr(WF + (n % 8) * 4, 4, 'a')}, {base} offset:{off & 0xffff}"

    def mm(n):
        p, c, kb = steps[n]
        d = vr(ACC + (c % 4) * 16, 16)
        return mfma32(d, vr(WF + (n % 8) * 4, 4, 'a'), vr(kb * 4, 4, 'a'), "0" if kb == 0 else None)

    def epi(c):
        L = []
        g0 = ACC + (c % 4) * 16
        u0 = g0 + 8
        pk = PK + (c % 2) * 4
        for hf in range(2):
            R = range(4 * hf, 4 * hf + 4)
            for j in R:
                L.append(f"v_mul_f32 v{T+j}, v{RA2}, v{g0+j}")
            for j in R:
                L.append(f"v_exp_f32 v{T+j}, v{T+j}")
                L.append(f"v_mul_f32 v{T+8+j}, v{g0+j}, v{u0+j}")
            for j in R:
                L.append(f"v_add_f32 v{T+j}, 1.0, v{T+j}")
            for j in R:
                L.append(f"v_rcp_f32 v{T+j}, v{T+j}")
                L.append(f"v_mul_f32 v{T+8+j}, v{RSQ}, v{T+8+j}")
            for j in R:
                L.append(f"v_mul_f32 v{T+8+j}, v{T+8+j}, v{T+j}")
            for jj in range(2 * hf, 2 * hf + 2):
                L.append(f"v_cvt_pk_bf16_f32 v{pk+jj}, v{T+8+2*jj}, v{T+8+2*jj+1}")
        L.append(f"s_add_u32 s37, {'s30' if c < 3 else 's31'}, {c*2048}")
        L.append(f"buffer_store_dwordx4 {vr(pk)}, v2, s[8:11], s37 offen {st_flags}")
        return L

    def stats():
        return [f"buffer_load_dwordx4 {vr(ST+q*4)}, v5, s[8:11], s28 offen offset:{q*16}" for q in range(2)]

    def stats_fin():
        L = [f"v_add_f32 v{ST}, v{ST}, v{ST+k}" for k in range(1, 8)]
        L.append(f"v_mov_b32 v{ST+1}, {f32(1e-5)}")
        L.append(f"v_fmac_f32 v{ST+1}, {f32(1/640)}, v{ST}")
        L.append(f"v_rsq_f32 v{RA2}, v{ST+1}")
        L.append(f"v_rcp_f32 v{RSQ}, v{ST+1}")
        L.append(f"v_mul_f32 v{RA2}, {f32(-LOG2E)}, v{RA2}")
        return L

    D = [dma(b) for b in range(NB)]
    interleave(a, D[0][0], [])
    interleave(a, slab(0, 8), [])
    stamp(a)
    side = {b: [] for b in range(NB)}
    side_late = {b: [] for b in range(NB)}
    side[0] = slab(8, 20) + D[1][0] + slab(20, 26)
    side_late[0] = slab(26, 32)
    side[1] = slab(32, 40) + stats() + D[2][0]
    side_late[1] = D[3][0]
    side[2] = stats_fin() + epi(0)
    side[3] = epi(1) + epi(2)[:20]
    side[4] = epi(2)[20:] + epi(3)
    side[5] = epi(4)
    side[6] = epi(5)
    for b in (4, 5, 6):
        side_late[b - 2] = D[b][0]
    if noepi:
        for b in (3, 4, 5, 6):
            side[b] = []
    a.wait_tok(D[0][1][-1])
    a.i("s_barrier")
    n = 0
    nrd = 0
    for blk in range(NB):
        main1, main2 = [], []
        cut = int(40 * bar_at)
        for i in range(40):
            tgt = main1 if i < cut else main2
            lim = min(n + rd_ahead + 1, (blk + 1) * 40 if i < cut else min((blk + 2) * 40, NB * 40))
            rds = []
            while nrd < lim:
                rds.append(rd(nrd)); nrd += 1
            def step(rds=rds, n=n):
                for x in rds:
                    a.i(x)
                a.i(mm(n))
            tgt.append(step)
            n += 1
        interleave(a, main1, side[blk])
        if blk + 1 < NB:
            a.wait_tok(D[blk + 1][1][-1])
            a.i("s_barrier")
        interleave(a, main2, side_late[blk])
        if blk in (0, 1, 3):
            stamp(a)
    stamp(a)
    interleave(a, epi(6), [])
    epilogue(a, name, kidx, 256)
    print(name, "instrs", a.ninstr, "nops", a.nops)
    return name, kernel_wrap(name, a.text(), 128, 192), 256, 256, 163840


def build(kernels, path):
    out = []
    for name, _, nwg, blk, lds in kernels:
        out.append(f"; @launch kernel={name} grid=({nwg},1,1) block=({blk},1,1) lds={lds}")
    out.append('.amdgcn_target "amdgcn-amd-amdhsa--gfx950"')
    seen = set()
    for name, txt, *_ in kernels:
        if name not in seen:
            out.append(txt); seen.add(name)
    open(path, "w").write("\n".join(out))
    print(path, sum(len(x) for x in out), "bytes")


def dummy(kidx):
    name = f"z{kidx}_kernel"
    a = Asm()
    prologue(a, name, 256, [(4, KA_WS)])
    a.wait_lg0()
    srd(a, 8, 4, WS_BYTES)
    epilogue(a, name, kidx, 256)
    return name, kernel_wrap(name, a.text(), 24, 0), 256, 256, 0
```

```python
import gen
from gen import *
from gen1 import *
from genb import *
from mk import final
gen.STAMPS = True
gen.DBG_STAMPS = (60, [(80, 8)])
p1 = gen_p1(0)
gen.STAMPS = False
b = gen_b(1)
final([p1, b], "d1.s")
gen.STAMPS = True
gen.DBG_STAMPS = (60, [(8, 8)])
p1 = gen_p1(0)
final([p1, b], "d2.s")
```

```python
import sys
from asmgen import Asm, Tok, vr, kernel_wrap, interleave
from layout import *

STAMP_INS = "s_memrealtime"
STAMPS = False
OUT_BYTES = 2048 * 640 * 2
WS_BYTES = 0x10000000

KA_X, KA_WQKV, KA_WO, KA_BX, KA_WG, KA_WU, KA_WD, KA_OUT, KA_DBG, KA_WS = [8 * i for i in range(10)]


def srd(a, d, ptr, nbytes):
    a.i(f"s_mov_b32 s{d}, s{ptr}")
    a.i(f"s_and_b32 s{d+1}, s{ptr+1}, 0xffff")
    a.i(f"s_mov_b32 s{d+2}, {nbytes}")
    a.i(f"s_mov_b32 s{d+3}, 0x20000")


def stamp(a, wait=False):
    if STAMPS and a.nstamp < 8:
        if wait:
            a.wait_all()
        a.i(f"{STAMP_INS} s[{80+2*a.nstamp}:{81+2*a.nstamp}]")
        a.nstamp += 1


def prologue(a, name, nwg, loads):
    if STAMPS:
        a.nstamp = 0
        for i in range(80, 96):
            a.i(f"s_mov_b32 s{i}, 0")
        stamp(a)
    a.i(f"s_cmp_ge_u32 s2, {nwg}")
    a.i(f"s_cbranch_scc1 L_end_{name}")
    for s, off in loads:
        a.i(f"s_load_dwordx2 s[{s}:{s+1}], s[0:1], {off}")
    a.i("v_lshrrev_b32 v2, 6, v0")
    a.i("v_and_b32 v1, 63, v0")
    a.i("v_readfirstlane_b32 s16, v2")


DBG_STAMPS = None
def epilogue(a, name, kidx, nwg, srd_ws=8):
    if STAMPS and DBG_STAMPS:
        wgB, wgA = DBG_STAMPS
        stamp(a)
        a.wait_all()
        a.i("s_barrier")
        a.nstamp = 7
        stamp(a)
        a.i("s_load_dwordx2 s[44:45], s[0:1], 64")
        a.wait_lg0(True)
        srd(a, 48, 44, 256)
        for i in range(8):
            a.i(f"v_mov_b32 v{4+i}, s{80+2*i}")
        a.i(f"s_mov_b32 s3, {WS_STAMP + wgA*64}")
        a.i("v_mov_b32 v2, 0")
        for i in range(4):
            a.i(f"buffer_load_dwordx4 v[{16+4*i}:{19+4*i}], v2, s[{srd_ws}:{srd_ws+3}], s3 offen offset:{16*i}")
        for i in range(8):
            a.i(f"v_mov_b32 v{32+i}, v{16+2*i}")
        a.i(f"s_cmp_eq_u32 s2, {wgB}")
        a.i(f"s_cbranch_scc0 L_end_{name}")
        a.i("v_cmp_eq_u32 vcc, 0, v0")
        a.i("s_and_saveexec_b64 s[40:41], vcc")
        a.i(f"s_cbranch_execz L_end_{name}")
        for i in range(2):
            a.i(f"buffer_store_dwordx4 v[{4+4*i}:{7+4*i}], v2, s[48:51], 0 offen offset:{16*i}")
            a.i(f"buffer_store_dwordx4 v[{32+4*i}:{35+4*i}], v2, s[48:51], 0 offen offset:{32+16*i}")
    elif STAMPS:
        stamp(a)
        a.wait_all()
        a.i("s_barrier")
        a.nstamp = 7
        stamp(a)
        a.wait_lg0(True)
        for i in range(16):
            a.i(f"v_mov_b32 v{4+i}, s{80+i}")
        a.i("s_lshl_b32 s3, s2, 6")
        a.i(f"s_add_u32 s3, s3, {WS_STAMP + kidx * 256 * 64}")
        a.i("v_mov_b32 v2, s3")
        a.i("v_cmp_eq_u32 vcc, 0, v0")
        a.i("s_and_saveexec_b64 s[40:41], vcc")
        a.i(f"s_cbranch_execz L_end_{name}")
        for i in range(4):
            a.i(f"buffer_store_dwordx4 v[{4+4*i}:{7+4*i}], v2, s[{srd_ws}:{srd_ws+3}], 0 offen offset:{16*i}")
    a.label(f"L_end_{name}")
    a.i("s_endpgm")


def mfma(d, A, B, C=None):
    c = d if C is None else C
    return f"v_mfma_f32_16x16x32_bf16 {d}, {A}, {B}, {c}"


def ksplit_reduce(a, ACC, TMP, nb=5, f="v", OUT=None, lds0=0):
    if OUT is None:
        OUT = ACC
    a.i("v_lshlrev_b32 v2, 4, v1")
    for rp in (1, 2, 3):
        a.i(f"s_add_u32 s20, s16, {rp}")
        a.i("s_and_b32 s20, s20, 3")
        a.i(f"s_mul_i32 s20, s20, {3*nb*1024}")
        a.i(f"s_add_u32 s20, s20, {lds0 + (rp-1)*nb*1024}")
        a.i(f"v_add_u32 v{2+rp}, s20, v2")
    a.i(f"s_mul_i32 s20, s16, {3*nb*1024}")
    a.i(f"s_add_u32 s20, s20, {lds0}")
    a.i("v_add_u32 v6, s20, v2")
    for rp in (1, 2, 3):
        for b in range(nb):
            a.i(f"ds_write_b128 v{2+rp}, {vr(ACC+(rp*nb+b)*4, 4, f)} offset:{b*1024}")
    if f == "a":
        for k in range(nb * 4):
            a.i(f"v_accvgpr_read_b32 v{OUT+k}, a{ACC+k}")
    a.wait_lg0()
    a.i("s_barrier")
    for b in range(nb):
        for q in range(3):
            a.i(f"ds_read_b128 {vr(TMP+(b*3+q)*4)}, v6 offset:{(q*nb+b)*1024}")
    for b in range(nb):
        for q in range(3):
            for j in range(4):
                a.i(f"v_add_f32 v{OUT+b*4+j}, v{OUT+b*4+j}, v{TMP+(b*3+q)*4+j}")


def smask(a, sp, mask):
    a.i(f"s_mov_b32 s{sp}, 0x{mask & 0xffffffff:08x}")
    a.i(f"s_mov_b32 s{sp+1}, 0x{mask >> 32:08x}")


def gen_p2(kidx, name="p2_kernel", st_flags="", rot=True):
    a = Asm()
    prologue(a, name, 256, [(4, KA_WS), (6, KA_X)])
    a.many("""s_and_b32 s19, s2, 7
              s_lshr_b32 s20, s2, 3
              s_lshl_b32 s17, s19, 2
              s_lshr_b32 s21, s20, 3
              s_add_u32 s17, s17, s21
              s_and_b32 s18, s20, 7""")
    if rot:
        a.many("""s_add_u32 s19, s21, s18
                  s_add_u32 s19, s19, s16
                  s_and_b32 s19, s19, 3""")
    else:
        a.i("s_mov_b32 s19, s16")
    a.many("""v_lshlrev_b32 v2, 4, v1
              v_add_u32 v3, 0x1000, v2
              v_lshrrev_b32 v8, 4, v1
              v_lshlrev_b32 v9, 4, v8""")
    for rp in range(4):
        a.i(f"s_add_u32 s22, s16, {rp}")
        a.i("s_and_b32 s22, s22, 3")
        a.i("s_lshl_b32 s22, s22, 10")
        a.i(f"v_add_u32 v{4+rp}, s22, v2")
    a.many(f"""s_mul_i32 s24, s17, 20
              s_mul_i32 s22, s19, 5
              s_add_u32 s24, s24, s22
              s_lshl_b32 s24, s24, 12
              s_add_u32 s24, s24, {WS_PQ}
              s_mul_i32 s25, s18, 20
              s_add_u32 s25, s25, s22
              s_mul_i32 s25, s25, 5120
              s_add_u32 s25, s25, {WS_WO}
              s_lshl_b32 s26, s22, 10
              s_add_u32 s26, s26, {WS_RM}
              s_mul_i32 s27, s19, {26*1024}
              s_add_u32 s27, s27, {WS_KV}
              s_mul_i32 s28, s19, 640
              s_add_u32 s28, s28, {WS_Z}""")
    for ap in range(5):
        m = 0
        for l in range(64):
            if (16 * ap + 4 * (l >> 4)) // 20 == (l & 3):
                m |= 1 << l
        smask(a, 40 + 2 * ap, m)
    smask(a, 50, 0xFFFFFFFFFFFF0000); smask(a, 52, 0xFFFFFFFF00000000); smask(a, 54, 0xFFFF000000000000)
    a.wait_lg0()
    srd(a, 8, 4, WS_BYTES)
    srd(a, 12, 6, OUT_BYTES)
    KVR, ZR = 16, 120
    KF, ZF = 160, 232
    NUM = [16, 64]; OF = [112, 132]; TT = 152
    ACC, WOF, PQF = 0, 96, 216
    for ab in range(10):
        a.i(f"buffer_load_dwordx4 {vr(ZR+ab*4)}, v9, s[8:11], s28 offen offset:{ab*64}")
    for i in range(26):
        if i % 8 == 0:
            a.i(f"s_add_u32 s29, s27, {i*1024}")
        a.i(f"buffer_load_dwordx4 {vr(KVR+i*4)}, {'v2' if i % 8 < 4 else 'v3'}, s[8:11], s29 offen offset:{(i % 4)*1024}")

    def pq_loads(rp):
        L = []
        for j in range(5):
            L.append(f"s_add_u32 s29, s24, {j*4096}")
            L.append(f"buffer_load_dwordx4 {vr(PQF+(rp % 2)*20+j*4, 4, 'a')}, v{4+rp}, s[8:11], s29 offen")
        return L

    def wo_loads(j):
        L = [f"s_add_u32 s30, s25, {j*5120}"]
        for b in range(5):
            L.append(f"buffer_load_dwordx4 {vr(WOF+(j*6+b)*4, 4, 'a')}, {'v2' if b < 4 else 'v3'}, s[8:11], s30 offen offset:{(b % 4)*1024}")
        L.append(f"buffer_load_dwordx4 {vr(WOF+(j*6+5)*4, 4, 'a')}, {'v2' if j < 4 else 'v3'}, s[8:11], s26 offen offset:{(j % 4)*1024}")
        return L
    interleave(a, pq_loads(0) + pq_loads(1), [])
    stamp(a)
    conv = []
    zf = {}
    for zb in range(2):
        for j in ([0, 1, 2] if zb == 0 else [2, 3, 4]):
            r = ZF + len(zf) * 4
            zf[(zb, j)] = r
            for h in range(2):
                ab = 2 * j + h
                if ab // 5 == zb:
                    for jj in range(2):
                        conv.append(f"v_cvt_pk_bf16_f32 v{r+2*h+jj}, v{ZR+ab*4+2*jj}, v{ZR+ab*4+2*jj+1}")
                    for jj in range(2):
                        conv.append(f"v_cndmask_b32 v{r+2*h+jj}, 0, v{r+2*h+jj}, s[{40+2*(ab % 5)}:{41+2*(ab % 5)}]")
                else:
                    conv += [f"v_mov_b32 v{r+2*h}, 0", f"v_mov_b32 v{r+2*h+1}, 0"]
    kf = {}
    for b in range(10):
        for j in range(5):
            val = [(ab // 5 == b // 5 and abs(ab - b) <= 1) for ab in (2 * j, 2 * j + 1)]
            if not any(val):
                continue
            r = KF + len(kf) * 4
            kf[(b, j)] = r
            for h in range(2):
                ab = 2 * j + h
                if val[h]:
                    src = KVR + (13 * (b // 5) + 2 * (ab % 5) + (b % 5)) * 4
                    for jj in range(2):
                        conv.append(f"v_cvt_pk_bf16_f32 v{r+2*h+jj}, v{src+2*jj}, v{src+2*jj+1}")
                else:
                    conv += [f"v_mov_b32 v{r+2*h}, 0", f"v_mov_b32 v{r+2*h+1}, 0"]
    assert len(kf) == 18 and len(zf) == 6
    wl = sum([wo_loads(j) for j in range(5)], [])
    interleave(a, conv, wl[:14])
    stamp(a)

    def o_mfma(rp):
        N = NUM[rp % 2]
        L = []
        pq = lambda j: vr(PQF + (rp % 2) * 20 + j * 4, 4, 'a')
        for zb in range(2):
            first = True
            for (z2, j), r in zf.items():
                if z2 == zb:
                    L.append(mfma(vr(N + 40 + zb * 4), vr(r), pq(j), "0" if first else None)); first = False
        for b in range(10):
            first = True
            for (b2, j), r in kf.items():
                if b2 == b:
                    L.append(mfma(vr(N + b * 4), vr(r), pq(j), "0" if first else None)); first = False
        return L

    def o_valu(rp):
        N = NUM[rp % 2]; O = OF[rp % 2]
        L = []
        for h in range(8):
            L.append(f"v_add_f32 v{N+40+h}, {f32(1e-6)}, v{N+40+h}")
        for h in range(8):
            L.append(f"v_rcp_f32 v{N+40+h}, v{N+40+h}")
        for gq in range(2):
            d = N + 40 + gq * 4
            for k in range(3):
                L.append(f"v_cndmask_b32 v{TT+gq*3+k}, v{d+k}, v{d+k+1}, s[{50+2*k}:{51+2*k}]")
        for b in range(10):
            gq, bp = b // 5, b % 5
            fr = N + 40 + gq * 4 if bp == 0 else (N + 40 + gq * 4 + 3 if bp == 4 else TT + gq * 3 + bp - 1)
            for jj in range(4):
                L.append(f"v_mul_f32 v{N+b*4+jj}, v{N+b*4+jj}, v{fr}")
            for jj in range(2):
                L.append(f"v_cvt_pk_bf16_f32 v{O+b*2+jj}, v{N+b*4+2*jj}, v{N+b*4+2*jj+1}")
        return L

    def main_mfma(rp):
        O = OF[rp % 2]
        L = []
        for j in range(5):
            for b in range(6):
                L.append(mfma(vr(ACC + (rp * 6 + b) * 4, 4, 'a'), vr(WOF + (j * 6 + b) * 4, 4, 'a'), vr(O + j * 4), "0" if j == 0 else None))
        return L
    XR = 240
    interleave(a, o_mfma(0), wl[14:28])
    interleave(a, o_mfma(1), o_valu(0)[:40] + wl[28:])
    interleave(a, [], o_valu(0)[40:])
    interleave(a, [], pq_loads(2))
    interleave(a, main_mfma(0), o_valu(1) + pq_loads(3))
    stamp(a)
    interleave(a, o_mfma(2) + main_mfma(1), [])
    interleave(a, o_mfma(3), o_valu(2)[:40])
    interleave(a, [], o_valu(2)[40:])
    a.many(f"""v_and_b32 v10, 15, v1
              s_movk_i32 s20, 1280
              v_mul_lo_u32 v11, v10, s20
              v_lshl_add_u32 v11, v8, 3, v11
              v_lshlrev_b32 v12, 3, v10
              s_lshl_b32 s31, s17, 2
              s_add_u32 s31, s31, s16
              s_mul_i32 s32, s31, 20480
              s_mul_i32 s33, s18, 160
              s_add_u32 s32, s32, s33
              s_lshl_b32 s33, s31, 7
              s_add_u32 s33, s33, {WS_ST1}""")
    XR = 160
    xl = [f"buffer_load_dwordx2 {vr(XR+2*b, 2)}, v11, s[12:15], s32 offen offset:{b*32}" for b in range(5)]
    xl.append(f"buffer_load_dword v{XR+10}, v12, s[8:11], s33 offen offset:4")
    interleave(a, main_mfma(2), xl + o_valu(3))
    interleave(a, main_mfma(3), [])
    stamp(a)
    OUT = 176
    ksplit_reduce(a, ACC, 16, nb=6, f="a", OUT=OUT)
    stamp(a)
    a.i(f"v_add_f32 v{XR+10}, v{XR+10}, v{OUT+20}")
    for b in range(5):
        for jj in range(2):
            h = XR + b * 2 + jj
            a.i(f"v_lshlrev_b32 v14, 16, v{h}")
            a.i(f"v_and_b32 v15, 0xffff0000, v{h}")
            a.i(f"v_sub_f32 v14, v14, v{XR+10}")
            a.i(f"v_sub_f32 v15, v15, v{XR+10}")
            a.i(f"v_add_f32 v{OUT+b*4+2*jj}, v{OUT+b*4+2*jj}, v14")
            a.i(f"v_add_f32 v{OUT+b*4+2*jj+1}, v{OUT+b*4+2*jj+1}, v15")
    PK = 200
    for b in range(5):
        for jj in range(2):
            a.i(f"v_cvt_pk_bf16_f32 v{PK+b*2+jj}, v{OUT+b*4+2*jj}, v{OUT+b*4+2*jj+1}")
    a.i(f"v_mul_f32 v14, v{OUT}, v{OUT}")
    for k in range(1, 20):
        a.i(f"v_fmac_f32 v14, v{OUT+k}, v{OUT+k}")
    a.many(f"""v_bfe_u32 v4, v1, 4, 1
              v_lshlrev_b32 v4, 9, v4
              v_lshl_add_u32 v4, v10, 4, v4
              v_lshrrev_b32 v6, 5, v1
              v_lshl_add_u32 v5, v6, 3, v4
              v_lshl_add_u32 v4, v6, 10, v4
              s_lshl_b32 s26, s17, 1
              s_lshr_b32 s27, s16, 1
              s_add_u32 s26, s26, s27
              s_mul_i32 s26, s26, 40
              s_mul_i32 s27, s18, 5
              s_add_u32 s26, s26, s27
              s_lshl_b32 s26, s26, 10
              s_and_b32 s27, s16, 1
              s_lshl_b32 s27, s27, 8
              s_add_u32 s27, s27, s26
              s_add_u32 s27, s27, {WS_H}
              s_add_u32 s26, s27, 4096
              v_mov_b32 v15, v14""")
    for p in range(2):
        r = PK + p * 4
        a.i(f"v_permlane32_swap_b32 v{r}, v{r+2}")
        a.i(f"v_permlane32_swap_b32 v{r+1}, v{r+3}")
        a.i(f"buffer_store_dwordx4 {vr(r)}, v4, s[8:11], s27 offen offset:{p*2048} {st_flags}")
    a.i(f"buffer_store_dwordx2 {vr(PK+8, 2)}, v5, s[8:11], s26 offen {st_flags}")
    a.many("""v_permlane16_swap_b32 v14, v15
              v_add_f32 v14, v14, v15
              v_mov_b32 v15, v14
              v_permlane32_swap_b32 v14, v15
              v_add_f32 v14, v14, v15""")
    a.many(f"""v_lshlrev_b32 v6, 5, v10
              v_lshlrev_b32 v7, 2, v10
              s_lshl_b32 s26, s31, 9
              s_lshl_b32 s27, s18, 2
              s_add_u32 s26, s26, s27
              s_add_u32 s26, s26, {WS_ST2}
              s_lshl_b32 s27, s31, 6
              s_add_u32 s27, s27, {WS_M2}
              s_mov_b64 s[34:35], exec
              s_mov_b64 exec, 0xffff""")
    a.i(f"buffer_store_dword v14, v6, s[8:11], s26 offen {st_flags}")
    a.i(f"buffer_store_dword v{XR+10}, v7, s[8:11], s27 offen {st_flags}")
    a.i("s_mov_b64 exec, s[34:35]")
    epilogue(a, name, kidx, 256)
    print(name, "instrs", a.ninstr, "nops", a.nops)
    return name, kernel_wrap(name, a.text(), 256, 256), 256, 256, 73728


def gen_p4(kidx, xmap="A", depth=3, rot=True, name="p4_kernel"):
    a = Asm()
    prologue(a, name, 256, [(4, KA_WS), (6, KA_OUT)])
    a.i("s_and_b32 s19, s2, 7")
    a.i("s_lshr_b32 s20, s2, 3")
    if xmap == "A":
        a.i("s_lshl_b32 s17, s19, 2"); a.i("s_lshr_b32 s21, s20, 3"); a.i("s_add_u32 s17, s17, s21")
        a.i("s_and_b32 s18, s20, 7")
        a.i("s_lshl_b32 s29, s21, 1"); a.i("s_add_u32 s29, s29, s18"); a.i("s_and_b32 s29, s29, 7")
    elif xmap == "B":
        a.i("s_lshr_b32 s17, s19, 1"); a.i("s_lshl_b32 s17, s17, 3"); a.i("s_lshr_b32 s21, s20, 2"); a.i("s_add_u32 s17, s17, s21")
        a.i("s_and_b32 s18, s19, 1"); a.i("s_lshl_b32 s18, s18, 2"); a.i("s_and_b32 s22, s20, 3"); a.i("s_add_u32 s18, s18, s22")
        a.i("s_lshl_b32 s29, s22, 1"); a.i("s_add_u32 s29, s29, s21"); a.i("s_and_b32 s29, s29, 7")
    if not rot:
        a.i("s_mov_b32 s29, 0")
    a.i("s_mul_i32 s29, s29, 7"); a.i("s_lshr_b32 s29, s29, 2")
    a.i("v_lshlrev_b32 v2, 4, v1")
    a.i("v_add_u32 v3, 0x1000, v2")
    a.i("s_mul_i32 s21, s16, 14")
    a.i("s_cmp_eq_u32 s16, 3")
    a.i("s_cselect_b32 s21, 41, s21")
    a.i("s_cmp_ge_u32 s16, 2")
    a.i("s_cselect_b32 s30, 13, 14")
    a.i("s_lshl_b32 s31, s30, 12")
    a.i("s_mul_i32 s32, s30, 5120")
    a.i("s_add_u32 s21, s21, s29")
    a.many("""v_lshrrev_b32 v8, 5, v1
              v_lshlrev_b32 v8, 11, v8
              v_bfe_u32 v9, v1, 4, 1
              v_lshl_add_u32 v8, v9, 9, v8
              v_and_b32 v9, 15, v1
              v_lshl_add_u32 v8, v9, 4, v8""")
    for rp in range(4):
        a.i(f"s_add_u32 s22, s16, {rp}")
        a.i("s_and_b32 s23, s22, 1")
        a.i("s_lshl_b32 s23, s23, 8")
        a.i("s_and_b32 s22, s22, 2")
        a.i("s_lshl_b32 s22, s22, 9")
        a.i("s_add_u32 s22, s22, s23")
        a.i(f"v_add_u32 v{4+rp}, s22, v8")
    a.i("s_mul_i32 s24, s17, 54"); a.i("s_add_u32 s24, s24, s21"); a.i("s_lshl_b32 s24, s24, 12"); a.i(f"s_add_u32 s24, s24, {WS_ACT}")
    a.i("s_mul_i32 s25, s18, 54"); a.i("s_add_u32 s25, s25, s21"); a.i("s_mul_i32 s25, s25, 5120"); a.i(f"s_add_u32 s25, s25, {WS_WD}")
    a.wait_lg0()
    srd(a, 8, 4, WS_BYTES)
    srd(a, 12, 6, OUT_BYTES)
    ACC = 16
    NK = 14

    def loads(j):
        base = (j % depth) * 36
        order = [("a", 0), ("w", 0), ("a", 1), ("a", 2), ("a", 3), ("w", 1), ("w", 2), ("w", 3), ("w", 4)]
        L = []
        for k, x in order:
            if k == "a":
                L.append(f"buffer_load_dwordx4 {vr(base+x*4, 4, 'a')}, v{4+x}, s[8:11], s24 offen")
            elif x < 4:
                L.append(f"buffer_load_dwordx4 {vr(base+16+x*4, 4, 'a')}, v2, s[8:11], s25 offen offset:{x*1024}")
            else:
                L.append(f"buffer_load_dwordx4 {vr(base+16+x*4, 4, 'a')}, v3, s[8:11], s25 offen")
        def adv():
            a.many("""s_add_u32 s24, s24, 4096
                      s_add_u32 s25, s25, 5120
                      s_add_u32 s29, s29, 1
                      s_cmp_eq_u32 s29, s30
                      s_cselect_b32 s33, s31, 0
                      s_cselect_b32 s34, s32, 0
                      s_cselect_b32 s29, 0, s29
                      s_sub_u32 s24, s24, s33
                      s_sub_u32 s25, s25, s34""")
        L.append(adv)
        return L

    for j in range(depth - 1):
        interleave(a, loads(j), [])
    stamp(a)
    HR = 100
    a.many(f"""v_bfe_u32 v10, v1, 4, 1
              v_lshlrev_b32 v10, 9, v10
              v_and_b32 v11, 15, v1
              v_lshl_add_u32 v10, v11, 4, v10
              v_lshrrev_b32 v12, 5, v1
              v_lshl_add_u32 v10, v12, 3, v10
              v_lshlrev_b32 v11, 2, v11
              s_lshl_b32 s26, s17, 1
              s_lshr_b32 s27, s16, 1
              s_add_u32 s26, s26, s27
              s_mul_i32 s26, s26, 40
              s_mul_i32 s27, s18, 5
              s_add_u32 s26, s26, s27
              s_lshl_b32 s26, s26, 10
              s_and_b32 s27, s16, 1
              s_lshl_b32 s27, s27, 8
              s_add_u32 s27, s27, s26
              s_add_u32 s27, s27, {WS_H}
              s_add_u32 s26, s27, 4096
              s_lshl_b32 s28, s17, 2
              s_add_u32 s28, s28, s16
              s_lshl_b32 s28, s28, 6
              s_add_u32 s28, s28, {WS_M2}""")
    hl = [f"buffer_load_dwordx2 {vr(HR+2*b, 2)}, v10, s[8:11], s27 offen offset:{b*1024}" for b in range(4)]
    hl += [f"buffer_load_dwordx2 {vr(HR+8, 2)}, v10, s[8:11], s26 offen",
           f"buffer_load_dword v{HR+10}, v11, s[8:11], s28 offen"]
    for j in range(NK):
        base = (j % depth) * 36
        M = []
        for b in range(5):
            for r in range(4):
                d = vr(ACC + (r * 5 + b) * 4)
                M.append(mfma(d, vr(base + 16 + b * 4, 4, 'a'), vr(base + r * 4, 4, 'a'), "0" if j == 0 else None))
        side = loads(j + depth - 1) if j + depth - 1 < NK else []
        if j + depth - 1 == NK:
            side = hl
        if j == NK - 1:
            a.i("s_cmp_ge_u32 s16, 2")
            a.i(f"s_cbranch_scc1 L_skip_{name}")
            a.cond_begin()
        interleave(a, M, side)
        if j == NK - 1:
            a.label(f"L_skip_{name}")
            a.cond_end()
        if j in (0, 6):
            stamp(a)
    stamp(a)
    ksplit_reduce(a, ACC, 112)
    stamp(a)
    for b in range(5):
        for jj in range(2):
            h = HR + b * 2 + jj
            a.i(f"v_lshlrev_b32 v8, 16, v{h}")
            a.i(f"v_and_b32 v9, 0xffff0000, v{h}")
            a.i(f"v_add_f32 v8, v8, v{HR+10}")
            a.i(f"v_add_f32 v9, v9, v{HR+10}")
            a.i(f"v_add_f32 v{ACC+b*4+2*jj}, v{ACC+b*4+2*jj}, v8")
            a.i(f"v_add_f32 v{ACC+b*4+2*jj+1}, v{ACC+b*4+2*jj+1}, v9")
    PK = 112
    for b in range(5):
        for jj in range(2):
            a.i(f"v_cvt_pk_bf16_f32 v{PK+b*2+jj}, v{ACC+b*4+2*jj}, v{ACC+b*4+2*jj+1}")
    a.i("v_and_b32 v2, 15, v1"); a.i("v_lshrrev_b32 v3, 4, v1")
    a.i("s_movk_i32 s20, 1280")
    a.i("v_mul_lo_u32 v2, v2, s20")
    a.i("v_and_b32 v4, 1, v3"); a.i("v_lshlrev_b32 v4, 5, v4"); a.i("v_lshrrev_b32 v5, 1, v3"); a.i("v_lshlrev_b32 v5, 4, v5")
    a.i("v_add3_u32 v4, v4, v5, v2")
    a.i("v_lshl_add_u32 v5, v3, 3, v2")
    a.i("s_lshl_b32 s20, s17, 2"); a.i("s_add_u32 s20, s20, s16"); a.i("s_mul_i32 s20, s20, 20480")
    a.i("s_mul_i32 s21, s18, 160"); a.i("s_add_u32 s20, s20, s21")
    for p in range(2):
        r = PK + p * 4
        a.i(f"v_permlane16_swap_b32 v{r}, v{r+2}")
        a.i(f"v_permlane16_swap_b32 v{r+1}, v{r+3}")
        a.i(f"buffer_store_dwordx4 {vr(r)}, v4, s[12:15], s20 offen offset:{p*64}")
    a.i(f"buffer_store_dwordx2 {vr(PK+8, 2)}, v5, s[12:15], s20 offen offset:128")
    epilogue(a, name, kidx, 256)
    return name, kernel_wrap(name, a.text(), 176, depth * 36), 256, 256, 61440


LOG2E = 1.4426950408889634
import struct
def f32(x):
    return "0x%08x" % struct.unpack("<I", struct.pack("<f", x))[0]


def mfma32(d, A, B, C=None):
    c = d if C is None else C
    return f"v_mfma_f32_32x32x16_bf16 {d}, {A}, {B}, {c}"


def gen_p3(kidx, name="p3_kernel", st_flags="", bar_at=0.7, rd_ahead=3, noepi=False, early=True):
    a = Asm()
    prologue(a, name, 256, [(4, KA_WS)])
    a.many("""s_and_b32 s19, s2, 7
              s_lshr_b32 s20, s2, 3
              s_lshr_b32 s17, s19, 1
              s_lshl_b32 s17, s17, 2
              s_lshr_b32 s21, s20, 3
              s_add_u32 s17, s17, s21
              s_and_b32 s18, s19, 1
              s_lshl_b32 s18, s18, 3
              s_and_b32 s21, s20, 7
              s_add_u32 s18, s18, s21
              v_lshlrev_b32 v2, 4, v1
              v_and_b32 v4, 31, v1""")
    a.i(f"s_mul_i32 s24, s18, {280*1024}"); a.i("s_mul_i32 s25, s16, 10240"); a.i("s_add_u32 s24, s24, s25"); a.i(f"s_add_u32 s24, s24, {WS_WGU}")
    a.i("s_lshl_b32 s26, s17, 2"); a.i("s_add_u32 s26, s26, s16"); a.i("s_mul_i32 s27, s26, 40960"); a.i(f"s_add_u32 s27, s27, {WS_H}")
    a.i("v_lshlrev_b32 v5, 5, v4"); a.i("s_lshl_b32 s28, s26, 10"); a.i(f"s_add_u32 s28, s28, {WS_ST2}")
    a.many(f"""s_lshl_b32 s30, s17, 1
              s_lshr_b32 s31, s16, 1
              s_add_u32 s30, s30, s31
              s_mul_i32 s30, s30, 108
              s_mul_i32 s31, s18, 7
              s_add_u32 s30, s30, s31
              s_lshl_b32 s30, s30, 1
              s_and_b32 s31, s16, 1
              s_add_u32 s30, s30, s31
              s_lshl_b32 s30, s30, 10
              s_add_u32 s30, s30, {WS_ACT}
              s_cmp_eq_u32 s18, 15
              s_cselect_b32 s31, 0x7f000000, s30""")
    a.wait_lg0()
    srd(a, 8, 4, WS_BYTES)
    ACC = 16
    ST = 80
    RA2, RSQ = 8, 9
    T = 96
    PK = 88
    WF = 160
    NB = 7

    def dma(blk):
        L = []
        toks = []
        for i in range(10):
            if i % 4 == 0:
                def setm(i=i):
                    a.i(f"s_add_u32 s34, s25, {(blk % 4) * 40960 + i * 1024}")
                    a.i("s_mov_b32 m0, s34")
                    a.i(f"s_add_u32 s35, s24, {blk * 40960 + i * 1024}")
                L.append(setm)
            tk = Tok(); toks.append(tk)
            L.append((f"buffer_load_dwordx4 v2, s[8:11], s35 offen offset:{(i % 4) * 1024} lds", tk))
        return L, toks

    def slab(k0, k1):
        L = []
        for kb in range(k0, k1):
            if kb % 4 == 0 or kb == k0:
                L.append(f"s_add_u32 s36, s27, {(kb // 4) * 4096}")
            L.append(f"buffer_load_dwordx4 {vr(kb*4, 4, 'a')}, v2, s[8:11], s36 offen offset:{(kb % 4) * 1024}")
        return L

    steps = sorted((gu_pos(c, kb), c, kb) for c in range(7) for kb in range(40))
    a.i("v_add_u32 v13, 0x10000, v2"); a.i("v_add_u32 v14, 0x20000, v2")

    def rd(n):
        p, c, kb = steps[n]
        off = ((p // 40) % 4) * 40960 + (p % 40) * 1024
        base = ["v2", "v13", "v14"][off >> 16]
        return f"ds_read_b128 {vr(WF + (n % 8) * 4, 4, 'a')}, {base} offset:{off & 0xffff}"

    def mm(n):
        p, c, kb = steps[n]
        d = vr(ACC + (c % 4) * 16, 16)
        return mfma32(d, vr(WF + (n % 8) * 4, 4, 'a'), vr(kb * 4, 4, 'a'), "0" if kb == 0 else None)

    def epi(c):
        L = []
        g0 = ACC + (c % 4) * 16
        u0 = g0 + 8
        pk = PK + (c % 2) * 4
        for hf in range(2):
            R = range(4 * hf, 4 * hf + 4)
            for j in R:
                L.append(f"v_mul_f32 v{T+j}, v{RA2}, v{g0+j}")
            for j in R:
                L.append(f"v_exp_f32 v{T+j}, v{T+j}")
                L.append(f"v_mul_f32 v{T+8+j}, v{g0+j}, v{u0+j}")
            for j in R:
                L.append(f"v_add_f32 v{T+j}, 1.0, v{T+j}")
            for j in R:
                L.append(f"v_rcp_f32 v{T+j}, v{T+j}")
                L.append(f"v_mul_f32 v{T+8+j}, v{RSQ}, v{T+8+j}")
            for j in R:
                L.append(f"v_mul_f32 v{T+8+j}, v{T+8+j}, v{T+j}")
            for jj in range(2 * hf, 2 * hf + 2):
                L.append(f"v_cvt_pk_bf16_f32 v{pk+jj}, v{T+8+2*jj}, v{T+8+2*jj+1}")
        L.append(f"s_add_u32 s37, {'s30' if c < 3 else 's31'}, {c*2048}")
        L.append(f"buffer_store_dwordx4 {vr(pk)}, v2, s[8:11], s37 offen {st_flags}")
        return L

    def stats():
        return [f"buffer_load_dwordx4 {vr(ST+q*4)}, v5, s[8:11], s28 offen offset:{q*16}" for q in range(2)]

    def stats_fin():
        L = [f"v_add_f32 v{ST}, v{ST}, v{ST+k}" for k in range(1, 8)]
        L.append(f"v_mov_b32 v{ST+1}, {f32(1e-5)}")
        L.append(f"v_fmac_f32 v{ST+1}, {f32(1/640)}, v{ST}")
        L.append(f"v_rsq_f32 v{RA2}, v{ST+1}")
        L.append(f"v_rcp_f32 v{RSQ}, v{ST+1}")
        L.append(f"v_mul_f32 v{RA2}, {f32(-LOG2E)}, v{RA2}")
        return L

    D = [dma(b) for b in range(NB)]
    interleave(a, D[0][0], [])
    interleave(a, slab(0, 8), [])
    stamp(a)
    side = {b: [] for b in range(NB)}
    side_late = {b: [] for b in range(NB)}
    side[0] = slab(8, 20) + D[1][0] + slab(20, 26)
    side_late[0] = slab(26, 32)
    side[1] = slab(32, 40) + stats() + D[2][0]
    side_late[1] = D[3][0]
    side[2] = stats_fin() + epi(0)
    side[3] = epi(1) + epi(2)[:20]
    side[4] = epi(2)[20:] + epi(3)
    side[5] = epi(4)
    side[6] = epi(5)
    for b in (4, 5, 6):
        side_late[b - 2] = D[b][0]
    if noepi:
        for b in (3, 4, 5, 6):
            side[b] = []
    a.wait_tok(D[0][1][-1])
    a.i("s_barrier")
    n = 0
    nrd = 0
    for blk in range(NB):
        main1, main2 = [], []
        cut = int(40 * bar_at)
        for i in range(40):
            tgt = main1 if i < cut else main2
            lim = min(n + rd_ahead + 1, (blk + 1) * 40 if i < cut else min((blk + 2) * 40, NB * 40))
            rds = []
            while nrd < lim:
                rds.append(rd(nrd)); nrd += 1
            def step(rds=rds, n=n):
                for x in rds:
                    a.i(x)
                a.i(mm(n))
            tgt.append(step)
            n += 1
        interleave(a, main1, side[blk])
        if blk + 1 < NB:
            a.wait_tok(D[blk + 1][1][-1])
            a.i("s_barrier")
        interleave(a, main2, side_late[blk])
        if blk in (0, 1, 3):
            stamp(a)
    stamp(a)
    interleave(a, epi(6), [])
    epilogue(a, name, kidx, 256)
    print(name, "instrs", a.ninstr, "nops", a.nops)
    return name, kernel_wrap(name, a.text(), 128, 192), 256, 256, 163840


def build(kernels, path):
    out = []
    for name, _, nwg, blk, lds in kernels:
        out.append(f"; @launch kernel={name} grid=({nwg},1,1) block=({blk},1,1) lds={lds}")
    out.append('.amdgcn_target "amdgcn-amd-amdhsa--gfx950"')
    seen = set()
    for name, txt, *_ in kernels:
        if name not in seen:
            out.append(txt); seen.add(name)
    open(path, "w").write("\n".join(out))
    print(path, sum(len(x) for x in out), "bytes")


def dummy(kidx):
    name = f"z{kidx}_kernel"
    a = Asm()
    prologue(a, name, 256, [(4, KA_WS)])
    a.wait_lg0()
    srd(a, 8, 4, WS_BYTES)
    epilogue(a, name, kidx, 256)
    return name, kernel_wrap(name, a.text(), 24, 0), 256, 256, 0
```

```python
import gen
from gen import *
from gen1 import *
from genb import *
from mk import final
gen.STAMPS = True
gen.DBG_STAMPS = None
p1 = gen_p1(0)
gen.DBG_STAMPS = (80, 80)
b = gen_b(1)
final([p1, b], "d1.s")
gen.DBG_STAMPS = (33, 8)
b = gen_b(1)
final([p1, b], "d2.s")
```

```python
import re

REG_RE = re.compile(r"\b([vas])\[(\d+):(\d+)\]|\b([vas])(\d+)\b|\b(vcc|exec|m0|scc|exec_lo|exec_hi|vcc_lo|vcc_hi)\b")
TRANS = ("v_exp_f32", "v_log_f32", "v_rcp_f32", "v_rsq_f32", "v_sqrt_f32", "v_sin_f32", "v_cos_f32")


def regs_of(op):
    out = []
    for m in REG_RE.finditer(op):
        if m.group(1):
            out += [(m.group(1), i) for i in range(int(m.group(2)), int(m.group(3)) + 1)]
        elif m.group(4):
            out.append((m.group(4), int(m.group(5))))
        else:
            n = m.group(6)
            if n.startswith("exec"):
                out.append(("x", "exec"))
            elif n.startswith("vcc"):
                out.append(("x", "vcc"))
            else:
                out.append(("x", n))
    return out


def split_ops(s):
    ops, depth, cur = [], 0, ""
    for ch in s:
        if ch in "[(":
            depth += 1
        if ch in "])":
            depth -= 1
        if ch == "," and depth == 0:
            ops.append(cur.strip()); cur = ""
        else:
            cur += ch
    if cur.strip():
        ops.append(cur.strip())
    return ops


class Tok:
    def __init__(self):
        self.kind = None
        self.seq = None


class Asm:
    def __init__(self):
        self.lines = []
        self.reset_state()
        self.ninstr = 0
        self.ever = set()
        self.nops = 0

    def reset_state(self):
        self.t = 0
        self.wr = {}
        self.mfma_c = {}
        self.st_data = {}
        self.vm_n = 0
        self.vm_done = 0
        self.lg_n = 0
        self.lg_done = 0
        self.pend = {}
        self.smem_pending = False

    def raw(self, s):
        self.lines.append(s)

    def label(self, name):
        self.lines.append(name + ":")

    def comment(self, s):
        self.lines.append("; " + s)

    def nop(self, n):
        while n > 0:
            k = min(n, 16)
            self.lines.append(f"s_nop {k-1}")
            self.t += k
            self.nops += k
            n -= k

    def fence(self):
        self.nop(13)
        self.wr.clear(); self.mfma_c.clear(); self.st_data.clear()

    def cond_begin(self):
        self._snap = (self.vm_n, self.vm_done, self.lg_n, self.lg_done, dict(self.pend), self.smem_pending)

    def cond_end(self):
        vm_n, vm_done, lg_n, lg_done, pend, sp = self._snap
        assert vm_n == self.vm_n and lg_n == self.lg_n, "memory ops inside conditional block"
        self.vm_done, self.lg_done, self.pend, self.smem_pending = vm_done, lg_done, pend, sp
        self.fence()

    guard = None
    _gopen = None
    _gn = 0

    def _guard(self, need):
        if self.guard is None:
            return
        if need and self._gopen is None:
            self._gn += 1
            self._gopen = f"{self.guard}_{self._gn}"
            self.lines.append(f"s_cbranch_execz {self._gopen}")
            self.t += 1
        elif not need and self._gopen is not None:
            self.lines.append(self._gopen + ":")
            self._gopen = None

    def guard_end(self):
        self._guard(False)
        self.guard = None

    def _wait(self, vm=None, lg=None):
        if vm is not None or lg is not None:
            self._guard(True)
        parts = []
        if vm is not None:
            parts.append(f"vmcnt({vm})")
        if lg is not None:
            parts.append(f"lgkmcnt({lg})")
        if parts:
            self.lines.append("s_waitcnt " + " ".join(parts))
            self.t += 1

    def need(self, vmseq=None, lgseq=None):
        vm = lg = None
        if vmseq is not None and vmseq >= self.vm_done:
            n = self.vm_n - 1 - vmseq
            vm = min(n, 63)
            self.vm_done = self.vm_n - vm
        if lgseq is not None and lgseq >= self.lg_done:
            n = self.lg_n - 1 - lgseq
            if self.smem_pending:
                n = 0
            lg = min(n, 15)
            self.lg_done = self.lg_n - lg
            if lg == 0:
                self.smem_pending = False
                for r in [r for r, p in self.pend.items() if p[0] == "sm"]:
                    del self.pend[r]
        self._wait(vm, lg)

    def wait_tok(self, *toks):
        vm = max([t.seq for t in toks if t.kind == "vm"], default=None)
        lg = max([t.seq for t in toks if t.kind == "lg"], default=None)
        self.need(vm, lg)

    def wait_vm0(self):
        if self.vm_done < self.vm_n:
            self.vm_done = self.vm_n
            self._wait(0, None)

    def wait_lg0(self, force=False):
        if self.lg_done < self.lg_n or self.smem_pending or force:
            self.lg_done = self.lg_n
            self.smem_pending = False
            for r in [r for r, p in self.pend.items() if p[0] == "sm"]:
                del self.pend[r]
            self._wait(None, 0)

    def wait_all(self):
        self.vm_done = self.vm_n; self.lg_done = self.lg_n; self.smem_pending = False
        self.pend.clear()
        self._wait(0, 0)

    def i(self, text, tok=None, needs=()):
        text = text.strip()
        mn, _, rest = text.partition(" ")
        ops = split_ops(rest)
        dsts, srcs = [], []
        kind = None
        is_mfma = mn.startswith("v_mfma")
        is_valu = mn.startswith("v_") and not is_mfma
        is_vmem = mn.startswith("buffer_") or mn.startswith("global_")
        is_ds = mn.startswith("ds_")
        is_smem = mn.startswith("s_load") or mn.startswith("s_memtime") or mn.startswith("s_memrealtime") or mn.startswith("s_buffer_load")
        is_salu = mn.startswith("s_") and not is_smem
        lds_dma = is_vmem and re.search(r"\blds\b", rest) is not None
        cregs = []
        if is_mfma:
            dsts = regs_of(ops[0]); srcs = regs_of(ops[1]) + regs_of(ops[2]); cregs = regs_of(ops[3])
            kind = "mfma8" if "32x32" in mn else "mfma4"
        elif is_valu:
            kind = "trans" if mn.replace("_e32", "").replace("_e64", "") in TRANS else "valu"
            if mn.startswith("v_permlane") and "swap" in mn:
                dsts = regs_of(ops[0]) + regs_of(ops[1]); srcs = list(dsts)
            elif mn.startswith(("v_add_co", "v_sub_co", "v_addc_co", "v_subrev_co")):
                dsts = regs_of(ops[0]) + regs_of(ops[1]); srcs = sum([regs_of(o) for o in ops[2:]], [])
            else:
                dsts = regs_of(ops[0]); srcs = sum([regs_of(o) for o in ops[1:]], [])
                if mn.startswith(("v_fmac", "v_dot2c", "v_pk_fmac")) or "dpp" in text or "row_" in text or "quad_perm" in text:
                    srcs += dsts
                if mn.startswith("v_cndmask") and len(ops) == 3:
                    srcs.append(("x", "vcc"))
        elif is_vmem:
            if ("load" in mn and not lds_dma) or ("atomic" in mn and re.search(r"\bsc0\b", rest)):
                dsts = regs_of(ops[0]); srcs = sum([regs_of(o) for o in ops[1:]], [])
                if "atomic" in mn:
                    srcs += dsts
            else:
                srcs = sum([regs_of(o) for o in ops], [])
            if lds_dma:
                srcs.append(("x", "m0"))
        elif is_ds:
            if mn.startswith(("ds_read", "ds_bpermute", "ds_permute", "ds_swizzle")):
                dsts = regs_of(ops[0]); srcs = sum([regs_of(o) for o in ops[1:]], [])
            else:
                srcs = sum([regs_of(o) for o in ops], [])
        elif is_smem:
            dsts = regs_of(ops[0]); srcs = sum([regs_of(o) for o in ops[1:]], [])
        elif is_salu:
            kind = "salu"
            if mn.startswith(("s_cmp", "s_cbranch", "s_branch", "s_barrier", "s_waitcnt", "s_nop", "s_sleep", "s_setprio", "s_endpgm")):
                srcs = sum([regs_of(o) for o in ops], [])
            else:
                dsts = regs_of(ops[0]); srcs = sum([regs_of(o) for o in ops[1:]], [])
                if "saveexec" in mn:
                    dsts.append(("x", "exec"))

        for r in srcs + cregs:
            if r[0] in "va" and r not in self.ever and r != ("v", 0):
                raise ValueError(f"read of never-written register {r} in: {text}")
        for r in dsts:
            self.ever.add(r)
        vmq = lgq = None
        for r in srcs + cregs + dsts:
            p = self.pend.get(r)
            if p:
                if p[0] == "vm":
                    vmq = max(vmq if vmq is not None else -1, p[1])
                elif p[0] == "lg":
                    lgq = max(lgq if lgq is not None else -1, p[1])
                else:
                    self.wait_lg0()
        for tk in needs:
            if tk.kind == "vm":
                vmq = max(vmq if vmq is not None else -1, tk.seq)
            elif tk.kind == "lg":
                lgq = max(lgq if lgq is not None else -1, tk.seq)
            else:
                raise ValueError("token not issued yet")
        self.need(vmq, lgq)
        for r in srcs + cregs + dsts:
            p = self.pend.get(r)
            if p and ((p[0] == "vm" and p[1] < self.vm_done) or (p[0] == "lg" and p[1] < self.lg_done)):
                del self.pend[r]
        if is_vmem and self.vm_n - self.vm_done >= 63:
            self.need(vmseq=self.vm_n - 63)
        if is_ds and self.lg_n - self.lg_done >= 15:
            self.need(lgseq=self.lg_n - 15)

        need = 0

        def req(tp, ws):
            nonlocal need
            need = max(need, ws - (self.t - tp - 1))

        for r in srcs + cregs:
            w = self.wr.get(r)
            if not w:
                continue
            tp, k = w
            isv = r[0] in "va"
            if k in ("valu", "trans"):
                if isv:
                    if is_mfma:
                        req(tp, 2)
                    if is_valu:
                        if mn.startswith(("v_readfirstlane", "v_readlane")):
                            req(tp, 1)
                        if mn.startswith("v_permlane"):
                            req(tp, 2)
                        if "dpp" in text or "row_" in text or "quad_perm" in text:
                            req(tp, 2)
                        if k == "trans":
                            req(tp, 1)
                else:
                    if is_vmem:
                        req(tp, 5)
                    if is_valu:
                        req(tp, 4 if mn.startswith(("v_readlane", "v_writelane")) else 2)
                    if is_salu or is_smem:
                        req(tp, 1)
            elif k in ("mfma4", "mfma8"):
                p4 = k == "mfma4"
                if is_mfma and r in cregs:
                    same = self.wr_range.get(r) == tuple(cregs) and kind == k
                    if not same:
                        req(tp, 6 if p4 else 10)
                else:
                    req(tp, 8 if p4 else 12)
            elif k == "salu":
                if r == ("x", "m0") and lds_dma:
                    req(tp, 1)
        for r in dsts:
            w = self.wr.get(r)
            if w and w[1] in ("mfma4", "mfma8") and not is_mfma:
                req(w[0], 8 if w[1] == "mfma4" else 12)
            if w and w[1] in ("mfma4", "mfma8") and is_mfma and r not in cregs:
                req(w[0], 8 if w[1] == "mfma4" else 12)
            c = self.mfma_c.get(r)
            if c and not is_mfma:
                req(c[0], 3 if c[1] == 4 else 7)
            s = self.st_data.get(r)
            if s is not None:
                req(s, 2)
        if is_mfma:
            w = self.wr.get(("x", "exec"))
            if w and w[1] in ("valu", "trans"):
                req(w[0], 4)
        if need > 0:
            self.nop(need)

        self._guard(is_vmem or is_ds or is_smem or is_mfma or mn == "s_barrier" or ("x", "exec") in dsts)
        self.lines.append(text)
        self.ninstr += 1
        tnow = self.t
        self.t += 1
        if mn == "s_nop":
            self.t += int(ops[0])
        if not hasattr(self, "wr_range"):
            self.wr_range = {}
        for r in dsts:
            if kind:
                self.wr[r] = (tnow, kind)
            else:
                self.wr.pop(r, None)
            if is_mfma:
                self.wr_range[r] = tuple(dsts)
        if is_mfma:
            for r in cregs:
                self.mfma_c[r] = (tnow, 8 if kind == "mfma8" else 4)
        if is_vmem and ("store" in mn or "atomic" in mn) and ("x4" in mn or "x3" in mn):
            for r in regs_of(ops[0]):
                self.st_data[r] = tnow
        if is_vmem:
            seq = self.vm_n
            self.vm_n += 1
            for r in dsts:
                self.pend[r] = ("vm", seq)
            if tok is not None:
                tok.kind = "vm"; tok.seq = seq
        elif is_ds:
            seq = self.lg_n
            self.lg_n += 1
            for r in dsts:
                self.pend[r] = ("lg", seq)
            if tok is not None:
                tok.kind = "lg"; tok.seq = seq
        elif is_smem:
            self.smem_pending = True
            for r in dsts:
                self.pend[r] = ("sm", 0)
        return tok

    wr_range = {}

    def many(self, text):
        for ln in text.strip().split("\n"):
            ln = ln.split(";")[0].strip()
            if ln:
                self.i(ln)

    def text(self):
        return "\n".join(self.lines) + "\n"


def vr(base, n=4, f="v"):
    return f"{f}[{base}:{base+n-1}]" if n > 1 else f"{f}{base}"


def kernel_wrap(name, body, vgpr, agpr, sgpr=102):
    acc = (vgpr + 3) // 4 * 4
    nfv = acc + agpr if agpr else vgpr
    return f""".text
.globl {name}
.p2align 8
.type {name},@function
{name}:
{body}
.section .rodata,"a"
.p2align 6
.amdhsa_kernel {name}
  .amdhsa_next_free_vgpr {nfv}
  .amdhsa_next_free_sgpr {sgpr}
  .amdhsa_accum_offset {acc}
  .amdhsa_group_segment_fixed_size 0
  .amdhsa_kernarg_size 80
  .amdhsa_user_sgpr_count 2
  .amdhsa_user_sgpr_kernarg_segment_ptr 1
  .amdhsa_system_sgpr_workgroup_id_x 1
  .amdhsa_float_denorm_mode_32 3
.end_amdhsa_kernel
"""


def interleave(a, main, side, ratio=None, start=0):
    def emit(x):
        if callable(x):
            x()
        elif isinstance(x, tuple):
            a.i(*x)
        else:
            a.i(x)
    n = len(main) - start
    m = len(side)
    si = 0
    for idx, x in enumerate(main):
        emit(x)
        if idx >= start and n > 0:
            tgt = (idx - start + 1) * m // n if ratio is None else min(m, int((idx - start + 1) * ratio))
            while si < tgt:
                emit(side[si]); si += 1
    while si < m:
        emit(side[si]); si += 1
```

```python
import gen
from gen import *
from asmgen import regs_of
from genb import mix

X_BYTES = 2048 * 1280
WQKV_BYTES = 640 * 3840
SLOT = 36864
POLL = 21
DRY_AFTER = 2
EARLY_D2 = False
NEARLY = 0
SPIN_SLEEP = 16


def spin(a, lbl, target, vtmp, stmp, srd_dbg, voff):
    a.raw(f"v_readfirstlane_b32 s{stmp}, v{vtmp}")
    a.raw("s_nop 1")
    a.raw(f"s_cmp_ge_u32 s{stmp}, {target}")
    a.raw(f"s_cbranch_scc1 {lbl}_ok")
    a.raw(f"s_mov_b32 s{stmp+1}, 0")
    a.label(f"{lbl}_loop")
    a.raw(f"s_sleep {SPIN_SLEEP}")
    a.raw(f"buffer_load_dword v{vtmp}, v{voff}, s[{srd_dbg}:{srd_dbg+3}], 0 offen sc1")
    a.raw("s_waitcnt vmcnt(0)")
    a.raw(f"v_readfirstlane_b32 s{stmp}, v{vtmp}")
    a.raw(f"s_add_u32 s{stmp+1}, s{stmp+1}, 1")
    a.raw(f"s_cmp_ge_u32 s{stmp+1}, 0x40000")
    a.raw(f"s_cbranch_scc1 {lbl}_ok")
    a.raw(f"s_cmp_lt_u32 s{stmp}, {target}")
    a.raw(f"s_cbranch_scc1 {lbl}_loop")
    a.label(f"{lbl}_ok")
    a.raw("s_nop 1")


def p1_gemm(a, role, name, st_flags, rot, dbg=""):
    isq = role == "q"
    ACC = 16
    XF, WFR = 0, 8
    a.many("""v_lshrrev_b32 v96, 3, v1
              v_and_b32 v97, 7, v1
              v_lshrrev_b32 v98, 4, v1
              s_movk_i32 s20, 1280""")
    for i in range(4):
        a.i(f"v_add_u32 v99, {8*i}, v96")
        a.i("v_mul_lo_u32 v99, v99, s20")
        a.i(f"v_add_u32 v100, {4*i}, v98")
        a.i("v_and_b32 v100, 7, v100")
        a.i("v_xor_b32 v100, v100, v97")
        a.i("v_lshl_add_u32 v99, v100, 4, v99")
        a.i(f"v_subrev_u32 v{4+i}, {1024*i}, v99")
    seg = 160 if isq else 1280
    a.i("s_mov_b32 s20, 52429"); a.i("s_movk_i32 s21, 3840")
    for i in range(5):
        a.i(f"v_add_u32 v99, {64*i}, v1")
        a.i("v_mul_lo_u32 v100, v99, s20")
        a.i("v_lshrrev_b32 v100, 20, v100")
        a.i("v_mul_u32_u24 v101, 20, v100")
        a.i("v_sub_u32 v99, v99, v101")
        a.i("v_mul_lo_u32 v100, v100, s21")
        a.i("v_lshl_add_u32 v100, v99, 4, v100")
        a.i("v_cmp_le_u32 vcc, 10, v99")
        a.i(f"v_mov_b32 v101, {seg-160}")
        a.i("v_cndmask_b32 v101, 0, v101, vcc")
        a.i("v_add_u32 v100, v100, v101")
        a.i(f"v_subrev_u32 v{8+i}, {1024*i if i < 4 else 0}, v100")
    a.many("""s_lshl_b32 s26, s17, 2
              s_add_u32 s26, s26, s16
              s_mul_i32 s26, s26, 40960
              s_mul_i32 s27, s16, 61440""")
    if isq:
        a.i("s_mul_i32 s20, s18, 320")
    else:
        a.i("s_mul_i32 s20, s18, 160"); a.i("s_add_u32 s20, s20, 640")
    a.many("""s_add_u32 s27, s27, s20
              s_mul_i32 s30, s16, 5120
              s_lshl_b32 s31, s16, 12
              s_add_u32 s31, s31, 20480
              s_mov_b32 s33, 0
              s_mov_b32 s29, 0
              s_mov_b32 s28, 0x7f000000""")

    def dmaA():
        L = ["s_add_u32 s34, s30, s33", "s_mov_b32 m0, s34", "s_add_u32 s34, s34, 4096"]
        L += [f"buffer_load_dwordx4 v{8+i}, s[56:59], s27 offen offset:{1024*i} lds" for i in range(4)]
        return L

    def dmaB():
        L = ["s_mov_b32 m0, s34", "s_add_u32 s34, s31, s33", "buffer_load_dwordx4 v12, s[56:59], s27 offen lds", "s_mov_b32 m0, s34",
             f"s_add_u32 s27, s27, {64*3840}"]
        L += [f"buffer_load_dwordx4 v{4+i}, s[12:15], s26 offen offset:{1024*i} lds" for i in range(4)]
        L += ["s_cmp_eq_u32 s29, 7", "s_cselect_b32 s35, s28, 128", "s_add_u32 s26, s26, s35", f"s_add_u32 s33, s33, {SLOT}", f"s_cmp_eq_u32 s33, {4*SLOT}", "s_cselect_b32 s33, 0, s33"]
        return L
    for st in range(2):
        interleave(a, dmaA() + dmaB(), [])
    a.many("""v_and_b32 v96, 31, v1
              v_lshrrev_b32 v97, 5, v1
              v_bfe_u32 v103, v1, 1, 3
              v_lshlrev_b32 v102, 7, v96
              s_lshl_b32 s20, s16, 12
              v_add_u32 v102, s20, v102""")
    for j in range(4):
        a.i(f"v_add_u32 v104, {2*j}, v97")
        a.i("v_xor_b32 v104, v104, v103")
        a.i(f"v_lshl_add_u32 v{98+j}, v104, 4, v102")
    a.many(f"""v_bfe_u32 v103, v1, 2, 2
              v_lshl_add_u32 v103, v97, 3, v103
              v_mul_u32_u24 v103, 320, v103
              v_bfe_u32 v104, v1, 4, 1
              v_lshl_add_u32 v103, v104, 5, v103
              v_and_b32 v104, 3, v1
              v_lshl_add_u32 v102, v104, 3, v103
              v_mov_b32 v114, 0""")
    for j in range(4):
        a.i(f"v_mov_b32 v{104+j}, v{98+j}")
    a.i("v_mov_b32 v112, v102")
    for r in range(80):
        a.i(f"v_mov_b32 v{ACC+r}, 0")

    def reads(j, nxt=False):
        L = [f"ds_read_b128 {vr(XF+(j % 2)*4, 4, 'a')}, v{108 if nxt else 104+j} offset:20480"]
        for blk in range(5):
            for u in range(2):
                L.append(f"ds_read_b64_tr_b16 {vr(WFR+(j % 2)*20+blk*4+u*2, 2, 'a')}, v{113 if nxt else 112} offset:{(16*j+4*u)*320+blk*64}")
        return L

    def mms(j):
        L = []
        for blk in range(5):
            d = vr(ACC + blk * 16, 16)
            w = vr(WFR + (j % 2) * 20 + blk * 4, 4, 'a'); x = vr(XF + (j % 2) * 4, 4, 'a')
            L.append(mfma32(d, w, x) if isq else mfma32(d, x, w))
        return L
    SV = 120
    a.many(f"""s_lshl_b32 s36, s17, 2
              s_add_u32 s36, s36, s16
              s_lshl_b32 s36, s36, 7
              s_add_u32 s36, s36, {WS_ST1}
              s_add_u32 s43, s36, 8192
              v_lshlrev_b32 v115, 2, v96
              v_lshlrev_b32 v116, 26, v97
              v_lshl_add_u32 v116, v116, 4, v115
              v_lshlrev_b32 v119, 4, v97
              s_mov_b32 s42, {f32(LOG2E)}""")
    ein = [f"buffer_load_dword v157, v115, s[8:11], s43 offen sc1"]
    if isq:
        a.many(f"""s_mul_i32 s37, s18, 640
                  s_add_u32 s37, s37, {WS_CS1}""")
        for blk in range(5):
            ein.append(f"buffer_load_dword v{152+blk}, v116, s[8:11], s37 offen offset:{128*blk} sc1")
        ein.append(f"buffer_load_dword v{SV}, v115, s[8:11], s36 offen sc1")
    else:
        a.many(f"""v_cmp_le_u32 vcc, 16, v96
                  v_mov_b32 v117, {2560-320}
                  v_cndmask_b32 v117, 0, v117, vcc
                  v_add_u32 v117, v117, v116
                  s_mul_i32 s37, s18, 320
                  s_add_u32 s37, s37, {WS_CS1 + 2560 - 4*320}""")
        offs = [("v116", 0), ("v116", 128), ("v117", 256), ("v116", 2560 + 64), ("v116", 2560 + 192)]
        for blk in range(5):
            ein.append(f"buffer_load_dword v{152+blk}, {offs[blk][0]}, s[8:11], s37 offen offset:{offs[blk][1]} sc1")
        for q in range(4):
            ein.append(f"buffer_load_dwordx4 {vr(SV+q*4)}, v119, s[8:11], s36 offen offset:{32*q} sc1")
    CW, CX = 160, 180
    corr = []
    for blk in range(5):
        r = CW + 4 * blk; c = 152 + blk
        corr += [f"v_cvt_pk_bf16_f32 v{r}, v{c}, v{c}", f"v_lshlrev_b32 v{r+1}, 16, v{r}", f"v_sub_f32 v{r+1}, v{c}, v{r+1}",
                 f"v_cvt_pk_bf16_f32 v{r+1}, v{r+1}, 0", f"v_mov_b32 v{r+2}, 0", f"v_mov_b32 v{r+3}, 0"]
    corr += ["v_sub_f32 v157, 0, v157", f"v_cvt_pk_bf16_f32 v{CX+1}, v157, 0", f"v_lshlrev_b32 v{CX}, 16, v{CX+1}",
             f"v_sub_f32 v{CX}, v157, v{CX}", f"v_cvt_pk_bf16_f32 v{CX}, v157, v{CX}", f"v_mov_b32 v{CX+2}, 0", f"v_mov_b32 v{CX+3}, 0"]
    RW = 20992
    L0 = 2 * SLOT
    LA, GA = 240, 248
    pre = []
    if not isq:
        pre += f"""s_mul_i32 s44, s16, 5
              s_mul_i32 s45, s16, 20
              s_mov_b32 s46, 52429
              s_sub_u32 s47, s18, 4
              s_mul_i32 s48, s47, {13*1024}
              s_add_u32 s48, s48, {WS_KV}
              s_mul_i32 s49, s47, 320
              s_add_u32 s49, s49, {WS_Z}
              s_sub_u32 s49, s49, s48
              s_mul_i32 s50, s16, {RW}
              s_add_u32 s50, s50, {L0}""".split("\n")
        for n in range(7):
            pre += f"""v_add_u32 v184, {64*n}, v1
                  v_mul_lo_u32 v185, v184, s46
                  v_lshrrev_b32 v185, 22, v185
                  v_mul_u32_u24 v186, 80, v185
                  v_sub_u32 v184, v184, v186
                  v_add_u32 v185, s44, v185
                  v_lshrrev_b32 v186, 2, v184
                  v_add_u32 v186, s45, v186
                  v_lshrrev_b32 v187, 3, v185
                  v_min_u32 v187, 1, v187
                  v_lshlrev_b32 v187, 5, v187
                  v_sub_u32 v187, v186, v187
                  v_add_u32 v187, 16, v187
                  v_lshl_add_u32 v187, v185, 6, v187
                  v_and_b32 v184, 3, v184
                  v_lshl_add_u32 v187, v187, 2, v184
                  v_lshlrev_b32 v{LA+n}, 2, v187
                  v_lshrrev_b32 v187, 2, v185
                  v_lshrrev_b32 v188, 4, v186
                  v_lshl_add_u32 v187, v187, 1, v188
                  v_and_b32 v185, 3, v185
                  v_lshl_add_u32 v187, v187, 2, v185
                  v_and_b32 v186, 15, v186
                  v_lshl_add_u32 v187, v187, 4, v186
                  v_lshl_add_u32 v187, v187, 2, v184
                  v_lshlrev_b32 v{GA+n}, 2, v187""".split("\n")
        pre += f"""v_subrev_u32 v184, 16, v1
              v_add_u32 v184, s45, v184
              v_lshlrev_b32 v184, 2, v184
              v_add_u32 v185, 20480, v184
              v_add_u32 v184, s49, v184
              v_cmp_le_u32 s[40:41], 16, v1
              v_cndmask_b32 v{LA+6}, v{LA+6}, v185, s[40:41]
              v_cndmask_b32 v{GA+6}, v{GA+6}, v184, s[40:41]
              v_lshlrev_b32 v190, 10, v97
              v_lshl_add_u32 v190, v96, 4, v190
              v_add_u32 v190, s50, v190
              v_lshlrev_b32 v191, 4, v97
              v_add_u32 v191, s50, v191""".split("\n")
    else:
        pre += f"""v_bfe_u32 v190, v1, 4, 1
                  v_lshlrev_b32 v190, 10, v190
                  v_lshl_add_u32 v190, v97, 8, v190
                  v_and_b32 v191, 15, v1
                  v_lshl_add_u32 v190, v191, 4, v190
                  s_lshl_b32 s48, s17, 1
                  s_lshr_b32 s49, s16, 1
                  s_add_u32 s48, s48, s49
                  s_mul_i32 s48, s48, 20
                  s_mul_i32 s49, s18, 5
                  s_add_u32 s48, s48, s49
                  s_lshl_b32 s48, s48, 2
                  s_and_b32 s49, s16, 1
                  s_lshl_b32 s49, s49, 1
                  s_add_u32 s48, s48, s49
                  s_lshl_b32 s48, s48, 10
                  s_add_u32 s48, s48, {WS_PQ}""".split("\n")
    pre = [x.strip() for x in pre if x.strip()]
    if EARLY_D2:
        interleave(a, dmaA(), [])
    interleave(a, pre, [])
    if DRY_AFTER < 3:
        a.i("s_mov_b64 exec, 0")
        a.i(f"s_branch L_epi_{role}_{name}")
        a.label(f"L_dry_{role}_{name}")
        a.i("s_mov_b64 exec, -1")
        a.fence()
    if not EARLY_D2:
        interleave(a, dmaA(), [])
    stamp(a)
    a.raw("s_waitcnt vmcnt(13)")
    a.i("s_barrier")
    a.i("s_mov_b32 s29, 0")
    a.i("s_mov_b32 s32, 0")
    interleave(a, reads(0), [])
    LP = f"L_lp_{role}_{name}"
    a.vm_done = a.vm_n = 0
    a.label(LP)
    for k in (5, 6, 9):
        a.i(f"s_cmp_eq_u32 s29, {k}")
        a.i(f"s_cbranch_scc1 {LP}_x{k}")
    a.label(f"{LP}_r")
    a.many(f"""s_add_u32 s32, s32, {SLOT}
              s_cmp_eq_u32 s32, {4*SLOT}
              s_cselect_b32 s32, 0, s32
              v_add_u32 v108, s32, v98
              v_add_u32 v113, s32, v102""")

    def cond(items, lim, tag):
        def f():
            a.i(f"s_cmp_ge_u32 s29, {lim}")
            a.i(f"s_cbranch_scc1 {LP}_{tag}")
            for x in items:
                a.i(x)
            a.label(f"{LP}_{tag}")
            a.vm_done = a.vm_n = 0
        return f
    dB = dmaB()
    interleave(a, mms(0), mix(reads(1), dB[:7]))
    interleave(a, mms(1), mix(reads(2), dB[7:]))
    interleave(a, mms(2), reads(3))
    a.raw("s_waitcnt vmcnt(9)")
    a.i("s_barrier")
    upd = [f"v_add_u32 v{104+j}, s32, v{98+j}" for j in range(4)] + ["v_mov_b32 v112, v113"]
    interleave(a, mms(3), mix(reads(0, True), dmaA()) + upd)
    a.i("s_add_u32 s29, s29, 1")
    a.i("s_cmp_lt_u32 s29, 10")
    a.i(f"s_cbranch_scc1 {LP}")
    a.i(f"s_branch {LP}_done")
    keep = (a.lg_n, a.lg_done, dict(a.pend), dict(a.wr), a.t)
    a.label(f"{LP}_x5")
    a.raw("buffer_load_dword v118, v114, s[60:63], 0 offen sc1")
    a.raw(f"s_branch {LP}_r")
    a.label(f"{LP}_x6")
    a.raw("s_waitcnt vmcnt(9)")
    spin(a, f"L_spin_{role}_{name}", 64, 118, 38, 60, 114)
    for x in ein:
        a.raw(x)
        for r in regs_of(x.split(",")[0]): a.ever.add(r)
    a.raw(f"s_branch {LP}_r")
    a.label(f"{LP}_x9")
    a.raw("s_waitcnt vmcnt(13)")
    a.pend = {}
    for x in corr:
        a.i(x)
    a.nop(2)
    a.raw(f"s_branch {LP}_r")
    a.label(f"{LP}_done")
    a.lg_n, a.lg_done, a.pend, a.wr, a.t = keep
    a.vm_done = a.vm_n = 0
    stamp(a)
    T = 208

    def cmf(blk):
        d = vr(ACC + blk * 16, 16)
        return mfma32(d, vr(CW + 4 * blk), vr(CX)) if isq else mfma32(d, vr(CX), vr(CW + 4 * blk))

    C1, CL, CE, CR = 184, 186, 188, 122

    def phi(blk, hf, dst_is_acc=True):
        R = range(8 * hf, 8 * hf + 8)
        R2 = range(8 * hf, 8 * hf + 8, 2)
        ac = lambda j: ACC + blk * 16 + j
        t = lambda j: T + (j % 8)
        t2 = lambda j: (ac(j) if dst_is_acc else T + 8 + (j % 8))
        rs = lambda j: (CR if isq else SV + j)
        L = []
        for j in R2: L.append(f"v_pk_fma_f32 {vr(t2(j), 2)}, {vr(ac(j), 2)}, {vr(rs(j), 2)}, {vr(C1, 2)}")
        for j in R2: L.append(f"v_pk_fma_f32 {vr(t(j), 2)}, {vr(t2(j), 2)}, {vr(CL, 2)}, {vr(CL, 2)} neg_lo:[0,0,1] neg_hi:[0,0,1]")
        for j in R: L.append(f"v_exp_f32 v{t(j)}, v{t(j)}")
        for j in R: L.append(f"v_med3_f32 v{t2(j)}, v{t(j)}, v{t2(j)}, 1.0")
        for j in R2: L.append(f"v_pk_add_f32 {vr(t2(j), 2)}, {vr(t2(j), 2)}, {vr(CE, 2)}")
        return L
    a.raw("s_waitcnt vmcnt(0)")
    a.wait_lg0()
    a.label(f"L_epi_{role}_{name}")
    a.guard = f"L_g{role}_{name}"
    for r, val in ((C1, "1.0"), (CL, "s42"), (CE, f32(1e-6))):
        a.i(f"v_mov_b32 v{r}, {val}"); a.i(f"v_mov_b32 v{r+1}, {val}")
    if isq:
        a.i(f"v_mov_b32 v{CR}, v{SV}"); a.i(f"v_mov_b32 v{CR+1}, v{SV}")
        for blk in range(5):
            a.i(cmf(blk))
        for blk in range(5):
            for x in phi(blk, 0) + phi(blk, 1):
                a.i(x)
            pk = 224 + (blk % 2) * 8
            for q in range(4):
                dst = pk + (q & 1) * 4 + (q >> 1) * 2
                for jj in range(2):
                    a.i(f"v_cvt_pk_bf16_f32 v{dst+jj}, v{ACC+blk*16+4*q+2*jj}, v{ACC+blk*16+4*q+2*jj+1}")
            a.i(f"s_add_u32 s51, s48, {blk*4096}")
            a.i(f"buffer_store_dwordx4 {vr(pk)}, v190, s[8:11], s51 offen {st_flags}")
            a.i(f"buffer_store_dwordx4 {vr(pk+4)}, v190, s[8:11], s51 offen offset:512 {st_flags}")
        a.guard_end()
        (a.i(f"s_cbranch_execz L_dry_{role}_{name}") if DRY_AFTER < 3 else None)
        return
    smask(a, 40, 0x0000FFFF0000FFFF)
    P = {0: 136, 1: 144, 2: 192, 3: 200, 4: 224}
    ONES = 232
    for blk in (0, 2, 3, 1, 4):
        a.i(cmf(blk))
    for k in range(4):
        a.i(f"v_mov_b32 v{ONES+k}, 0x3f803f80")

    def fin(blk):
        L = []
        for hf in range(2):
            R = range(8 * hf, 8 * hf + 8)
            ac = lambda j: ACC + blk * 16 + j
            if blk < 2:
                L += phi(blk, hf)
            else:
                if blk == 2:
                    L += phi(blk, hf, False)
                for j in range(8 * hf, 8 * hf + 8, 2): L.append(f"v_pk_mul_f32 {vr(ac(j), 2)}, {vr(ac(j), 2)}, {vr(SV+j, 2)}")
                if blk == 2:
                    for j in R: L.append(f"v_cndmask_b32 v{ac(j)}, v{ac(j)}, v{T+8+(j % 8)}, s[40:41]")
            for jj in range(4):
                L.append(f"v_cvt_pk_bf16_f32 v{P[blk]+hf*4+jj}, v{ac(8*hf+2*jj)}, v{ac(8*hf+2*jj+1)}")
        return L
    def prod(kb, vb, d):
        return [mfma32(vr(d, 16), vr(P[kb] + u * 4), vr(P[vb] + u * 4) if vb is not None else vr(ONES), "0" if u == 0 else None) for u in range(2)]
    def wr(kb, vb, d):
        L = []
        for qd in range(2 if kb == 2 else 4):
            if vb is None:
                L.append(f"ds_write_b128 v191, {vr(d+4*qd)} offset:{20480 + (8*kb+2*qd)*16}")
            else:
                es = {(0, 2): 0, (0, 3): 32, (1, 3): 0, (1, 4): 32, (2, 4): 32}[(kb, vb)]
                L.append(f"ds_write_b128 v190, {vr(d+4*qd)} offset:{((8*kb+2*qd)*64 + es)*16}")
        return L
    A0, A1, A2, A3, A4 = [ACC + 16 * b for b in range(5)]
    interleave(a, fin(0) + fin(2) + fin(3), [])
    interleave(a, prod(0, 2, A0) + prod(0, 3, A2) + prod(0, None, A3) + prod(2, None, 160), fin(1))
    a.i("s_barrier")
    interleave(a, prod(1, 3, A1) + prod(1, None, 100), fin(4) + wr(0, 2, A0) + wr(0, 3, A2))
    interleave(a, prod(1, 4, A4) + prod(2, 4, A0), wr(1, 3, A1))
    a.i("s_mov_b32 exec_lo, 1"); a.i("s_mov_b32 exec_hi, 1")
    interleave(a, wr(0, None, A3) + wr(2, None, 160) + wr(1, None, 100), [])
    a.i("s_mov_b64 exec, -1")
    interleave(a, wr(1, 4, A4) + wr(2, 4, A0), [])
    for n in range(7):
        a.i(f"v_add_u32 v{136+n}, {L0 + 2*RW}, v{LA+n}")
        a.i(f"v_add_u32 v{144+n}, {L0}, v{LA+n}")
    a.guard_end()
    (a.i(f"s_cbranch_execz L_dry_{role}_{name}") if DRY_AFTER < 3 else None)
    a.wait_lg0()
    a.i("s_barrier")
    for n in range(7):
        for w in range(4):
            a.i(f"ds_read_b32 v{32+4*n+w}, v{(144 if w < 2 else 136)+n} offset:{(w % 2)*RW}")
    for n in range(7):
        a.i(f"v_add_f32 v{32+4*n}, v{32+4*n}, v{33+4*n}")
        a.i(f"v_add_f32 v{34+4*n}, v{34+4*n}, v{35+4*n}")
        a.i(f"v_add_f32 v{32+4*n}, v{32+4*n}, v{34+4*n}")
        if n == 6:
            a.i("s_mov_b32 exec_hi, 15")
        a.i(f"buffer_atomic_add_f32 v{32+4*n}, v{GA+n}, s[8:11], s48 offen")
    a.i("s_mov_b64 exec, -1")


def row_reduce16(a, regs):
    for sh in (8, 4, 2, 1):
        for r in regs:
            a.i(f"v_add_f32_dpp v{r}, v{r}, v{r} row_ror:{sh} row_mask:0xf bank_mask:0xf")


def p1_aux(a, name, st_flags):
    OOB = 0x7f000000
    a.many(f"""s_cmp_lt_u32 s17, 30
              s_cselect_b32 s48, s56, s12
              s_cselect_b32 s49, s57, s13
              s_cselect_b32 s50, s58, s14
              s_mov_b32 s51, 0x20000
              s_cselect_b32 s52, 30720, 64
              s_cselect_b32 s53, 30720, 64
              s_cselect_b32 s54, 3, 4
              s_cselect_b32 s55, 7, 15
              s_movk_i32 s22, 1280
              s_cselect_b32 s22, 3840, s22
              s_mul_i32 s23, s16, 614400
              s_lshl_b32 s24, s17, 7
              s_add_u32 s23, s23, s24
              s_sub_u32 s33, s17, 30
              s_lshl_b32 s33, s33, 2
              s_add_u32 s33, s33, s16
              s_mul_i32 s24, s33, 20480
              s_cmp_lt_u32 s17, 30
              s_cselect_b32 s23, s23, s24
              s_cselect_b32 s52, s52, 256
              s_cselect_b32 s53, s53, 4096
              v_lshrrev_b32 v8, s54, v1
              v_and_b32 v9, s55, v1
              v_mul_lo_u32 v10, v8, s22
              v_lshl_add_u32 v10, v9, 4, v10""")
    for i in range(20):
        a.i(f"buffer_load_dwordx4 {vr(32+4*i)}, v10, s[48:51], s23 offen")
        a.i(f"s_add_u32 s23, s23, {'s53' if i % 5 == 4 else 's52'}")
    a.many(f"""v_lshlrev_b32 v2, 4, v1
              v_mov_b32 v4, 0
              v_mov_b32 v5, 0
              v_mov_b32 v6, 0
              v_mov_b32 v7, 0
              s_lshl_b32 s20, s17, 11
              s_lshl_b32 s21, s16, 9
              s_add_u32 s20, s20, s21
              s_add_u32 s20, s20, {WS_KV}
              s_mov_b32 exec_hi, 0""")
    a.i("buffer_store_dwordx4 v[4:7], v2, s[8:11], s20 offen sc1")
    a.i("s_mov_b64 exec, -1")
    a.many("""s_lshl_b32 s18, s17, 2
              s_add_u32 s18, s18, s16
              s_mul_i32 s19, s16, 40960
              v_lshrrev_b32 v112, 3, v1
              v_and_b32 v113, 7, v1
              v_bfe_u32 v114, v1, 4, 2
              v_lshlrev_b32 v115, 1, v114
              v_xor_b32 v113, v113, v115
              v_xor_b32 v115, 4, v113
              v_mul_u32_u24 v11, 1280, v112
              v_lshl_add_u32 v11, v113, 4, v11
              v_mul_u32_u24 v12, 3456, v112
              v_lshl_add_u32 v13, v115, 4, v12
              v_lshl_add_u32 v12, v113, 4, v12""")
    tasks = [("gu", 0, 0), ("wo", 0, 8192), ("gu", 256, 12288), ("wd", 0, 20480), ("wd", 256, 24576), ("gu", 512, 28672), ("wd", 512, 36864)]
    toks = {}

    def decode(ti):
        kind, add, lo = tasks[ti]
        n, ncg, shift = {"gu": (540, 27, 0), "wd": (540, 10, 228), "wo": (200, 10, 28)}[kind]
        stride = 3456 if kind == "gu" else 1280
        nk, base = {"gu": (40, WS_WGU), "wd": (54, WS_WD), "wo": (20, WS_WO)}[kind]
        a.many(f"""s_add_u32 s24, s18, {256 - shift}
                  s_and_b32 s24, s24, 255
                  s_add_u32 s24, s24, {add}
                  s_mul_hi_u32 s26, s24, {(1 << 32)//ncg + 1}
                  s_mul_i32 s25, s26, {ncg}
                  s_sub_u32 s25, s24, s25
                  s_cmp_lt_u32 s24, {n}
                  s_cselect_b32 s27, 0, {OOB}
                  s_mul_i32 s28, s26, {32*stride}
                  s_lshl_b32 s29, s25, 7
                  s_add_u32 s28, s28, s29
                  s_add_u32 s28, s28, s27
                  s_mul_i32 s29, s25, {4*nk*1024}
                  s_lshl_b32 s26, s26, {11 if kind == 'gu' else 10}
                  s_add_u32 s29, s29, s26
                  s_add_u32 s29, s29, s27
                  s_add_u32 s{36+ti}, s29, {base}""")

    def issue(ti):
        kind, add, lo = tasks[ti]
        decode(ti)
        stride = 3456 if kind == "gu" else 1280
        for img in range(2 if kind == "gu" else 1):
            sr = {"gu": (68, 72)[img], "wd": 44, "wo": 64}[kind]
            vo = {"gu": (12, 13)[img], "wd": 11, "wo": 11}[kind]
            for i in range(4):
                a.i(f"s_add_u32 s30, s19, {lo + img*4096 + i*1024}")
                a.i("s_mov_b32 m0, s30")
                a.i(f"s_add_u32 s31, s28, {8*i*stride}")
                tk = Tok(); toks[ti] = tk
                a.i(f"buffer_load_dwordx4 v{vo}, s[{sr}:{sr+3}], s31 offen lds", tk)
    for ti in range(NEARLY):
        issue(ti)
    for k in range(8):
        a.i(f"v_mov_b32 v{16+k}, 0")
    a.i("s_cmp_ge_u32 s17, 30")
    a.i(f"s_cbranch_scc1 L_aux_stats_{name}")
    st0 = (a.vm_n, a.vm_done, dict(a.pend))
    SCR = 3 * 40960 + 36864
    a.many("""s_mov_b32 s22, 0x3f80
              s_mov_b32 s23, 0x3f800000""")
    for i in range(20):
        for d in range(4):
            a.i(f"v_dot2_f32_bf16 v{16+2*d}, v{32+4*i+d}, s22, v{16+2*d}")
            a.i(f"v_dot2_f32_bf16 v{17+2*d}, v{32+4*i+d}, s23, v{17+2*d}")
    a.nop(4)
    for k in range(8):
        a.i(f"v_add_f32_dpp v{16+k}, v{16+k}, v{16+k} row_ror:8 row_mask:0xf bank_mask:0xf")
    for sw in ("v_permlane16_swap_b32", "v_permlane32_swap_b32"):
        for k in range(8): a.i(f"v_mov_b32 v{24+k}, v{16+k}")
        for k in range(8): a.i(f"{sw} v{16+k}, v{24+k}")
        for k in range(8): a.i(f"v_add_f32 v{16+k}, v{16+k}, v{24+k}")
    a.many(f"""v_lshlrev_b32 v10, 5, v9
              s_lshl_b32 s20, s16, 8
              s_add_u32 s20, s20, {SCR}
              v_add_u32 v10, s20, v10
              ds_write_b128 v10, v[16:19]
              ds_write_b128 v10, v[20:23] offset:16
              v_lshlrev_b32 v10, 2, v1
              v_add_u32 v24, {SCR}, v10""")
    a.wait_lg0()
    a.i("s_barrier")
    for w in range(4):
        a.i(f"ds_read_b32 v{16+w}, v24 offset:{256*w}")
    a.many(f"""v_add_f32 v16, v16, v17
              v_add_f32 v18, v18, v19
              v_add_f32 v16, v16, v18
              s_lshl_b32 s20, s17, 8
              s_add_u32 s20, s20, {WS_CS1}
              s_cmp_eq_u32 s16, 0
              s_cselect_b32 s20, s20, {OOB}""")
    a.i("buffer_store_dword v16, v10, s[8:11], s20 offen sc1")
    a.i(f"s_branch L_aux_sig_{name}")
    a.label(f"L_aux_stats_{name}")
    a.vm_n, a.vm_done, a.pend = st0[0], st0[1], dict(st0[2])
    a.fence()
    a.i("s_mov_b32 s22, 0x3f803f80")
    for i in range(4):
        for d in range(20):
            r = 32 + 20 * i + d
            a.i(f"v_dot2_f32_bf16 v{16+2*i}, v{r}, s22, v{16+2*i}")
            a.i(f"v_dot2_f32_bf16 v{17+2*i}, v{r}, v{r}, v{17+2*i}")
    a.nop(4)
    row_reduce16(a, range(16, 24))
    for i in range(4):
        s_, q_ = 16 + 2 * i, 17 + 2 * i
        a.many(f"""v_mul_f32 v{q_}, {f32(1/640)}, v{q_}
                  v_mul_f32 v24, {f32(1/640)}, v{s_}
                  v_fma_f32 v{s_}, -v24, v24, v{q_}
                  v_max_f32 v{s_}, 0, v{s_}
                  v_add_f32 v{s_}, {f32(1e-5)}, v{s_}
                  v_rsq_f32 v{s_}, v{s_}
                  v_mov_b32 v{q_}, v24""")
    a.many(f"""v_lshlrev_b32 v10, 2, v8
              s_lshl_b32 s20, s33, 6
              s_add_u32 s20, s20, {WS_ST1}
              s_cmp_lt_u32 s17, 62
              s_cselect_b32 s20, s20, {OOB}
              s_add_u32 s21, s20, 8192
              s_mov_b32 exec_lo, 0x00010001
              s_mov_b32 exec_hi, 0x00010001""")
    for i in range(4):
        a.i(f"buffer_store_dword v{16+2*i}, v10, s[8:11], s20 offen offset:{16*i} sc1")
        a.i(f"buffer_store_dword v{17+2*i}, v10, s[8:11], s21 offen offset:{16*i} sc1")
    a.i("s_mov_b64 exec, -1")
    a.label(f"L_aux_sig_{name}")
    a.wait_all()
    a.fence()
    stamp(a)
    a.i("s_barrier")
    a.many("""v_mov_b32 v4, 1
              v_mov_b32 v5, 0
              s_cmp_eq_u32 s16, 0""")
    a.i(f"s_cselect_b32 s20, 0, {OOB}")
    a.i("s_mov_b64 exec, 1")
    a.i("buffer_atomic_add v4, v5, s[60:63], s20 offen sc1")
    a.i("s_mov_b64 exec, -1")
    for ti in range(NEARLY, len(tasks)):
        issue(ti)
    a.many(f"""s_add_u32 s24, s18, {256-28}
              s_and_b32 s24, s24, 255
              s_sub_u32 s24, s24, 200
              s_mul_i32 s33, s24, 12
              s_cmp_lt_u32 s24, 56
              s_cselect_b32 s33, s33, 0x10000
              v_lshrrev_b32 v14, 4, v1
              v_and_b32 v37, 15, v1
              v_mul_u32_u24 v38, 1280, v14
              v_lshl_add_u32 v38, v37, 4, v38
              s_mul_i32 s32, s33, 1280""")
    for i in range(3):
        for m in range(5):
            a.i(f"buffer_load_dwordx4 {vr(128+20*i+4*m)}, v38, s[64:67], s32 offen offset:{256*m}")
        a.i("s_add_u32 s32, s32, 5120")
    a.many("""v_bfe_u32 v15, v1, 2, 2
              v_and_b32 v16, 3, v1
              v_lshlrev_b32 v16, 3, v16
              v_add_u32 v16, s19, v16
              v_lshl_add_u32 v17, v14, 2, v15
              v_lshrrev_b32 v18, 1, v14
              v_and_b32 v19, 1, v14
              v_lshl_add_u32 v20, v19, 2, v15
              v_lshl_add_u32 v20, v18, 4, v20
              v_lshl_add_u32 v21, v18, 2, v15""")
    for k, (rowreg, base) in enumerate([(17, 24), (20, 28), (21, 32)]):
        a.i(f"v_bfe_u32 v22, v{rowreg}, 1, 2")
        if k == 2:
            a.i("v_lshlrev_b32 v23, 1, v19")
            a.i("v_xor_b32 v22, v22, v23")
        a.i(f"v_lshl_add_u32 v23, v{rowreg}, 7, v16")
        if k == 2:
            a.i("v_lshl_add_u32 v23, v19, 12, v23")
        for nb in range(4):
            a.i(f"v_xor_b32 v36, {nb}, v22")
            a.i(f"v_lshl_add_u32 v{base+nb}, v36, 5, v23")
    RB = [48, 80, 192, 224]
    for ti, (kind, add, lo) in enumerate(tasks):
        R0 = RB[ti % 4]
        a.wait_tok(toks[ti])
        if kind == "gu":
            for nb in range(4):
                for kbl in range(2):
                    r = R0 + (nb * 2 + kbl) * 4
                    for u in range(2):
                        a.i(f"ds_read_b64_tr_b16 {vr(r+2*u, 2)}, v{32+nb} offset:{lo + (16*kbl+8*u)*128}")
            for nb in range(4):
                a.i(f"s_add_u32 s29, s{36+ti}, {nb*40960}")
                for kbl in range(2):
                    a.i(f"buffer_store_dwordx4 {vr(R0+(nb*2+kbl)*4)}, v2, s[8:11], s29 offen offset:{kbl*1024} {st_flags}")
        else:
            nks, ar, us = (54, 28, 8) if kind == "wd" else (20, 24, 16)
            for nb in range(4):
                for u in range(2):
                    a.i(f"ds_read_b64_tr_b16 {vr(R0+nb*4+2*u, 2)}, v{ar+nb} offset:{lo + us*u*128}")
            for nb in range(4):
                a.i(f"s_add_u32 s29, s{36+ti}, {nb*nks*1024}")
                a.i(f"buffer_store_dwordx4 {vr(R0+nb*4)}, v2, s[8:11], s29 offen {st_flags}")
    a.i("s_mov_b32 s22, 0x3f803f80")
    for i in range(3):
        a.i(f"v_mov_b32 v{40+i}, 0")
    for i in range(3):
        for d in range(20):
            a.i(f"v_dot2_f32_bf16 v{40+i}, v{128+20*i+d}, s22, v{40+i}")
    a.nop(4)
    row_reduce16(a, range(40, 43))
    for i in range(3):
        a.many(f"""v_mul_f32 v{40+i}, {f32(1/640)}, v{40+i}
                  v_cvt_pk_bf16_f32 v{40+i}, v{40+i}, v{40+i}
                  v_add_u32 v44, s33, v14
                  v_add_u32 v44, {4*i}, v44
                  v_lshrrev_b32 v45, 5, v44
                  v_lshlrev_b32 v45, 10, v45
                  v_bfe_u32 v46, v44, 2, 2
                  v_lshl_add_u32 v45, v46, 8, v45
                  v_lshl_add_u32 v45, v37, 4, v45
                  v_bfe_u32 v46, v44, 4, 1
                  v_lshl_add_u32 v45, v46, 3, v45
                  v_and_b32 v46, 3, v44
                  v_lshl_add_u32 v45, v46, 1, v45
                  v_cmp_gt_u32 vcc, 640, v44
                  v_mov_b32 v46, {OOB}
                  v_cndmask_b32 v45, v46, v45, vcc
                  s_mov_b32 s20, {WS_RM}""")
        a.i(f"buffer_store_short v{40+i}, v45, s[8:11], s20 offen {st_flags}")


def gen_p1(kidx, name="p1_kernel", st_flags="", rot=True, dbg=""):
    a = Asm()
    prologue(a, name, 256, [(4, KA_WS), (6, KA_X), (20, KA_WQKV), (22, KA_DBG), (24, KA_WO), (26, KA_WG), (28, KA_WU), (30, KA_WD)])
    a.wait_lg0()
    srd(a, 8, 4, WS_BYTES)
    srd(a, 12, 6, X_BYTES)
    srd(a, 56, 20, WQKV_BYTES)
    srd(a, 60, 22, 256)
    srd(a, 64, 24, 640 * 1280)
    srd(a, 68, 26, 640 * 3456)
    srd(a, 72, 28, 640 * 3456)
    srd(a, 44, 30, 1728 * 1280)
    a.many("""s_and_b32 s19, s2, 7
              s_lshr_b32 s20, s2, 3
              s_cmp_lt_u32 s20, 8""")
    a.i(f"s_cbranch_scc0 L_gemm_{name}")
    a.many("""s_lshl_b32 s17, s19, 3
              s_add_u32 s17, s17, s20""")
    ns = getattr(a, "nstamp", 0)
    p1_aux(a, name, st_flags)
    a.i(f"s_branch L_fin_{name}")
    a.label(f"L_gemm_{name}")
    a.reset_state(); a.fence()
    a.nstamp = ns
    a.many("""s_sub_u32 s20, s20, 8
              s_mul_i32 s21, s20, 43
              s_lshr_b32 s21, s21, 8
              s_mul_i32 s22, s21, 6
              s_sub_u32 s22, s20, s22
              s_lshr_b32 s17, s19, 1
              s_lshl_b32 s17, s17, 2
              s_add_u32 s17, s17, s21
              s_and_b32 s23, s19, 1
              s_mul_i32 s29, s22, 3
              s_mul_i32 s24, s21, 7
              s_add_u32 s29, s29, s24
              s_mul_i32 s24, s29, 26
              s_lshr_b32 s24, s24, 8
              s_mul_i32 s24, s24, 10
              s_sub_u32 s29, s29, s24""")
    if not rot:
        a.i("s_mov_b32 s29, 0")
    a.i("s_cmp_lt_u32 s22, 2")
    a.i(f"s_cbranch_scc0 L_kv_{name}")
    a.many("""s_lshl_b32 s18, s23, 1
              s_add_u32 s18, s18, s22""")
    p1_gemm(a, "q", name, st_flags, rot, dbg)
    a.i(f"s_branch L_fin_{name}")
    a.label(f"L_kv_{name}")
    a.reset_state(); a.fence()
    a.nstamp = ns
    a.many("""s_lshl_b32 s18, s23, 2
              s_add_u32 s18, s18, s22
              s_add_u32 s18, s18, 2""")
    p1_gemm(a, "kv", name, st_flags, rot, dbg)
    a.label(f"L_fin_{name}")
    if gen.STAMPS:
        a.raw("s_waitcnt vmcnt(0) lgkmcnt(0)")
        a.reset_state(); a.fence()
    a.nstamp = 6
    epilogue(a, name, kidx, 256)
    print(name, "instrs", a.ninstr, "nops", a.nops)
    return name, kernel_wrap(name, a.text(), 256, 64), 256, 256, 163840
```

```python
import gen
from gen import *
from asmgen import regs_of


P4_ROT = False
NSLAB0 = 12
D23_IN_P3 = False
P2_ROT = True
SYNC_FINE = -1
POLL_SLEEP = 2
def signal_and_wait(a, name, phase, between=None):
    a.wait_vm0()
    a.wait_lg0()
    if SYNC_FINE == phase: stamp(a)
    a.i("s_barrier")
    if SYNC_FINE == phase: stamp(a)
    lbl = f"L_sy{phase}_{name}"
    a.i("s_cmp_lg_u32 s16, 0")
    a.i(f"s_cbranch_scc1 {lbl}_b")
    a.raw(f"s_mov_b32 s20, {WS_FLAG + phase*2048}")
    a.raw("v_mov_b32 v4, s63")
    a.raw("v_mov_b32 v5, 1")
    a.raw("s_mov_b64 exec, 1")
    a.raw("buffer_store_dword v5, v4, s[8:11], s20 offen sc1")
    a.raw("s_mov_b64 exec, -1")
    a.raw("v_and_b32 v4, 15, v1")
    a.raw("v_lshlrev_b32 v4, 2, v4")
    a.raw("v_add_u32 v4, s64, v4")
    a.raw("s_mov_b32 s21, 0")
    for k in range(3):
        a.raw(f"buffer_load_dword v{5+k}, v4, s[8:11], s20 offen sc1")
        a.raw(f"s_sleep {POLL_SLEEP}")
    a.label(f"{lbl}_p")
    for k in range(4):
        a.raw(f"buffer_load_dword v{5+(k+3) % 4}, v4, s[8:11], s20 offen sc1")
        a.raw("s_waitcnt vmcnt(3)")
        a.raw(f"v_cmp_ne_u32 vcc, 1, v{5+k}")
        a.raw("s_nop 1")
        a.raw(f"s_cbranch_vccz {lbl}_w")
        a.raw(f"s_sleep {POLL_SLEEP}")
    a.raw("s_add_u32 s21, s21, 1")
    a.raw("s_cmp_lt_u32 s21, 0x20000")
    a.raw(f"s_cbranch_scc1 {lbl}_p")
    a.label(f"{lbl}_w")
    if SYNC_FINE == phase:
        stamp(a); a.raw("s_mov_b32 s34, s21")
    a.raw("s_barrier")
    if SYNC_FINE == phase: stamp(a)
    a.raw("s_waitcnt vmcnt(0)")
    n0 = len(a.lines)
    a.fence()
    if between:
        between()
    copy = a.lines[n0:]
    a.raw(f"s_branch {lbl}_j")
    a.label(f"{lbl}_b")
    a.lines += copy
    a.raw("s_barrier")
    a.label(f"{lbl}_j")
    a.fence()


def flag_store(a, phase):
    a.many(f"""s_cmp_eq_u32 s16, 0
              s_cselect_b32 s20, {WS_FLAG + phase*2048}, s56
              v_mov_b32 v10, s63
              v_mov_b32 v11, 1
              s_mov_b64 exec, 1""")
    a.i("buffer_store_dword v11, v10, s[8:11], s20 offen sc1")
    a.i("s_mov_b64 exec, -1")


def poll_issue(a, phase, v):
    a.many(f"""v_and_b32 v{v+3}, 15, v1
              v_lshlrev_b32 v{v+3}, 2, v{v+3}
              v_add_u32 v{v+3}, s64, v{v+3}
              s_mov_b32 s79, {WS_FLAG + phase*2048}""")
    a.i(f"buffer_load_dword v{v}, v{v+3}, s[8:11], s79 offen sc1")


def poll_check(a, lbl, v):
    a.i(f"v_cmp_ne_u32 vcc, 1, v{v}")
    a.nop(2)
    a.i(f"s_cbranch_vccz {lbl}_ok")
    a.raw("s_mov_b32 s21, 0")
    a.label(f"{lbl}_lp")
    a.raw("s_sleep 3")
    a.raw(f"buffer_load_dword v{v}, v{v+3}, s[8:11], s79 offen sc1")
    a.raw("s_waitcnt vmcnt(0)")
    a.raw(f"v_cmp_ne_u32 vcc, 1, v{v}")
    a.raw("s_add_u32 s21, s21, 1")
    a.raw("s_cmp_ge_u32 s21, 0x40000")
    a.raw(f"s_cbranch_scc1 {lbl}_ok")
    a.raw("s_nop 1")
    a.raw(f"s_cbranch_vccnz {lbl}_lp")
    a.label(f"{lbl}_ok")
    a.nop(2)


def touches(a, sbase, nl_wave, vtmp, dst, add=0):
    L = []
    n = (nl_wave + 63) // 64
    for i in range(n):
        def f(i=i):
            if (i + 1) * 64 > nl_wave:
                a.i(f"v_min_u32 v{vtmp}, {nl_wave-1-64*i}, v1")
                a.i(f"v_lshlrev_b32 v{vtmp}, 7, v{vtmp}")
            else:
                a.i(f"v_lshlrev_b32 v{vtmp}, 7, v1")
            a.i(f"s_add_u32 s35, s{sbase}, {add + 8192*i}")
            a.i(f"buffer_load_dword v{dst}, v{vtmp}, s[8:11], s35 offen")
        L.append(f)
    return L


def p3_src(blk, i):
    if blk < 6:
        return 2 * (blk // 2) + i // 5, 20 * (blk % 2) + i % 5
    return 6, i


def p3_lds(c, kb):
    if c < 6:
        blk = 2 * (c // 2) + kb // 20
        w, r = (kb % 20) // 5, kb % 5
        return blk, (blk % 4) * 40960 + w * 10240 + ((c & 1) * 5 + r) * 1024
    return 6, 2 * 40960 + kb * 1024


def p3_dma(a, blk, vlane):
    L = []
    toks = []
    for i in range(10):
        c, kb = p3_src(blk, i)
        first = i in (0, 4, 5, 9) if blk < 6 else i % 4 == 0
        if first:
            i0 = i
            def setm(i=i, c=c, kb=kb):
                a.i(f"s_add_u32 s68, s67, {(blk % 4) * 40960 + i * 1024}")
                a.i("s_mov_b32 m0, s68")
                a.i(f"s_add_u32 s69, {'s66' if blk < 6 else 's59'}, {((c if c < 6 else 0) * 40 + kb) * 1024}")
            L.append(setm)
        tk = Tok(); toks.append(tk)
        L.append((f"buffer_load_dwordx4 v{vlane}, s[56:59 - 0], s69 offen offset:{(i - i0) * 1024} lds".replace("s[56:59 - 0]", "s[36:39]"), tk))
    return L, toks


def red_setup(a, stride, lds0, vbase):
    for rp in (1, 2, 3):
        a.i(f"s_add_u32 s20, s16, {rp}")
        a.i("s_and_b32 s20, s20, 3")
        a.i(f"s_mul_i32 s20, s20, {3*stride}")
        a.i(f"s_add_u32 s20, s20, {lds0 + (rp-1)*stride}")
        a.i(f"v_add_u32 v{vbase+rp-1}, s20, v2")
    a.i(f"s_mul_i32 s20, s16, {3*stride}")
    a.i(f"s_add_u32 s20, s20, {lds0}")
    a.i(f"v_add_u32 v{vbase+3}, s20, v2")


def mix(x, y):
    out = []
    k = 0
    for i, e in enumerate(x):
        out.append(e)
        while k < len(y) and (k + 1) * len(x) <= (i + 1) * len(y):
            out.append(y[k]); k += 1
    return out + y[k:]


def body_p2(a, pre_dma, tch0, tch, tch2):
    SF = "sc1"
    a.many(f"""s_add_u32 s19, s62, s18
              s_mul_i32 s19, s19, {1 if P2_ROT else 0}
              s_add_u32 s19, s19, s16
              s_and_b32 s19, s19, 3
              v_lshlrev_b32 v2, 4, v1
              v_add_u32 v3, 0x1000, v2
              v_lshrrev_b32 v8, 4, v1
              v_lshlrev_b32 v9, 4, v8""")
    a.many(f"""s_mul_i32 s22, s19, 5
              s_mul_i32 s27, s19, {26*1024}
              s_add_u32 s27, s27, {WS_KV}
              s_mul_i32 s28, s19, 640
              s_add_u32 s28, s28, {WS_Z}""")
    a.wait_lg0()
    srd(a, 8, 4, WS_BYTES)
    KVR, ZR = 16, 120
    KF, ZF = 160, 232
    NUM = [16, 64]; OF = [112, 132]; TT = 152
    ACC, WOF, PQF = 0, 96, 216
    ORDER = [1, 2, 3, 0]

    def z_loads(gq):
        return [f"buffer_load_dwordx4 {vr(ZR+ab*4)}, v9, s[8:11], s28 offen offset:{ab*64}" for ab in range(5 * gq, 5 * gq + 5)]

    def kv_loads(gq):
        L = []
        for i in range(13 * gq, 13 * gq + 13):
            if i % 8 == 0 or i == 13 * gq:
                L.append(f"s_add_u32 s29, s27, {(i // 8) * 8192}")
            L.append(f"buffer_load_dwordx4 {vr(KVR+i*4)}, {'v2' if i % 8 < 4 else 'v3'}, s[8:11], s29 offen offset:{(i % 4)*1024}")
        return L
    interleave(a, tch0 + z_loads(0) + kv_loads(0), [])
    srd(a, 12, 6, OUT_BYTES)
    srd(a, 36, 4, WS_WGU + 108 * 40960)
    srd(a, 96, 52, OUT_BYTES)
    for k, rp in enumerate(ORDER):
        a.i(f"s_add_u32 s23, s16, {rp}")
        a.i("s_and_b32 s23, s23, 3")
        a.i("s_lshl_b32 s23, s23, 10")
        a.i(f"v_add_u32 v{4+k}, s23, v2")
    a.many(f"""s_mul_i32 s24, s17, 20
              s_add_u32 s24, s24, s22
              s_lshl_b32 s24, s24, 12
              s_add_u32 s24, s24, {WS_PQ}
              s_mul_i32 s25, s18, 100
              s_add_u32 s25, s25, s22
              s_lshl_b32 s25, s25, 10
              s_add_u32 s25, s25, {WS_WO}
              s_lshl_b32 s26, s22, 10
              s_add_u32 s26, s26, {WS_RM}""")

    def pq_loads(k):
        L = []
        for j in range(5):
            L.append(f"s_add_u32 s29, s24, {j*4096}")
            L.append(f"buffer_load_dwordx4 {vr(PQF+(k % 2)*20+j*4, 4, 'a')}, v{4+k}, s[8:11], s29 offen")
        return L

    def wo_loads(b):
        L = [f"s_add_u32 s30, {'s25' if b < 5 else 's26'}, {b*20480 if b < 5 else 0}"]
        for j in range(5):
            L.append(f"buffer_load_dwordx4 {vr(WOF+(j*6+b)*4, 4, 'a')}, {'v2' if j < 4 else 'v3'}, s[8:11], s30 offen offset:{(j % 4)*1024}")
        return L
    pqtok = {2: [], 3: []}
    def pq_dma(k):
        L = []
        for j in range(5):
            def setm(j=j):
                a.i(f"s_add_u32 s29, s24, {j*4096}")
                a.i(f"s_add_u32 s68, s67, {(k-2)*5120 + j*1024}")
                a.i("s_mov_b32 m0, s68")
            L.append(setm)
            tk = Tok(); pqtok[k].append(tk)
            L.append((f"buffer_load_dwordx4 v{4+k}, s[8:11], s29 offen lds", tk))
        return L
    def pq_rd(k):
        return [(f"ds_read_b128 {vr(PQF+(k % 2)*20+j*4, 4, 'a')}, v159 offset:{(k-2)*5120 + j*1024}", None, pqtok[k]) for j in range(5)]
    interleave(a, pq_loads(0) + z_loads(1) + kv_loads(1) + pq_loads(1), [])
    for ap in range(5):
        m = 0
        for l in range(64):
            if (16 * ap + 4 * (l >> 4)) // 20 == (l & 3):
                m |= 1 << l
        smask(a, 40 + 2 * ap, m)
    smask(a, 50, 0xFFFFFFFFFFFF0000); smask(a, 52, 0xFFFFFFFF00000000); smask(a, 54, 0xFFFF000000000000)
    if P2_FINE: stamp(a)
    conv = [[], []]
    zf = {}
    for zb in range(2):
        for j in ([0, 1, 2] if zb == 0 else [2, 3, 4]):
            r = ZF + len(zf) * 4
            zf[(zb, j)] = r
            for h in range(2):
                ab = 2 * j + h
                if ab // 5 == zb:
                    for jj in range(2):
                        conv[zb].append(f"v_cvt_pk_bf16_f32 v{r+2*h+jj}, v{ZR+ab*4+2*jj}, v{ZR+ab*4+2*jj+1}")
                    for jj in range(2):
                        conv[zb].append(f"v_cndmask_b32 v{r+2*h+jj}, 0, v{r+2*h+jj}, s[{40+2*(ab % 5)}:{41+2*(ab % 5)}]")
                else:
                    conv[zb] += [f"v_mov_b32 v{r+2*h}, 0", f"v_mov_b32 v{r+2*h+1}, 0"]
    kf = {}
    for b in range(10):
        for j in range(5):
            val = [(ab // 5 == b // 5 and abs(ab - b) <= 1) for ab in (2 * j, 2 * j + 1)]
            if not any(val):
                continue
            r = KF + len(kf) * 4
            kf[(b, j)] = r
            for h in range(2):
                ab = 2 * j + h
                if val[h]:
                    src = KVR + (13 * (b // 5) + 2 * (ab % 5) + (b % 5)) * 4
                    for jj in range(2):
                        conv[b // 5].append(f"v_cvt_pk_bf16_f32 v{r+2*h+jj}, v{src+2*jj}, v{src+2*jj+1}")
                else:
                    conv[b // 5] += [f"v_mov_b32 v{r+2*h}, 0", f"v_mov_b32 v{r+2*h+1}, 0"]
    wl = sum([wo_loads(b) for b in range(6)], [])

    def o_mfma(k):
        N = NUM[k % 2]
        L = []
        pq = lambda j: vr(PQF + (k % 2) * 20 + j * 4, 4, 'a')
        for zb in range(2):
            first = True
            for (z2, j), r in zf.items():
                if z2 == zb:
                    L.append(mfma(vr(N + 40 + zb * 4), vr(r), pq(j), "0" if first else None)); first = False
            for b in range(5 * zb, 5 * zb + 5):
                first = True
                for (b2, j), r in kf.items():
                    if b2 == b:
                        L.append(mfma(vr(N + b * 4), vr(r), pq(j), "0" if first else None)); first = False
        return L

    def o_valu(k):
        N = NUM[k % 2]; O = OF[k % 2]
        L = []
        for gq in range(2):
            d = N + 40 + gq * 4
            for h in range(4):
                L.append(f"v_add_f32 v{d+h}, {f32(1e-6)}, v{d+h}")
            for h in range(4):
                L.append(f"v_rcp_f32 v{d+h}, v{d+h}")
            for q in range(3):
                L.append(f"v_cndmask_b32 v{TT+gq*3+q}, v{d+q}, v{d+q+1}, s[{50+2*q}:{51+2*q}]")
            for b in range(5 * gq, 5 * gq + 5):
                bp = b % 5
                fr = d if bp == 0 else (d + 3 if bp == 4 else TT + gq * 3 + bp - 1)
                for jj in range(4):
                    L.append(f"v_mul_f32 v{N+b*4+jj}, v{N+b*4+jj}, v{fr}")
                for jj in range(2):
                    L.append(f"v_cvt_pk_bf16_f32 v{O+b*2+jj}, v{N+b*4+2*jj}, v{N+b*4+2*jj+1}")
        return L

    def main_mfma(k):
        O = OF[k % 2]; rp = ORDER[k]
        L = []
        for bp in range(3):
            for j in range(5):
                for b in (2 * bp, 2 * bp + 1):
                    L.append(mfma(vr(ACC + (rp * 6 + b) * 4, 4, 'a'), vr(WOF + (j * 6 + b) * 4, 4, 'a'), vr(O + j * 4), "0" if j == 0 else None))
        return L

    def red_wr(k):
        rp = ORDER[k]
        L = [f"ds_write_b128 v{10+rp-1}, {vr(ACC+(rp*6+b)*4, 4, 'a')} offset:{b*1024}" for b in range(5)]
        def mean_wr():
            a.i("s_mov_b64 exec, 0xffff")
            a.i(f"ds_write_b128 v{10+rp-1}, {vr(ACC+(rp*6+5)*4, 4, 'a')} offset:5120")
            a.i("s_mov_b64 exec, -1")
        return L + [mean_wr]
    interleave(a, conv[0] + conv[1], wl[:14])
    if P2_FINE: stamp(a)
    red_setup(a, 5376, 81920, 10)
    a.i("s_mov_b32 s58, s20")
    interleave(a, o_mfma(0), wl[14:24])
    a.i("v_add_u32 v159, s67, v2")
    interleave(a, o_mfma(1), mix(o_valu(0)[:44], wl[24:]))
    interleave(a, [], mix(o_valu(0)[44:], pq_dma(2) + pq_dma(3)))
    if P2_FINE: stamp(a)
    xs = f"""s_lshl_b32 s31, s17, 2
              s_add_u32 s31, s31, s16
              s_mul_i32 s32, s31, 20480
              s_mul_i32 s33, s18, 160
              s_add_u32 s32, s32, s33
              s_lshl_b32 s33, s31, 6
              s_add_u32 s33, s33, {WS_ST1 + 8192}
              s_mul_i32 s34, s16, 3072
              s_add_u32 s34, s34, 146432
              s_mov_b32 m0, s34
              s_movk_i32 s20, 0x199a
              v_and_b32 v14, 15, v1
              v_lshlrev_b32 v9, 2, v14""".split("\n")
    xtok = []
    for i in range(3):
        xs += [f"v_add_u32 v15, {64*i}, v1", "v_mul_u32_u24 v158, s20, v15", "v_lshrrev_b32 v158, 16, v158",
               f"v_mul_u32_u24 v158, {1280-160}, v158", "v_lshl_add_u32 v15, v15, 4, v158"]
        if i:
            xs.append(f"v_subrev_u32 v15, {1024*i}, v15")
        tk = Tok(); xtok.append(tk)
        xs.append((f"buffer_load_dwordx4 v15, s[12:15], s32 offen offset:{1024*i} lds", tk))
    xs.append("buffer_load_dword v158, v9, s[8:11], s33 offen")
    xs = [x.strip() if isinstance(x, str) else x for x in xs]
    interleave(a, main_mfma(0), o_valu(1)[:60] + xs + pq_rd(2))
    interleave(a, o_mfma(2), o_valu(1)[60:] + pq_rd(3) + red_wr(0))
    a.wait_lg0()
    interleave(a, main_mfma(1), mix(o_valu(2)[:60], pre_dma[:10]))
    interleave(a, o_mfma(3), mix(o_valu(2)[60:] + red_wr(1), pre_dma[10:17]))
    if P2_FINE: stamp(a)
    XR = 160
    xl = [f"v_mul_u32_u24 v15, 160, v14", "v_lshl_add_u32 v15, v8, 3, v15", "v_add_u32 v15, s34, v15"]
    xl += [(f"ds_read_b64 {vr(XR+2*b, 2)}, v15 offset:{b*32}", None, xtok) for b in range(5)]
    xl.append(f"v_mov_b32 v{XR+10}, v158")
    interleave(a, main_mfma(2), mix(o_valu(3)[:60], pre_dma[17:]))
    interleave(a, [], o_valu(3)[60:] + red_wr(2) + tch2 + xl)
    a.wait_lg0()
    a.i("s_barrier")
    if P2_FINE: stamp(a)
    PS = 176
    side = []
    side += ["v_lshlrev_b32 v7, 4, v14", "v_add_u32 v7, s58, v7"]
    for q in range(3):
        side.append(f"ds_read_b32 v{76+q*4}, v7 offset:{q*5376+5120}")
    for b in range(5):
        for q in range(3):
            side.append(f"ds_read_b128 {vr(16+(b*3+q)*4)}, v13 offset:{q*5376+b*1024}")
    for b in (5, 0, 1, 2, 3, 4):
        for j in range(4 if b < 5 else 1):
            side.append(f"v_add_f32 v{PS+b*4+j}, v{16+b*12+j}, v{16+b*12+4+j}")
            side.append(f"v_add_f32 v{PS+b*4+j}, v{PS+b*4+j}, v{16+b*12+8+j}")
        if b == 5:
            side.append(f"v_add_f32 v{XR+10}, v{XR+10}, v{PS+20}")
    for b in range(5):
        for jj in range(2):
            h = XR + b * 2 + jj
            side.append(f"v_lshlrev_b32 v4, 16, v{h}")
            side.append(f"v_and_b32 v5, 0xffff0000, v{h}")
            side.append(f"v_add_f32 v{PS+b*4+2*jj}, v{PS+b*4+2*jj}, v4")
            side.append(f"v_add_f32 v{PS+b*4+2*jj+1}, v{PS+b*4+2*jj+1}, v5")
    side += f"""v_bfe_u32 v4, v1, 4, 1
              v_lshlrev_b32 v4, 9, v4
              v_lshl_add_u32 v4, v14, 4, v4
              v_lshrrev_b32 v6, 5, v1
              v_lshl_add_u32 v5, v6, 3, v4
              v_lshl_add_u32 v4, v6, 10, v4
              s_lshl_b32 s26, s17, 1
              s_lshr_b32 s27, s16, 1
              s_add_u32 s26, s26, s27
              s_mul_i32 s26, s26, 40
              s_mul_i32 s27, s18, 5
              s_add_u32 s26, s26, s27
              s_lshl_b32 s26, s26, 10
              s_and_b32 s27, s16, 1
              s_lshl_b32 s27, s27, 8
              s_add_u32 s27, s27, s26
              s_add_u32 s27, s27, {WS_H}
              s_add_u32 s26, s27, 4096
              v_lshlrev_b32 v6, 5, v14
              s_lshl_b32 s28, s31, 9
              s_lshl_b32 s29, s18, 2
              s_add_u32 s28, s28, s29
              s_add_u32 s28, s28, {WS_ST2}
              s_lshl_b32 s29, s31, 6
              s_add_u32 s29, s29, {WS_M2}""".split("\n")
    interleave(a, main_mfma(3), tch[2:] + [x.strip() for x in side])
    if P2_FINE: stamp(a)
    OUT = 16
    a.i(f"v_accvgpr_read_b32 v7, a{ACC+20}")
    for k in range(20):
        a.i(f"v_accvgpr_read_b32 v{OUT+k}, a{ACC+k}")
    a.i(f"v_add_f32 v{XR+10}, v{XR+10}, v7")
    for k in range(20):
        a.i(f"v_add_f32 v{OUT+k}, v{OUT+k}, v{PS+k}")
    for k in range(20):
        a.i(f"v_sub_f32 v{OUT+k}, v{OUT+k}, v{XR+10}")
    PK = 200
    for b in range(5):
        for jj in range(2):
            a.i(f"v_cvt_pk_bf16_f32 v{PK+b*2+jj}, v{OUT+b*4+2*jj}, v{OUT+b*4+2*jj+1}")
    for p in range(2):
        r = PK + p * 4
        a.i(f"v_permlane32_swap_b32 v{r}, v{r+2}")
        a.i(f"v_permlane32_swap_b32 v{r+1}, v{r+3}")
        a.i(f"buffer_store_dwordx4 {vr(r)}, v4, s[8:11], s27 offen offset:{p*2048} {SF}")
    a.i(f"buffer_store_dwordx2 {vr(PK+8, 2)}, v5, s[8:11], s26 offen {SF}")
    a.i(f"v_mul_f32 v14, v{OUT}, v{OUT}")
    a.i(f"v_mul_f32 v15, v{OUT+1}, v{OUT+1}")
    for k in range(2, 20):
        a.i(f"v_fmac_f32 v{14 + k % 2}, v{OUT+k}, v{OUT+k}")
    a.many("""v_add_f32 v14, v14, v15
              v_mov_b32 v15, v14
              v_permlane16_swap_b32 v14, v15
              v_add_f32 v14, v14, v15
              v_mov_b32 v15, v14
              v_permlane32_swap_b32 v14, v15
              v_add_f32 v14, v14, v15
              s_mov_b64 exec, 0xffff""")
    a.i(f"buffer_store_dword v14, v6, s[8:11], s28 offen {SF}")
    a.i(f"buffer_store_dword v{XR+10}, v9, s[8:11], s29 offen {SF}")
    a.i("s_mov_b64 exec, -1")


P3_STAMPS = (3,)
P2_FINE = False
T1N = 3
SYNC_FINE = -1
W4TOK = []
P4_NPRE = 10


def p4_wreg(j, b):
    n = j * 5 + b
    if j >= P4_NPRE:
        return vr(64 + (n - P4_NPRE * 5) * 4, 4, 'a')
    if n < 34:
        return vr(120 + n * 4)
    return vr(192 + (n - 34) * 4, 4, 'a')


KORD = [0, 1, 4, 5, 7, 8, 11, 12, 2, 3, 6, 9, 10, 13]


def p4_setup(a):
    a.many(f"""s_mul_i32 s21, s16, 14
              s_mul_i32 s70, s17, 54
              s_add_u32 s70, s70, s21
              s_lshl_b32 s70, s70, 12
              s_add_u32 s70, s70, {WS_ACT}
              s_mul_i32 s71, s18, 270
              s_add_u32 s71, s71, s21
              s_lshl_b32 s71, s71, 10
              s_add_u32 s71, s71, {WS_WD}
              s_cmp_eq_u32 s16, 3
              s_cselect_b32 s72, s56, s71
              s_cselect_b32 s74, s56, s70""")


def p4_wloads(a, j):
    L = []
    k = KORD[j]
    for b in range(5):
        L.append(f"s_add_u32 s73, {'s71' if k < 12 else 's72'}, {(b*54 + k)*1024}")
        L.append(f"buffer_load_dwordx4 {p4_wreg(j, b)}, v2, s[8:11], s73 offen")
    return L


AQ_TOTAL = [0]
def body_p3(a, D, bar_at=0.7, rd_ahead=6, dbg="", pace0=1, pace1=2, arate=3, w0=36, wstep=4.8, wgrp=4, pswitch=40):
    SF = "sc1"
    a.many(f"""v_lshlrev_b32 v2, 4, v1
              v_add_u32 v3, 0x1000, v2
              v_and_b32 v4, 31, v1
              s_lshl_b32 s26, s60, 2
              s_add_u32 s26, s26, s16
              s_mul_i32 s27, s26, 40960
              s_add_u32 s27, s27, {WS_H}
              v_lshlrev_b32 v5, 5, v4
              s_lshl_b32 s28, s26, 10
              s_add_u32 s28, s28, {WS_ST2}""")
    ACC = 16; ST = 80; RA2, RSQ = 8, 9; T = 96; PK = 88; WF = 160; NB = 7

    def slab(k0, k1):
        L = []
        for kb in range(k0, k1):
            if kb % 4 == 0 or kb == k0:
                L.append(f"s_add_u32 s34, s27, {(kb // 4) * 4096}")
            L.append(f"buffer_load_dwordx4 {vr(kb*4, 4, 'a')}, v2, s[8:11], s34 offen offset:{(kb % 4) * 1024} {'' if 'plain' in dbg else 'sc1'}")
        return L
    interleave(a, slab(0, NSLAB0), [])
    a.many(f"""s_lshl_b32 s30, s60, 1
              s_lshr_b32 s31, s16, 1
              s_add_u32 s30, s30, s31
              s_mul_i32 s30, s30, 108
              s_mul_i32 s31, s61, 7
              s_add_u32 s30, s30, s31
              s_lshl_b32 s30, s30, 1
              s_and_b32 s31, s16, 1
              s_add_u32 s30, s30, s31
              s_lshl_b32 s30, s30, 10
              s_add_u32 s30, s30, {WS_ACT}
              s_xor_b32 s32, s57, 1
              s_mul_i32 s32, s32, {6*2048}
              s_add_u32 s32, s32, s30
              s_lshl_b32 s31, s57, 11
              s_add_u32 s30, s30, s31
              s_cmp_eq_u32 s61, 15
              s_cselect_b32 s31, 0x7f000000, s30
              v_add_u32 v13, 0x10000, v2
              v_add_u32 v14, 0x20000, v2""")
    p4_setup(a)
    steps = sorted((gu_pos(c, kb), c, kb) for c in range(7) for kb in range(40))

    def rd(n):
        p, c, kb = steps[n]
        blk_, off = p3_lds(c, kb)
        assert blk_ == p // 40
        base = ["v2", "v13", "v14"][off >> 16]
        return f"ds_read_b128 {vr(WF + (n % 8) * 4, 4, 'a')}, {base} offset:{off & 0xffff}"

    def mm(n):
        p, c, kb = steps[n]
        sl = c % 4 if c < 6 else 2 + (kb & 1)
        d = vr(ACC + sl * 16, 16)
        return mfma32(d, vr(WF + (n % 8) * 4, 4, 'a'), vr(kb * 4, 4, 'a'), "0" if (kb == 0 or (c == 6 and kb == 1)) else None)

    sttok = {}
    def epi(c):
        L = []
        g0 = ACC + (c % 4) * 16
        u0 = g0 + 8
        pk = PK + (c % 2) * 4
        if c == 6:
            L += [f"v_add_f32 v{g0+j}, v{g0+j}, v{g0+16+j}" for j in range(16)]
        for hf in range(2):
            R = range(4 * hf, 4 * hf + 4)
            for j in R:
                L.append(f"v_mul_f32 v{T+j}, v{RA2}, v{g0+j}")
            for j in R:
                L.append(f"v_exp_f32 v{T+j}, v{T+j}")
                L.append(f"v_mul_f32 v{T+8+j}, v{g0+j}, v{u0+j}")
            for j in R:
                L.append(f"v_add_f32 v{T+j}, 1.0, v{T+j}")
            for j in R:
                L.append(f"v_rcp_f32 v{T+j}, v{T+j}")
                L.append(f"v_mul_f32 v{T+8+j}, v{RSQ}, v{T+8+j}")
            for j in R:
                L.append(f"v_mul_f32 v{T+8+j}, v{T+8+j}, v{T+j}")
            for jj in range(2 * hf, 2 * hf + 2):
                L.append(f"v_cvt_pk_bf16_f32 v{pk+jj}, v{T+8+2*jj}, v{T+8+2*jj+1}")
        L.append(f"s_add_u32 s35, {'s30' if c < 2 else ('s31' if c < 6 else 's32')}, {c*2048 if c < 6 else 0}")
        L.append((f"buffer_store_dwordx4 {vr(pk)}, v2, s[8:11], s35 offen {SF}", sttok.setdefault(c, Tok())))
        return L

    stats = [f"buffer_load_dwordx4 {vr(ST+q*4)}, v5, s[8:11], s28 offen offset:{q*16} sc1" for q in range(2)]
    sfin = [f"v_add_f32 v{ST}, v{ST}, v{ST+k}" for k in range(1, 8)]
    sfin += [f"v_mov_b32 v{ST+1}, {f32(1e-5)}", f"v_fmac_f32 v{ST+1}, {f32(1/640)}, v{ST}", f"v_rsq_f32 v{RA2}, v{ST+1}",
             f"v_rcp_f32 v{RSQ}, v{ST+1}", f"v_mul_f32 v{RA2}, {f32(-LOG2E)}, v{RA2}"]
    W4 = [p4_wloads(a, j) for j in range(P4_NPRE)]
    cut = int(40 * bar_at)

    def groups(L):
        out, cur = [], []
        for x in L:
            cur.append(x)
            t = x[0] if isinstance(x, tuple) else x
            if isinstance(t, str) and t.startswith("buffer_"):
                out.append(cur); cur = []
        if cur:
            out[-1] = out[-1] + cur
        return out
    vq = []
    if D23_IN_P3:
        vq += [(0, g) for g in groups(slab(NSLAB0, 30) + D[2][0] + slab(30, 40) + stats + D[3][0])]
    else:
        vq += [(0, g) for g in groups(slab(NSLAB0, 40) + stats)]
    for b in (4, 5, 6):
        vq += [(40 * (b - 3) + cut, g) for g in groups(D[b][0])]
    wq = [(w0 + int(wstep * k), g) for k, g in enumerate(groups(sum(W4, [])))]
    if "now4" in dbg:
        for j in range(P4_NPRE):
            for b in range(5):
                for r in regs_of(p4_wreg(j, b)): a.ever.add(r)
        wq = []
    if "hotw4" in dbg:
        wq = [(e, [x.replace("s71", "s27") if isinstance(x, str) else x for x in g]) for e, g in wq]
    if "latew4" in dbg:
        wq = [(160, g) for _, g in wq]
    aq = [(60, [x]) for x in sfin]
    for c in range(6):
        aq += [(80 * (c // 2 + 1) + 1, [x]) for x in epi(c)]
    atotal = len(aq)

    def emit(items):
        for x in items:
            if callable(x): x()
            elif isinstance(x, tuple): a.i(*x)
            else: a.i(x)
    NB = 7
    a.wait_tok(D[0][1][-1], D[1][1][-1])
    a.i("s_barrier")
    nrd = 0
    rdseq = {}
    last_v = -99
    for n in range(NB * 40):
        blk, i = n // 40, n % 40
        if i == cut and 1 <= blk < NB - 1:
            a.wait_tok(D[blk + 1][1][-1])
            if blk == 5:
                need = len(sfin) + sum(len(epi(c)) for c in range(4))
                while atotal - len(aq) < need:
                    emit(aq.pop(0)[1])
                a.wait_tok(sttok[3])
            a.i("s_barrier")
            if blk == 5:
                flag_store(a, 1)
        if n in (160, 240):
            need = len(sfin) + sum(len(epi(c)) for c in range(2 if n == 160 else 4))
            while atotal - len(aq) < need:
                emit(aq.pop(0)[1])
        lim = min(n + rd_ahead + 1, (blk + 1) * 40 if (i < cut and blk >= 1) else min((blk + 2) * 40, NB * 40))
        while nrd < lim:
            a.i(rd(nrd)); rdseq[nrd] = a.lg_n - 1; nrd += 1
        if n % wgrp == 0:
            a.need(lgseq=rdseq[min(n + wgrp - 1, nrd - 1)])
        a.i(mm(n))
        pace = pace0 if n < pswitch else pace1
        if n - last_v >= pace:
            if vq and vq[0][0] <= n:
                emit(vq.pop(0)[1]); last_v = n
            elif wq and wq[0][0] <= n:
                emit(wq.pop(0)[1]); last_v = n
        k = 0
        while aq and aq[0][0] <= n and k < arate:
            emit(aq.pop(0)[1]); k += 1
        if i == 39 and blk in P3_STAMPS:
            stamp(a)
        if n == 268:
            poll_issue(a, 1, 12)
    assert not vq
    for q in (aq, wq):
        while q:
            emit(q.pop(0)[1])
    interleave(a, epi(6), [])
    return sttok[6]


def body_p4(a, name, last_store, depth=4):
    ACC = 16
    NK = 14
    ORDER = [1, 2, 3, 0]
    a.many("""v_lshrrev_b32 v8, 5, v1
              v_lshlrev_b32 v8, 11, v8
              v_bfe_u32 v9, v1, 4, 1
              v_lshl_add_u32 v8, v9, 9, v8
              v_and_b32 v9, 15, v1
              v_lshl_add_u32 v8, v9, 4, v8""")
    for k, rp in enumerate(ORDER):
        a.i(f"s_add_u32 s22, s16, {rp}")
        a.i("s_and_b32 s23, s22, 1")
        a.i("s_lshl_b32 s23, s23, 8")
        a.i("s_and_b32 s22, s22, 2")
        a.i("s_lshl_b32 s22, s22, 9")
        a.i("s_add_u32 s22, s22, s23")
        a.i(f"v_add_u32 v{4+k}, s22, v8")

    def aloads(j):
        base = (j % depth) * 16
        k = KORD[j]
        L = [f"s_add_u32 s75, {'s70' if k < 12 else 's74'}, {k*4096}"]
        L += [f"buffer_load_dwordx4 {vr(base+x*4, 4, 'a')}, v{4+x}, s[8:11], s75 offen sc1" for x in range(4)]
        return L
    poll_check(a, f"L_pa_{name}", 12)
    for j in range(depth - 1):
        interleave(a, aloads(j), [])
    a.wait_tok(last_store)
    a.i("s_barrier")
    flag_store(a, 2)
    late_w = sum([p4_wloads(a, j) for j in range(P4_NPRE, 14)], [])
    HR = 100
    a.many(f"""v_bfe_u32 v10, v1, 4, 1
              v_lshlrev_b32 v10, 9, v10
              v_lshl_add_u32 v10, v9, 4, v10
              v_lshrrev_b32 v12, 5, v1
              v_lshl_add_u32 v10, v12, 3, v10
              v_lshlrev_b32 v11, 2, v9
              s_lshl_b32 s26, s17, 1
              s_lshr_b32 s27, s16, 1
              s_add_u32 s26, s26, s27
              s_mul_i32 s26, s26, 40
              s_mul_i32 s27, s18, 5
              s_add_u32 s26, s26, s27
              s_lshl_b32 s26, s26, 10
              s_and_b32 s27, s16, 1
              s_lshl_b32 s27, s27, 8
              s_add_u32 s27, s27, s26
              s_add_u32 s27, s27, {WS_H}
              s_add_u32 s26, s27, 4096
              s_lshl_b32 s28, s17, 2
              s_add_u32 s28, s28, s16
              s_lshl_b32 s28, s28, 6
              s_add_u32 s28, s28, {WS_M2}""")
    red_setup(a, 5120, 0, 96)
    hl = [f"buffer_load_dwordx2 {vr(HR+2*b, 2)}, v10, s[8:11], s27 offen offset:{b*1024} sc1" for b in range(4)]
    hl += [f"buffer_load_dwordx2 {vr(HR+8, 2)}, v10, s[8:11], s26 offen sc1",
           f"buffer_load_dword v{HR+10}, v11, s[8:11], s28 offen sc1"]

    def mm(j, k):
        rp = ORDER[k]
        return [mfma(vr(ACC + (rp * 5 + b) * 4), p4_wreg(j, b), vr((j % depth) * 16 + k * 4, 4, 'a'), "0" if j == 0 else None) for b in range(5)]
    NT = 3
    for j in range(NK - NT):
        M = []
        for b in range(5):
            for k in range(4):
                M.append(mm(j, k)[b])
        side = aloads(j + depth - 1) if j + depth - 1 < NK else []
        if j == 2:
            side = side + hl
        if j < 4:
            side = side + late_w[j * 10:(j + 1) * 10]
        if j == 3:
            side = side + [lambda: poll_issue(a, 2, 12)]
        if j + depth - 1 == 8:
            poll_check(a, f"L_pb_{name}", 12)
        interleave(a, M, side)
    wr = lambda k: [f"ds_write_b128 v{96+ORDER[k]-1}, {vr(ACC+(ORDER[k]*5+b)*4)} offset:{b*1024}" for b in range(5)]
    tail = lambda k: sum([mm(j, k) for j in range(NK - NT, NK)], [])
    interleave(a, tail(0), [])
    interleave(a, tail(1), wr(0), start=4)
    interleave(a, tail(2), wr(1), start=4)
    side = f"""v_lshrrev_b32 v3, 4, v1
              s_movk_i32 s20, 1280
              v_mul_lo_u32 v2, v9, s20
              v_and_b32 v4, 1, v3
              v_lshlrev_b32 v4, 5, v4
              v_lshrrev_b32 v5, 1, v3
              v_lshlrev_b32 v5, 4, v5
              v_add3_u32 v4, v4, v5, v2
              v_lshl_add_u32 v5, v3, 3, v2
              s_lshl_b32 s20, s17, 2
              s_add_u32 s20, s20, s16
              s_mul_i32 s20, s20, 20480
              s_mul_i32 s21, s18, 160
              s_add_u32 s20, s20, s21""".split("\n")
    PS = 180
    for b in range(5):
        for jj in range(2):
            h = HR + b * 2 + jj
            side.append(f"v_lshlrev_b32 v{PS+b*4+2*jj}, 16, v{h}")
            side.append(f"v_and_b32 v{PS+b*4+2*jj+1}, 0xffff0000, v{h}")
    side += [f"v_add_f32 v{PS+k}, v{PS+k}, v{HR+10}" for k in range(20)]
    interleave(a, tail(3), wr(2) + [x.strip() for x in side], start=3)
    a.wait_lg0()
    a.i("s_barrier")
    for b in range(5):
        for q in range(3):
            a.i(f"ds_read_b128 {vr(120+(b*3+q)*4)}, v99 offset:{(q*5+b)*1024}")
    for k in range(20):
        a.i(f"v_add_f32 v{ACC+k}, v{ACC+k}, v{PS+k}")
    PK = 112
    for b in range(5):
        for j in range(4):
            a.i(f"v_add_f32 v{120+b*12+j}, v{120+b*12+j}, v{124+b*12+j}")
            a.i(f"v_add_f32 v{ACC+b*4+j}, v{ACC+b*4+j}, v{128+b*12+j}")
        for j in range(4):
            a.i(f"v_add_f32 v{ACC+b*4+j}, v{ACC+b*4+j}, v{120+b*12+j}")
        for jj in range(2):
            a.i(f"v_cvt_pk_bf16_f32 v{PK+(b % 4)*2+jj}, v{ACC+b*4+2*jj}, v{ACC+b*4+2*jj+1}")
        if b % 2 == 1:
            r = PK + (b // 2) * 4
            a.i(f"v_permlane16_swap_b32 v{r}, v{r+2}")
            a.i(f"v_permlane16_swap_b32 v{r+1}, v{r+3}")
            a.i(f"buffer_store_dwordx4 {vr(r)}, v4, s[96:99], s20 offen offset:{(b // 2)*64}")
    a.i(f"buffer_store_dwordx2 {vr(PK, 2)}, v5, s[96:99], s20 offen offset:128")


def gen_b(kidx, name="pb_kernel", dbg="", p3kw={}):
    a = Asm()
    prologue(a, name, 256, [(4, KA_WS), (6, KA_X), (52, KA_OUT)])
    a.many(f"""s_and_b32 s19, s2, 7
              s_lshr_b32 s20, s2, 3
              s_lshr_b32 s62, s20, 3
              s_and_b32 s18, s20, 7
              s_lshr_b32 s60, s19, 1
              s_lshl_b32 s60, s60, 2
              s_add_u32 s60, s60, s62
              s_and_b32 s21, s19, 1
              s_lshl_b32 s17, s60, 1
              s_add_u32 s17, s17, s21
              s_lshl_b32 s61, s21, 3
              s_add_u32 s61, s61, s18
              s_lshl_b32 s64, s60, 7
              s_lshl_b32 s63, s61, 2
              s_add_u32 s63, s63, s64
              s_mul_i32 s59, s61, {280*1024}
              s_add_u32 s59, s59, {WS_WGU}
              s_mul_i32 s67, s16, 10240
              s_mul_i32 s66, s16, 5120
              s_add_u32 s66, s66, s59
              s_add_u32 s59, s59, s67
              s_and_b32 s57, s61, 1
              s_mov_b32 s56, 0x7f000000
              s_mul_i32 s22, s57, 40960
              s_add_u32 s66, s66, s22
              s_xor_b32 s22, s57, 1
              s_mul_i32 s22, s22, {6*40960}
              s_add_u32 s59, s59, s22""")
    D = [p3_dma(a, b, 2) for b in range(7)]
    body_p2(a, D[0][0] + D[1][0], [], [], [])
    if "fine" not in dbg and SYNC_FINE != 1:
        stamp(a)
    signal_and_wait(a, name, 0, between=None if D23_IN_P3 else (lambda: interleave(a, D[2][0] + D[3][0], [])))
    if SYNC_FINE != 1: stamp(a)
    last = body_p3(a, D, dbg=dbg, **p3kw)
    stamp(a)
    body_p4(a, name, last)
    epilogue(a, name, kidx, 256)
    print(name, "instrs", a.ninstr, "nops", a.nops)
    return name, kernel_wrap(name, a.text(), 256, 256), 256, 256, 163840
```

```python
S, D, F, H, DH = 2048, 640, 1728, 32, 20

KB = 1024
def _al(x, a=4096):
    return (x + a - 1) // a * a
_off = 0
def _alloc(n):
    global _off
    o = _off
    _off = _al(_off + n)
    return o

WS_PQ = _alloc(128 * 20 * KB)
WS_H = _alloc(64 * 40 * KB)
WS_ACT = _alloc(64 * 108 * KB)
WS_WO = _alloc(8 * 20 * 5 * KB)
WS_RM = _alloc(20 * KB)
WS_WGU = _alloc(108 * 40 * KB)
WS_WD = _alloc(8 * 54 * 5 * KB)
WS_KV = _alloc(128 * KB)
WS_Z = WS_KV + 8 * 13 * KB
KVZ_BYTES = 8 * 13 * KB + 640 * 4
WS_FLAG = WS_KV + 0x1C000
WS_ST1 = _alloc(2048 * 8)
WS_CS1 = _alloc(1920 * 4)
WS_M2 = _alloc(2048 * 4)
WS_ST2 = _alloc(2048 * 32)
WS_END = _off
WS_STAMP = 0x8000000

def gu_block(t, c):
    b = 7 * t + c
    return b if b < 108 else None

def gu_pos(c, kb):
    if c < 6:
        return 80 * (c >> 1) + 2 * kb + (c & 1)
    return 240 + kb

KV_PAIRS = [(a, b) for a in range(5) for b in range(5) if abs(a - b) <= 1]
assert all(2 * a + b == i for i, (a, b) in enumerate(KV_PAIRS))

if __name__ == "__main__":
    for k, v in list(globals().items()):
        if k.startswith("WS_"):
            print(k, hex(v))
```

```python
import gen
from gen import *
from asmgen import regs_of
from genb import mix

X_BYTES = 2048 * 1280
WQKV_BYTES = 640 * 3840
SLOT = 36864
POLL = 21
DRY_AFTER = 9
EARLY_D2 = True
PRE_IN_LOOP = True
START_FINE = False
EPI_FINE = False
NEARLY = 0
SPIN_SLEEP = 16


def spin(a, lbl, target, vtmp, stmp, srd_dbg, voff):
    a.raw(f"v_readfirstlane_b32 s{stmp}, v{vtmp}")
    a.raw("s_nop 1")
    a.raw(f"s_cmp_ge_u32 s{stmp}, {target}")
    a.raw(f"s_cbranch_scc1 {lbl}_ok")
    a.raw(f"s_mov_b32 s{stmp+1}, 0")
    a.label(f"{lbl}_loop")
    a.raw(f"s_sleep {SPIN_SLEEP}")
    a.raw(f"buffer_load_dword v{vtmp}, v{voff}, s[{srd_dbg}:{srd_dbg+3}], 0 offen sc1")
    a.raw("s_waitcnt vmcnt(0)")
    a.raw(f"v_readfirstlane_b32 s{stmp}, v{vtmp}")
    a.raw(f"s_add_u32 s{stmp+1}, s{stmp+1}, 1")
    a.raw(f"s_cmp_ge_u32 s{stmp+1}, 0x40000")
    a.raw(f"s_cbranch_scc1 {lbl}_ok")
    a.raw(f"s_cmp_lt_u32 s{stmp}, {target}")
    a.raw(f"s_cbranch_scc1 {lbl}_loop")
    a.label(f"{lbl}_ok")
    a.raw("s_nop 1")


def p1_gemm(a, role, name, st_flags, rot, dbg=""):
    isq = role == "q"
    ACC = 16
    XF, WFR = 0, 8
    a.many("""v_lshrrev_b32 v96, 3, v1
              v_and_b32 v97, 7, v1
              v_lshrrev_b32 v98, 4, v1
              s_movk_i32 s20, 1280""")
    for i in range(4):
        a.i(f"v_add_u32 v99, {8*i}, v96")
        a.i("v_mul_lo_u32 v99, v99, s20")
        a.i(f"v_add_u32 v100, {4*i}, v98")
        a.i("v_and_b32 v100, 7, v100")
        a.i("v_xor_b32 v100, v100, v97")
        a.i("v_lshl_add_u32 v99, v100, 4, v99")
        a.i(f"v_subrev_u32 v{4+i}, {1024*i}, v99")
    seg = 160 if isq else 1280
    a.i("s_mov_b32 s20, 52429"); a.i("s_movk_i32 s21, 3840")
    for i in range(5):
        a.i(f"v_add_u32 v99, {64*i}, v1")
        a.i("v_mul_lo_u32 v100, v99, s20")
        a.i("v_lshrrev_b32 v100, 20, v100")
        a.i("v_mul_u32_u24 v101, 20, v100")
        a.i("v_sub_u32 v99, v99, v101")
        a.i("v_mul_lo_u32 v100, v100, s21")
        a.i("v_lshl_add_u32 v100, v99, 4, v100")
        a.i("v_cmp_le_u32 vcc, 10, v99")
        a.i(f"v_mov_b32 v101, {seg-160}")
        a.i("v_cndmask_b32 v101, 0, v101, vcc")
        a.i("v_add_u32 v100, v100, v101")
        a.i(f"v_subrev_u32 v{8+i}, {1024*i if i < 4 else 0}, v100")
    a.ptrs()
    a.many("""s_lshl_b32 s26, s17, 2
              s_add_u32 s26, s26, s16
              s_mul_i32 s26, s26, 40960
              s_mul_i32 s27, s16, 61440""")
    if isq:
        a.i("s_mul_i32 s20, s18, 320")
    else:
        a.i("s_mul_i32 s20, s18, 160"); a.i("s_add_u32 s20, s20, 640")
    a.many("""s_add_u32 s27, s27, s20
              s_mul_i32 s30, s16, 5120
              s_lshl_b32 s31, s16, 12
              s_add_u32 s31, s31, 20480
              s_mov_b32 s33, 0
              s_mov_b32 s29, 0
              s_mov_b32 s28, 0x7f000000""")

    def dmaA():
        L = ["s_add_u32 s34, s30, s33", "s_mov_b32 m0, s34", "s_add_u32 s34, s34, 4096"]
        L += [f"buffer_load_dwordx4 v{8+i}, s[56:59], s27 offen offset:{1024*i} lds" for i in range(4)]
        return L

    def dmaB():
        L = ["s_mov_b32 m0, s34", "s_add_u32 s34, s31, s33", "buffer_load_dwordx4 v12, s[56:59], s27 offen lds", "s_mov_b32 m0, s34",
             f"s_add_u32 s27, s27, {64*3840}"]
        L += [f"buffer_load_dwordx4 v{4+i}, s[12:15], s26 offen offset:{1024*i} lds" for i in range(4)]
        L += ["s_cmp_eq_u32 s29, 7", "s_cselect_b32 s35, s28, 128", "s_add_u32 s26, s26, s35", f"s_add_u32 s33, s33, {SLOT}", f"s_cmp_eq_u32 s33, {4*SLOT}", "s_cselect_b32 s33, 0, s33"]
        return L
    if START_FINE: stamp(a)
    for st in range(2):
        interleave(a, dmaA() + dmaB(), [])
    if START_FINE: stamp(a)
    a.many("""v_and_b32 v96, 31, v1
              v_lshrrev_b32 v97, 5, v1
              v_bfe_u32 v103, v1, 1, 3
              v_lshlrev_b32 v102, 7, v96
              s_lshl_b32 s20, s16, 12
              v_add_u32 v102, s20, v102""")
    for j in range(4):
        a.i(f"v_add_u32 v104, {2*j}, v97")
        a.i("v_xor_b32 v104, v104, v103")
        a.i(f"v_lshl_add_u32 v{98+j}, v104, 4, v102")
    a.many(f"""v_bfe_u32 v103, v1, 2, 2
              v_lshl_add_u32 v103, v97, 3, v103
              v_mul_u32_u24 v103, 320, v103
              v_bfe_u32 v104, v1, 4, 1
              v_lshl_add_u32 v103, v104, 5, v103
              v_and_b32 v104, 3, v1
              v_lshl_add_u32 v102, v104, 3, v103
              v_mov_b32 v114, 0""")
    for j in range(4):
        a.i(f"v_mov_b32 v{104+j}, v{98+j}")
    a.i("v_mov_b32 v112, v102")
    for r in list(range(ACC, ACC + 80)) + [190, 191] + ([] if isq else list(range(240, 256))):
        a.i(f"v_mov_b32 v{r}, 0")

    def reads(j, nxt=False):
        L = [f"ds_read_b128 {vr(XF+(j % 2)*4, 4, 'a')}, v{108 if nxt else 104+j} offset:20480"]
        for blk in range(5):
            for u in range(2):
                L.append(f"ds_read_b64_tr_b16 {vr(WFR+(j % 2)*20+blk*4+u*2, 2, 'a')}, v{113 if nxt else 112} offset:{(16*j+4*u)*320+blk*64}")
        return L

    def mms(j):
        L = []
        for blk in range(5):
            d = vr(ACC + blk * 16, 16)
            w = vr(WFR + (j % 2) * 20 + blk * 4, 4, 'a'); x = vr(XF + (j % 2) * 4, 4, 'a')
            L.append(mfma32(d, w, x) if isq else mfma32(d, x, w))
        return L
    SV = 120
    a.many(f"""s_lshl_b32 s36, s17, 2
              s_add_u32 s36, s36, s16
              s_lshl_b32 s36, s36, 7
              s_add_u32 s36, s36, {WS_ST1}
              s_add_u32 s43, s36, 8192
              v_lshlrev_b32 v115, 2, v96
              v_lshlrev_b32 v116, 26, v97
              v_lshl_add_u32 v116, v116, 4, v115
              v_lshlrev_b32 v119, 4, v97
              s_mov_b32 s42, {f32(LOG2E)}""")
    ein = [f"buffer_load_dword v157, v115, s[8:11], s43 offen sc1"]
    if isq:
        a.many(f"""s_mul_i32 s37, s18, 640
                  s_add_u32 s37, s37, {WS_CS1}""")
        for blk in range(5):
            ein.append(f"buffer_load_dword v{152+blk}, v116, s[8:11], s37 offen offset:{128*blk} sc1")
        ein.append(f"buffer_load_dword v{SV}, v115, s[8:11], s36 offen sc1")
    else:
        a.many(f"""v_cmp_le_u32 vcc, 16, v96
                  v_mov_b32 v117, {2560-320}
                  v_cndmask_b32 v117, 0, v117, vcc
                  v_add_u32 v117, v117, v116
                  s_mul_i32 s37, s18, 320
                  s_add_u32 s37, s37, {WS_CS1 + 2560 - 4*320}""")
        offs = [("v116", 0), ("v116", 128), ("v117", 256), ("v116", 2560 + 64), ("v116", 2560 + 192)]
        for blk in range(5):
            ein.append(f"buffer_load_dword v{152+blk}, {offs[blk][0]}, s[8:11], s37 offen offset:{offs[blk][1]} sc1")
        for q in range(4):
            ein.append(f"buffer_load_dwordx4 {vr(SV+q*4)}, v119, s[8:11], s36 offen offset:{32*q} sc1")
    CW, CX = 160, 180
    corr = []
    for blk in range(5):
        r = CW + 4 * blk; c = 152 + blk
        corr += [f"v_cvt_pk_bf16_f32 v{r}, v{c}, v{c}", f"v_lshlrev_b32 v{r+1}, 16, v{r}", f"v_sub_f32 v{r+1}, v{c}, v{r+1}",
                 f"v_cvt_pk_bf16_f32 v{r+1}, v{r+1}, 0", f"v_mov_b32 v{r+2}, 0", f"v_mov_b32 v{r+3}, 0"]
    corr += ["v_sub_f32 v157, 0, v157", f"v_cvt_pk_bf16_f32 v{CX+1}, v157, 0", f"v_lshlrev_b32 v{CX}, 16, v{CX+1}",
             f"v_sub_f32 v{CX}, v157, v{CX}", f"v_cvt_pk_bf16_f32 v{CX}, v157, v{CX}", f"v_mov_b32 v{CX+2}, 0", f"v_mov_b32 v{CX+3}, 0"]
    RW = 20992
    L0 = 2 * SLOT
    LA, GA = 240, 248
    pre = []
    if not isq:
        pre += f"""s_mul_i32 s44, s16, 5
              s_mul_i32 s45, s16, 20
              s_mov_b32 s46, 52429
              s_sub_u32 s47, s18, 4
              s_mul_i32 s48, s47, {13*1024}
              s_add_u32 s48, s48, {WS_KV}
              s_mul_i32 s49, s47, 320
              s_add_u32 s49, s49, {WS_Z}
              s_sub_u32 s49, s49, s48
              s_mul_i32 s50, s16, {RW}
              s_add_u32 s50, s50, {L0}""".split("\n")
        for n in range(7):
            pre += f"""v_add_u32 v184, {64*n}, v1
                  v_mul_lo_u32 v185, v184, s46
                  v_lshrrev_b32 v185, 22, v185
                  v_mul_u32_u24 v186, 80, v185
                  v_sub_u32 v184, v184, v186
                  v_add_u32 v185, s44, v185
                  v_lshrrev_b32 v186, 2, v184
                  v_add_u32 v186, s45, v186
                  v_lshrrev_b32 v187, 3, v185
                  v_min_u32 v187, 1, v187
                  v_lshlrev_b32 v187, 5, v187
                  v_sub_u32 v187, v186, v187
                  v_add_u32 v187, 16, v187
                  v_lshl_add_u32 v187, v185, 6, v187
                  v_and_b32 v184, 3, v184
                  v_lshl_add_u32 v187, v187, 2, v184
                  v_lshlrev_b32 v{LA+n}, 2, v187
                  v_lshrrev_b32 v187, 2, v185
                  v_lshrrev_b32 v188, 4, v186
                  v_lshl_add_u32 v187, v187, 1, v188
                  v_and_b32 v185, 3, v185
                  v_lshl_add_u32 v187, v187, 2, v185
                  v_and_b32 v186, 15, v186
                  v_lshl_add_u32 v187, v187, 4, v186
                  v_lshl_add_u32 v187, v187, 2, v184
                  v_lshlrev_b32 v{GA+n}, 2, v187""".split("\n")
        pre += f"""v_subrev_u32 v184, 16, v1
              v_add_u32 v184, s45, v184
              v_lshlrev_b32 v184, 2, v184
              v_add_u32 v185, 20480, v184
              v_add_u32 v184, s49, v184
              v_cmp_le_u32 s[40:41], 16, v1
              v_cndmask_b32 v{LA+6}, v{LA+6}, v185, s[40:41]
              v_cndmask_b32 v{GA+6}, v{GA+6}, v184, s[40:41]
              v_lshlrev_b32 v190, 10, v97
              v_lshl_add_u32 v190, v96, 4, v190
              v_add_u32 v190, s50, v190
              v_lshlrev_b32 v191, 4, v97
              v_add_u32 v191, s50, v191""".split("\n")
    else:
        pre += f"""v_bfe_u32 v190, v1, 4, 1
                  v_lshlrev_b32 v190, 10, v190
                  v_lshl_add_u32 v190, v97, 8, v190
                  v_and_b32 v191, 15, v1
                  v_lshl_add_u32 v190, v191, 4, v190
                  s_lshl_b32 s48, s17, 1
                  s_lshr_b32 s49, s16, 1
                  s_add_u32 s48, s48, s49
                  s_mul_i32 s48, s48, 20
                  s_mul_i32 s49, s18, 5
                  s_add_u32 s48, s48, s49
                  s_lshl_b32 s48, s48, 2
                  s_and_b32 s49, s16, 1
                  s_lshl_b32 s49, s49, 1
                  s_add_u32 s48, s48, s49
                  s_lshl_b32 s48, s48, 10
                  s_add_u32 s48, s48, {WS_PQ}""".split("\n")
    pre = [x.strip() for x in pre if x.strip()]
    if EARLY_D2:
        interleave(a, dmaA(), [])
    if not PRE_IN_LOOP:
        interleave(a, pre, [])
    if DRY_AFTER < 3:
        a.i("s_mov_b64 exec, 0")
        a.i(f"s_branch L_epi_{role}_{name}")
        a.label(f"L_dry_{role}_{name}")
        a.i("s_mov_b64 exec, -1")
        a.fence()
    if not EARLY_D2:
        interleave(a, dmaA(), [])
    stamp(a)
    a.raw("s_waitcnt vmcnt(13)")
    if START_FINE: stamp(a)
    a.i("s_barrier")
    a.i("s_mov_b32 s29, 0")
    a.i("s_mov_b32 s32, 0")
    interleave(a, reads(0), [])
    LP = f"L_lp_{role}_{name}"
    a.vm_done = a.vm_n = 0
    a.label(LP)
    for k in ((2, 3) if PRE_IN_LOOP else ()) + (5, 6, 9):
        a.i(f"s_cmp_eq_u32 s29, {k}")
        a.i(f"s_cbranch_scc1 {LP}_x{k}")
    a.label(f"{LP}_r")
    a.many(f"""s_add_u32 s32, s32, {SLOT}
              s_cmp_eq_u32 s32, {4*SLOT}
              s_cselect_b32 s32, 0, s32
              v_add_u32 v108, s32, v98
              v_add_u32 v113, s32, v102""")

    def cond(items, lim, tag):
        def f():
            a.i(f"s_cmp_ge_u32 s29, {lim}")
            a.i(f"s_cbranch_scc1 {LP}_{tag}")
            for x in items:
                a.i(x)
            a.label(f"{LP}_{tag}")
            a.vm_done = a.vm_n = 0
        return f
    dB = dmaB()
    interleave(a, mms(0), mix(reads(1), dB[:7]))
    interleave(a, mms(1), mix(reads(2), dB[7:]))
    interleave(a, mms(2), reads(3))
    a.raw("s_waitcnt vmcnt(9)")
    a.i("s_barrier")
    upd = [f"v_add_u32 v{104+j}, s32, v{98+j}" for j in range(4)] + ["v_mov_b32 v112, v113"]
    interleave(a, mms(3), mix(reads(0, True), dmaA()) + upd)
    a.i("s_add_u32 s29, s29, 1")
    a.i("s_cmp_lt_u32 s29, 10")
    a.i(f"s_cbranch_scc1 {LP}")
    a.i(f"s_branch {LP}_done")
    keep = (a.lg_n, a.lg_done, dict(a.pend), dict(a.wr), a.t)
    if PRE_IN_LOOP:
        h = len(pre) // 2
        for k, part in ((2, pre[:h]), (3, pre[h:])):
            a.label(f"{LP}_x{k}")
            a.wr = {}
            for x in part:
                a.i(x)
            a.nop(2)
            a.raw(f"s_branch {LP}_r")
    a.label(f"{LP}_x5")
    if START_FINE: a.raw(f"s_memrealtime s[{80+2*a.nstamp}:{81+2*a.nstamp}]"); a.nstamp += 1; a.raw("s_waitcnt lgkmcnt(0)")
    a.raw("buffer_load_dword v118, v114, s[60:63], 0 offen sc1")
    a.raw(f"s_branch {LP}_r")
    a.label(f"{LP}_x6")
    a.raw("s_waitcnt vmcnt(9)")
    spin(a, f"L_spin_{role}_{name}", 64, 118, 38, 60, 114)
    for x in ein:
        a.raw(x)
        for r in regs_of(x.split(",")[0]): a.ever.add(r)
    a.raw(f"s_branch {LP}_r")
    a.label(f"{LP}_x9")
    a.raw("s_waitcnt vmcnt(13)")
    a.pend = {}
    for x in corr:
        a.i(x)
    a.nop(2)
    a.raw(f"s_branch {LP}_r")
    a.label(f"{LP}_done")
    a.lg_n, a.lg_done, a.pend, a.wr, a.t = keep
    a.vm_done = a.vm_n = 0
    stamp(a)
    T = 208

    def cmf(blk):
        d = vr(ACC + blk * 16, 16)
        return mfma32(d, vr(CW + 4 * blk), vr(CX)) if isq else mfma32(d, vr(CX), vr(CW + 4 * blk))

    C1, CL, CE, CR = 184, 186, 188, 122

    def phi(blk, hf, dst_is_acc=True):
        R = range(8 * hf, 8 * hf + 8)
        R2 = range(8 * hf, 8 * hf + 8, 2)
        ac = lambda j: ACC + blk * 16 + j
        t = lambda j: T + (j % 8)
        t2 = lambda j: (ac(j) if dst_is_acc else T + 8 + (j % 8))
        rs = lambda j: (CR if isq else SV + j)
        L = []
        for j in R2: L.append(f"v_pk_fma_f32 {vr(t2(j), 2)}, {vr(ac(j), 2)}, {vr(rs(j), 2)}, {vr(C1, 2)}")
        for j in R2: L.append(f"v_pk_fma_f32 {vr(t(j), 2)}, {vr(t2(j), 2)}, {vr(CL, 2)}, {vr(CL, 2)} neg_lo:[0,0,1] neg_hi:[0,0,1]")
        for j in R: L.append(f"v_exp_f32 v{t(j)}, v{t(j)}")
        for j in R: L.append(f"v_med3_f32 v{t2(j)}, v{t(j)}, v{t2(j)}, 1.0")
        for j in R2: L.append(f"v_pk_add_f32 {vr(t2(j), 2)}, {vr(t2(j), 2)}, {vr(CE, 2)}")
        return L
    a.raw("s_waitcnt vmcnt(0)")
    a.wait_lg0()
    a.label(f"L_epi_{role}_{name}")
    a.guard = f"L_g{role}_{name}" if DRY_AFTER < 3 else None
    for r, val in ((C1, "1.0"), (CL, "s42"), (CE, f32(1e-6))):
        a.i(f"v_mov_b32 v{r}, {val}"); a.i(f"v_mov_b32 v{r+1}, {val}")
    if isq:
        a.many(f"""s_load_dwordx2 s[64:65], s[0:1], 16
                  s_load_dwordx2 s[66:67], s[0:1], 48
                  s_lshl_b32 s20, s17, 2
                  s_add_u32 s20, s20, s18
                  s_lshl_b32 s20, s20, 2
                  s_add_u32 s20, s20, s16
                  s_add_u32 s21, s20, 284
                  s_cmp_lt_u32 s20, 200
                  s_cselect_b32 s20, s20, s21
                  s_cselect_b32 s52, 20, 54
                  s_cselect_b32 s53, 8, 16
                  s_cselect_b32 s54, 16, 8
                  s_mov_b32 s21, {WS_WD}
                  s_cselect_b32 s55, {WS_WO}, s21
                  s_mov_b32 s21, {1728*1280}
                  s_cselect_b32 s70, {640*1280}, s21
                  s_mov_b32 s71, 0x20000""")
        a.wait_lg0(True)
        a.many(f"""s_cselect_b32 s68, s64, s66
                  s_cselect_b32 s69, s65, s67
                  s_and_b32 s69, s69, 0xffff
                  s_mul_hi_u32 s22, s20, {(1 << 32)//10 + 1}
                  s_mul_i32 s21, s22, 10
                  s_sub_u32 s21, s20, s21
                  s_mul_i32 s23, s22, {32*1280}
                  s_lshl_b32 s24, s21, 7
                  s_add_u32 s23, s23, s24
                  s_mul_i32 s21, s21, s52
                  s_lshl_b32 s21, s21, 2
                  s_add_u32 s21, s21, s22
                  s_lshl_b32 s21, s21, 10
                  s_add_u32 s55, s55, s21
                  s_lshl_b32 s52, s52, 10
                  s_lshl_b32 s54, s54, 7
                  s_lshl_b32 s24, s16, 12
                  s_add_u32 s24, s24, {4*SLOT}
                  s_mov_b32 m0, s24
                  v_lshrrev_b32 v4, 3, v1
                  v_and_b32 v5, 7, v1
                  v_bfe_u32 v6, v1, 4, 2
                  v_lshlrev_b32 v7, 1, v6
                  v_xor_b32 v5, v5, v7
                  v_mul_u32_u24 v4, 1280, v4
                  v_lshl_add_u32 v4, v5, 4, v4""")
        qtok = Tok()
        for i in range(4):
            a.i(f"buffer_load_dwordx4 v4, s[68:71], s23 offen offset:{1024*i} lds", qtok)
            a.i(f"s_add_u32 s23, s23, {8*1280 - 1024}")
        a.many("""v_lshrrev_b32 v5, 1, v6
                  v_mul_lo_u32 v5, v5, s53
                  v_and_b32 v7, 1, v6
                  v_lshl_add_u32 v5, v7, 2, v5
                  v_bfe_u32 v7, v1, 2, 2
                  v_add_u32 v5, v5, v7
                  v_bfe_u32 v7, v5, 1, 2
                  v_and_b32 v8, 3, v1
                  v_lshlrev_b32 v8, 3, v8
                  v_lshl_add_u32 v5, v5, 7, v8
                  v_add_u32 v5, s24, v5
                  v_lshlrev_b32 v13, 4, v1""")
        for nb in range(4):
            a.i(f"v_xor_b32 v8, {nb}, v7")
            a.i(f"v_lshl_add_u32 v{104+nb}, v8, 5, v5")
            a.i(f"v_add_u32 v{108+nb}, s54, v{104+nb}")
        a.i(f"v_mov_b32 v{CR}, v{SV}"); a.i(f"v_mov_b32 v{CR+1}, v{SV}")
        for blk in range(5):
            a.i(cmf(blk))
        for blk in range(5):
            for x in phi(blk, 0) + phi(blk, 1):
                a.i(x)
            pk = 224 + (blk % 2) * 8
            for q in range(4):
                dst = pk + (q & 1) * 4 + (q >> 1) * 2
                for jj in range(2):
                    a.i(f"v_cvt_pk_bf16_f32 v{dst+jj}, v{ACC+blk*16+4*q+2*jj}, v{ACC+blk*16+4*q+2*jj+1}")
            a.i(f"s_add_u32 s51, s48, {blk*4096}")
            a.i(f"buffer_store_dwordx4 {vr(pk)}, v190, s[8:11], s51 offen {st_flags}")
            a.i(f"buffer_store_dwordx4 {vr(pk+4)}, v190, s[8:11], s51 offen offset:512 {st_flags}")
            if blk == 2:
                a.wait_tok(qtok)
                for nb in range(4):
                    a.i(f"ds_read_b64_tr_b16 {vr(136+nb*4, 2)}, v{104+nb}")
                    a.i(f"ds_read_b64_tr_b16 {vr(138+nb*4, 2)}, v{108+nb}")
            if blk == 3:
                for nb in range(4):
                    a.i(f"buffer_store_dwordx4 {vr(136+nb*4)}, v13, s[8:11], s55 offen {st_flags}")
                    a.i("s_add_u32 s55, s55, s52")
        a.guard_end()
        (a.i(f"s_cbranch_execz L_dry_{role}_{name}") if DRY_AFTER < 3 else None)
        return
    smask(a, 40, 0x0000FFFF0000FFFF)
    P = {0: 136, 1: 144, 2: 192, 3: 200, 4: 224}
    ONES = 232
    for blk in (0, 2, 3, 1, 4):
        a.i(cmf(blk))
    for k in range(4):
        a.i(f"v_mov_b32 v{ONES+k}, 0x3f803f80")

    def fin(blk):
        L = []
        for hf in range(2):
            R = range(8 * hf, 8 * hf + 8)
            ac = lambda j: ACC + blk * 16 + j
            if blk < 2:
                L += phi(blk, hf)
            else:
                if blk == 2:
                    L += phi(blk, hf, False)
                for j in range(8 * hf, 8 * hf + 8, 2): L.append(f"v_pk_mul_f32 {vr(ac(j), 2)}, {vr(ac(j), 2)}, {vr(SV+j, 2)}")
                if blk == 2:
                    for j in R: L.append(f"v_cndmask_b32 v{ac(j)}, v{ac(j)}, v{T+8+(j % 8)}, s[40:41]")
            for jj in range(4):
                L.append(f"v_cvt_pk_bf16_f32 v{P[blk]+hf*4+jj}, v{ac(8*hf+2*jj)}, v{ac(8*hf+2*jj+1)}")
        return L
    def prod(kb, vb, d):
        return [mfma32(vr(d, 16), vr(P[kb] + u * 4), vr(P[vb] + u * 4) if vb is not None else vr(ONES), "0" if u == 0 else None) for u in range(2)]
    def wr(kb, vb, d):
        L = []
        for qd in range(2 if kb == 2 else 4):
            if vb is None:
                L.append(f"ds_write_b128 v191, {vr(d+4*qd)} offset:{20480 + (8*kb+2*qd)*16}")
            else:
                es = {(0, 2): 0, (0, 3): 32, (1, 3): 0, (1, 4): 32, (2, 4): 32}[(kb, vb)]
                L.append(f"ds_write_b128 v190, {vr(d+4*qd)} offset:{((8*kb+2*qd)*64 + es)*16}")
        return L
    A0, A1, A2, A3, A4 = [ACC + 16 * b for b in range(5)]
    interleave(a, fin(0) + fin(2) + fin(3), [])
    if EPI_FINE: stamp(a)
    interleave(a, prod(0, 2, A0) + prod(0, 3, A2) + prod(0, None, A3) + prod(2, None, 160), fin(1))
    a.i("s_barrier")
    interleave(a, prod(1, 3, A1) + prod(1, None, 100), fin(4) + wr(0, 2, A0) + wr(0, 3, A2))
    interleave(a, prod(1, 4, A4) + prod(2, 4, A0), wr(1, 3, A1))
    a.i("s_mov_b32 exec_lo, 1"); a.i("s_mov_b32 exec_hi, 1")
    interleave(a, wr(0, None, A3) + wr(2, None, 160) + wr(1, None, 100), [])
    a.i("s_mov_b64 exec, -1")
    interleave(a, wr(1, 4, A4) + wr(2, 4, A0), [])
    for n in range(7):
        a.i(f"v_add_u32 v{136+n}, {L0 + 2*RW}, v{LA+n}")
        a.i(f"v_add_u32 v{144+n}, {L0}, v{LA+n}")
    a.guard_end()
    (a.i(f"s_cbranch_execz L_dry_{role}_{name}") if DRY_AFTER < 3 else None)
    if EPI_FINE: stamp(a)
    a.wait_lg0()
    a.i("s_barrier")
    if EPI_FINE: stamp(a)
    for n in range(7):
        for w in range(4):
            a.i(f"ds_read_b32 v{32+4*n+w}, v{(144 if w < 2 else 136)+n} offset:{(w % 2)*RW}")
    for n in range(7):
        a.i(f"v_add_f32 v{32+4*n}, v{32+4*n}, v{33+4*n}")
        a.i(f"v_add_f32 v{34+4*n}, v{34+4*n}, v{35+4*n}")
        a.i(f"v_add_f32 v{32+4*n}, v{32+4*n}, v{34+4*n}")
        if n == 6:
            a.i("s_mov_b32 exec_hi, 15")
        a.i(f"buffer_atomic_add_f32 v{32+4*n}, v{GA+n}, s[8:11], s48 offen")
    a.i("s_mov_b64 exec, -1")
    if EPI_FINE: stamp(a)


def row_reduce16(a, regs):
    for sh in (8, 4, 2, 1):
        for r in regs:
            a.i(f"v_add_f32_dpp v{r}, v{r}, v{r} row_ror:{sh} row_mask:0xf bank_mask:0xf")


def p1_aux(a, name, st_flags):
    OOB = 0x7f000000
    a.many(f"""s_cmp_lt_u32 s17, 30
              s_cselect_b32 s48, s56, s12
              s_cselect_b32 s49, s57, s13
              s_cselect_b32 s50, s58, s14
              s_mov_b32 s51, 0x20000
              s_cselect_b32 s52, 30720, 64
              s_cselect_b32 s53, 30720, 64
              s_cselect_b32 s54, 3, 4
              s_cselect_b32 s55, 7, 15
              s_movk_i32 s22, 1280
              s_cselect_b32 s22, 3840, s22
              s_mul_i32 s23, s16, 614400
              s_lshl_b32 s24, s17, 7
              s_add_u32 s23, s23, s24
              s_sub_u32 s33, s17, 30
              s_lshl_b32 s33, s33, 2
              s_add_u32 s33, s33, s16
              s_mul_i32 s24, s33, 20480
              s_cmp_lt_u32 s17, 30
              s_cselect_b32 s23, s23, s24
              s_cselect_b32 s52, s52, 256
              s_cselect_b32 s53, s53, 4096
              v_lshrrev_b32 v8, s54, v1
              v_and_b32 v9, s55, v1
              v_mul_lo_u32 v10, v8, s22
              v_lshl_add_u32 v10, v9, 4, v10""")
    for i in range(20):
        a.i(f"buffer_load_dwordx4 {vr(32+4*i)}, v10, s[48:51], s23 offen")
        a.i(f"s_add_u32 s23, s23, {'s53' if i % 5 == 4 else 's52'}")
    a.many(f"""v_lshlrev_b32 v2, 4, v1
              v_mov_b32 v4, 0
              v_mov_b32 v5, 0
              v_mov_b32 v6, 0
              v_mov_b32 v7, 0
              s_lshl_b32 s20, s17, 11
              s_lshl_b32 s21, s16, 9
              s_add_u32 s20, s20, s21
              s_add_u32 s20, s20, {WS_KV}
              s_mov_b32 exec_hi, 0""")
    a.i("buffer_store_dwordx4 v[4:7], v2, s[8:11], s20 offen sc1")
    a.i("s_mov_b64 exec, -1")
    a.many("""s_lshl_b32 s18, s17, 2
              s_add_u32 s18, s18, s16
              s_mul_i32 s19, s16, 40960
              v_lshrrev_b32 v112, 3, v1
              v_and_b32 v113, 7, v1
              v_bfe_u32 v114, v1, 4, 2
              v_lshlrev_b32 v115, 1, v114
              v_xor_b32 v113, v113, v115
              v_xor_b32 v115, 4, v113
              v_mul_u32_u24 v11, 1280, v112
              v_lshl_add_u32 v11, v113, 4, v11
              v_mul_u32_u24 v12, 3456, v112
              v_lshl_add_u32 v13, v115, 4, v12
              v_lshl_add_u32 v12, v113, 4, v12""")
    tasks = [("gu", 0, 0), ("gu", 256, 8192), ("wd", 0, 16384), ("wd", 228, 20480), ("gu", 512, 24576)]
    toks = {}

    def decode(ti):
        kind, add, lo = tasks[ti]
        ncg = {"gu": 27, "wd": 10}[kind]
        stride = 3456 if kind == "gu" else 1280
        nk, base = {"gu": (40, WS_WGU), "wd": (54, WS_WD)}[kind]
        chk = {512: "s_cmp_lt_u32 s18, 28", 228: "s_cmp_ge_u32 s18, 28"}.get(add, "s_cmp_eq_u32 s18, s18")
        a.many(f"""s_add_u32 s24, s18, {add}
                  s_mul_hi_u32 s26, s24, {(1 << 32)//ncg + 1}
                  s_mul_i32 s25, s26, {ncg}
                  s_sub_u32 s25, s24, s25
                  {chk}
                  s_cselect_b32 s27, 0, {OOB}
                  s_mul_i32 s28, s26, {32*stride}
                  s_lshl_b32 s29, s25, 7
                  s_add_u32 s28, s28, s29
                  s_add_u32 s28, s28, s27
                  s_mul_i32 s29, s25, {4*nk*1024}
                  s_lshl_b32 s26, s26, {11 if kind == 'gu' else 10}
                  s_add_u32 s29, s29, s26
                  s_add_u32 s29, s29, s27
                  s_add_u32 s{36+ti}, s29, {base}""")

    def issue(ti):
        kind, add, lo = tasks[ti]
        decode(ti)
        stride = 3456 if kind == "gu" else 1280
        for img in range(2 if kind == "gu" else 1):
            sr = {"gu": (68, 72)[img], "wd": 44, "wo": 64}[kind]
            vo = {"gu": (12, 13)[img], "wd": 11, "wo": 11}[kind]
            for i in range(4):
                a.i(f"s_add_u32 s30, s19, {lo + img*4096 + i*1024}")
                a.i("s_mov_b32 m0, s30")
                a.i(f"s_add_u32 s31, s28, {8*i*stride}")
                tk = Tok(); toks[ti] = tk
                a.i(f"buffer_load_dwordx4 v{vo}, s[{sr}:{sr+3}], s31 offen lds", tk)
    for ti in range(NEARLY):
        issue(ti)
    for k in range(8):
        a.i(f"v_mov_b32 v{16+k}, 0")
    a.i("s_cmp_ge_u32 s17, 30")
    a.i(f"s_cbranch_scc1 L_aux_stats_{name}")
    st0 = (a.vm_n, a.vm_done, dict(a.pend))
    SCR = 36864
    a.many("""s_mov_b32 s22, 0x3f80
              s_mov_b32 s23, 0x3f800000""")
    for i in range(20):
        for d in range(4):
            a.i(f"v_dot2_f32_bf16 v{16+2*d}, v{32+4*i+d}, s22, v{16+2*d}")
            a.i(f"v_dot2_f32_bf16 v{17+2*d}, v{32+4*i+d}, s23, v{17+2*d}")
    a.nop(4)
    for k in range(8):
        a.i(f"v_add_f32_dpp v{16+k}, v{16+k}, v{16+k} row_ror:8 row_mask:0xf bank_mask:0xf")
    for sw in ("v_permlane16_swap_b32", "v_permlane32_swap_b32"):
        for k in range(8): a.i(f"v_mov_b32 v{24+k}, v{16+k}")
        for k in range(8): a.i(f"{sw} v{16+k}, v{24+k}")
        for k in range(8): a.i(f"v_add_f32 v{16+k}, v{16+k}, v{24+k}")
    a.many(f"""v_lshlrev_b32 v10, 5, v9
              s_lshl_b32 s20, s16, 8
              s_add_u32 s20, s20, {SCR}
              v_add_u32 v10, s20, v10
              ds_write_b128 v10, v[16:19]
              ds_write_b128 v10, v[20:23] offset:16
              v_lshlrev_b32 v10, 2, v1
              v_add_u32 v24, {SCR}, v10""")
    a.wait_lg0()
    a.i("s_barrier")
    for w in range(4):
        a.i(f"ds_read_b32 v{16+w}, v24 offset:{256*w}")
    a.many(f"""v_add_f32 v16, v16, v17
              v_add_f32 v18, v18, v19
              v_add_f32 v16, v16, v18
              s_lshl_b32 s20, s17, 8
              s_add_u32 s20, s20, {WS_CS1}
              s_cmp_eq_u32 s16, 0
              s_cselect_b32 s20, s20, {OOB}""")
    a.i("buffer_store_dword v16, v10, s[8:11], s20 offen sc1")
    a.i(f"s_branch L_aux_sig_{name}")
    a.label(f"L_aux_stats_{name}")
    a.vm_n, a.vm_done, a.pend = st0[0], st0[1], dict(st0[2])
    a.fence()
    a.i("s_mov_b32 s22, 0x3f803f80")
    for i in range(4):
        for d in range(20):
            r = 32 + 20 * i + d
            a.i(f"v_dot2_f32_bf16 v{16+2*i}, v{r}, s22, v{16+2*i}")
            a.i(f"v_dot2_f32_bf16 v{17+2*i}, v{r}, v{r}, v{17+2*i}")
    a.nop(4)
    row_reduce16(a, range(16, 24))
    for i in range(4):
        s_, q_ = 16 + 2 * i, 17 + 2 * i
        a.many(f"""v_mul_f32 v{q_}, {f32(1/640)}, v{q_}
                  v_mul_f32 v24, {f32(1/640)}, v{s_}
                  v_fma_f32 v{s_}, -v24, v24, v{q_}
                  v_max_f32 v{s_}, 0, v{s_}
                  v_add_f32 v{s_}, {f32(1e-5)}, v{s_}
                  v_rsq_f32 v{s_}, v{s_}
                  v_mov_b32 v{q_}, v24""")
    a.many(f"""v_lshlrev_b32 v10, 2, v8
              s_lshl_b32 s20, s33, 6
              s_add_u32 s20, s20, {WS_ST1}
              s_cmp_lt_u32 s17, 62
              s_cselect_b32 s20, s20, {OOB}
              s_add_u32 s21, s20, 8192
              s_mov_b32 exec_lo, 0x00010001
              s_mov_b32 exec_hi, 0x00010001""")
    for i in range(4):
        a.i(f"buffer_store_dword v{16+2*i}, v10, s[8:11], s20 offen offset:{16*i} sc1")
        a.i(f"buffer_store_dword v{17+2*i}, v10, s[8:11], s21 offen offset:{16*i} sc1")
    a.i("s_mov_b64 exec, -1")
    a.label(f"L_aux_sig_{name}")
    a.wait_all()
    a.fence()
    stamp(a)
    a.i("s_barrier")
    a.many("""v_mov_b32 v4, 1
              v_mov_b32 v5, 0
              s_cmp_eq_u32 s16, 0""")
    a.i(f"s_cselect_b32 s20, 0, {OOB}")
    a.i("s_mov_b64 exec, 1")
    a.i("buffer_atomic_add v4, v5, s[60:63], s20 offen sc1")
    a.i("s_mov_b64 exec, -1")
    for ti in range(NEARLY, len(tasks)):
        issue(ti)
    a.many(f"""s_lshl_b32 s33, s18, 2
              v_lshrrev_b32 v14, 4, v1
              v_and_b32 v37, 15, v1
              v_mul_u32_u24 v38, 1280, v14
              v_lshl_add_u32 v38, v37, 4, v38
              s_mul_i32 s32, s33, 1280""")
    for m in range(5):
        a.i(f"buffer_load_dwordx4 {vr(128+4*m)}, v38, s[64:67], s32 offen offset:{256*m}")
    a.many("""v_bfe_u32 v15, v1, 2, 2
              v_and_b32 v16, 3, v1
              v_lshlrev_b32 v16, 3, v16
              v_add_u32 v16, s19, v16
              v_lshl_add_u32 v17, v14, 2, v15
              v_lshrrev_b32 v18, 1, v14
              v_and_b32 v19, 1, v14
              v_lshl_add_u32 v20, v19, 2, v15
              v_lshl_add_u32 v20, v18, 4, v20
              v_lshl_add_u32 v21, v18, 2, v15""")
    for k, (rowreg, base) in ((1, (20, 28)), (2, (21, 32))):
        a.i(f"v_bfe_u32 v22, v{rowreg}, 1, 2")
        if k == 2:
            a.i("v_lshlrev_b32 v23, 1, v19")
            a.i("v_xor_b32 v22, v22, v23")
        a.i(f"v_lshl_add_u32 v23, v{rowreg}, 7, v16")
        if k == 2:
            a.i("v_lshl_add_u32 v23, v19, 12, v23")
        for nb in range(4):
            a.i(f"v_xor_b32 v36, {nb}, v22")
            a.i(f"v_lshl_add_u32 v{base+nb}, v36, 5, v23")
    RB = [48, 80, 192, 224]
    stamp(a)
    for ti, (kind, add, lo) in enumerate(tasks):
        R0 = RB[ti % 4]
        a.wait_tok(toks[ti])
        if ti in (0, 3): stamp(a)
        if kind == "gu":
            for nb in range(4):
                for kbl in range(2):
                    r = R0 + (nb * 2 + kbl) * 4
                    for u in range(2):
                        a.i(f"ds_read_b64_tr_b16 {vr(r+2*u, 2)}, v{32+nb} offset:{lo + (16*kbl+8*u)*128}")
            for nb in range(4):
                a.i(f"s_add_u32 s29, s{36+ti}, {nb*40960}")
                for kbl in range(2):
                    a.i(f"buffer_store_dwordx4 {vr(R0+(nb*2+kbl)*4)}, v2, s[8:11], s29 offen offset:{kbl*1024} {st_flags}")
        else:
            nks, ar, us = (54, 28, 8) if kind == "wd" else (20, 24, 16)
            for nb in range(4):
                for u in range(2):
                    a.i(f"ds_read_b64_tr_b16 {vr(R0+nb*4+2*u, 2)}, v{ar+nb} offset:{lo + us*u*128}")
            for nb in range(4):
                a.i(f"s_add_u32 s29, s{36+ti}, {nb*nks*1024}")
                a.i(f"buffer_store_dwordx4 {vr(R0+nb*4)}, v2, s[8:11], s29 offen {st_flags}")
    stamp(a)
    a.i("s_mov_b32 s22, 0x3f803f80")
    a.i("v_mov_b32 v40, 0"); a.i("v_mov_b32 v41, 0")
    for d in range(20):
        a.i(f"v_dot2_f32_bf16 v{40 + d % 2}, v{128+d}, s22, v{40 + d % 2}")
    a.nop(4)
    a.i("v_add_f32 v40, v40, v41")
    row_reduce16(a, [40])
    for i in range(1):
        a.many(f"""v_mul_f32 v{40+i}, {f32(1/640)}, v{40+i}
                  v_cvt_pk_bf16_f32 v{40+i}, v{40+i}, v{40+i}
                  v_add_u32 v44, s33, v14
                  v_add_u32 v44, {4*i}, v44
                  v_lshrrev_b32 v45, 5, v44
                  v_lshlrev_b32 v45, 10, v45
                  v_bfe_u32 v46, v44, 2, 2
                  v_lshl_add_u32 v45, v46, 8, v45
                  v_lshl_add_u32 v45, v37, 4, v45
                  v_bfe_u32 v46, v44, 4, 1
                  v_lshl_add_u32 v45, v46, 3, v45
                  v_and_b32 v46, 3, v44
                  v_lshl_add_u32 v45, v46, 1, v45
                  v_cmp_gt_u32 vcc, 640, v44
                  v_mov_b32 v46, {OOB}
                  v_cndmask_b32 v45, v46, v45, vcc
                  s_mov_b32 s20, {WS_RM}""")
        a.i(f"buffer_store_short v{40+i}, v45, s[8:11], s20 offen {st_flags}")


def gen_p1(kidx, name="p1_kernel", st_flags="", rot=True, dbg=""):
    a = Asm()
    prologue(a, name, 256, [])
    a.i("s_load_dwordx4 s[4:7], s[0:1], 0")
    a.i("s_load_dwordx4 s[24:27], s[0:1], 64")
    a.many("""s_and_b32 s19, s2, 7
              s_lshr_b32 s20, s2, 3
              s_mov_b32 s11, 0x20000
              s_mov_b32 s15, 0x20000
              s_mov_b32 s59, 0x20000
              s_mov_b32 s63, 0x20000""")
    a.i(f"s_mov_b32 s10, {WS_BYTES}"); a.i(f"s_mov_b32 s14, {X_BYTES}"); a.i(f"s_mov_b32 s58, {WQKV_BYTES}"); a.i("s_movk_i32 s62, 256")

    def ptrs():
        a.wait_lg0(True)
        for d, p in ((12, 4), (56, 6), (60, 24), (8, 26)):
            a.i(f"s_mov_b32 s{d}, s{p}"); a.i(f"s_and_b32 s{d+1}, s{p+1}, 0xffff")
    a.ptrs = ptrs
    a.i("s_cmp_lt_u32 s20, 8")
    a.i(f"s_cbranch_scc0 L_gemm_{name}")
    a.i("s_load_dwordx2 s[28:29], s[0:1], 16")
    a.i("s_load_dwordx4 s[32:35], s[0:1], 32")
    a.i("s_load_dwordx2 s[30:31], s[0:1], 48")
    ptrs()
    srd(a, 64, 28, 640 * 1280)
    srd(a, 68, 32, 640 * 3456)
    srd(a, 72, 34, 640 * 3456)
    srd(a, 44, 30, 1728 * 1280)
    a.many("""s_lshl_b32 s17, s19, 3
              s_add_u32 s17, s17, s20""")
    ns = getattr(a, "nstamp", 0)
    p1_aux(a, name, st_flags)
    a.i(f"s_branch L_fin_{name}")
    a.label(f"L_gemm_{name}")
    a.reset_state(); a.fence()
    a.nstamp = ns
    a.many("""s_sub_u32 s20, s20, 8
              s_mul_i32 s21, s20, 43
              s_lshr_b32 s21, s21, 8
              s_mul_i32 s22, s21, 6
              s_sub_u32 s22, s20, s22
              s_lshr_b32 s17, s19, 1
              s_lshl_b32 s17, s17, 2
              s_add_u32 s17, s17, s21
              s_and_b32 s23, s19, 1
              s_nop 0""")
    a.i("s_cmp_lt_u32 s22, 2")
    a.i(f"s_cbranch_scc0 L_kv_{name}")
    a.many("""s_lshl_b32 s18, s23, 1
              s_add_u32 s18, s18, s22""")
    p1_gemm(a, "q", name, st_flags, rot, dbg)
    a.i(f"s_branch L_fin_{name}")
    a.label(f"L_kv_{name}")
    a.reset_state(); a.fence()
    a.nstamp = ns
    a.many("""s_lshl_b32 s18, s23, 2
              s_add_u32 s18, s18, s22
              s_add_u32 s18, s18, 2""")
    p1_gemm(a, "kv", name, st_flags, rot, dbg)
    a.label(f"L_fin_{name}")
    if gen.STAMPS:
        a.raw("s_waitcnt vmcnt(0) lgkmcnt(0)")
        a.reset_state(); a.fence()
    a.nstamp = 6
    epilogue(a, name, kidx, 256)
    print(name, "instrs", a.ninstr, "nops", a.nops)
    return name, kernel_wrap(name, a.text(), 256, 64), 256, 256, 163840
```

```python
import gen
from gen import *
from asmgen import regs_of


P4_ROT = False
NSLAB0 = 12
W4_LDS = True
W4_P2 = 0
W4_SY = 0
D23_IN_P3 = False
P2_ROT = True
SYNC_FINE = -1
POLL_SLEEP = 2
def signal_and_wait(a, name, phase, between=None):
    a.wait_vm0()
    a.wait_lg0()
    if SYNC_FINE == phase: stamp(a)
    a.i("s_barrier")
    flag_store(a, phase)
    if SYNC_FINE == phase: stamp(a)
    if between:
        between()
    if SYNC_FINE == phase: stamp(a)
    poll_issue(a, phase, 12)
    poll_check(a, f"L_sy{phase}_{name}", 12)


def flag_store(a, phase):
    a.many(f"""s_cmp_eq_u32 s16, 0
              s_cselect_b32 s20, {WS_FLAG + phase*2048}, s56
              v_mov_b32 v10, s63
              v_mov_b32 v11, 1
              s_mov_b64 exec, 1""")
    a.i("buffer_store_dword v11, v10, s[8:11], s20 offen sc1")
    a.i("s_mov_b64 exec, -1")


def poll_issue(a, phase, v):
    a.many(f"""v_and_b32 v{v+3}, 15, v1
              v_lshlrev_b32 v{v+3}, 2, v{v+3}
              v_add_u32 v{v+3}, s64, v{v+3}
              s_mov_b32 s79, {WS_FLAG + phase*2048}""")
    a.i(f"buffer_load_dword v{v}, v{v+3}, s[8:11], s79 offen sc1")


def poll_check(a, lbl, v):
    a.i(f"v_cmp_ne_u32 vcc, 1, v{v}")
    a.nop(2)
    a.i(f"s_cbranch_vccz {lbl}_ok")
    a.raw("s_mov_b32 s21, 0")
    a.label(f"{lbl}_lp")
    a.raw(f"s_sleep {POLL_SLEEP}")
    a.raw(f"buffer_load_dword v{v}, v{v+3}, s[8:11], s79 offen sc1")
    a.raw("s_waitcnt vmcnt(0)")
    a.raw(f"v_cmp_ne_u32 vcc, 1, v{v}")
    a.raw("s_add_u32 s21, s21, 1")
    a.raw("s_cmp_ge_u32 s21, 0x40000")
    a.raw(f"s_cbranch_scc1 {lbl}_ok")
    a.raw("s_nop 1")
    a.raw(f"s_cbranch_vccnz {lbl}_lp")
    a.label(f"{lbl}_ok")
    a.nop(2)


def touches(a, sbase, nl_wave, vtmp, dst, add=0):
    L = []
    n = (nl_wave + 63) // 64
    for i in range(n):
        def f(i=i):
            if (i + 1) * 64 > nl_wave:
                a.i(f"v_min_u32 v{vtmp}, {nl_wave-1-64*i}, v1")
                a.i(f"v_lshlrev_b32 v{vtmp}, 7, v{vtmp}")
            else:
                a.i(f"v_lshlrev_b32 v{vtmp}, 7, v1")
            a.i(f"s_add_u32 s35, s{sbase}, {add + 8192*i}")
            a.i(f"buffer_load_dword v{dst}, v{vtmp}, s[8:11], s35 offen")
        L.append(f)
    return L


def p3_src(blk, i):
    if blk < 6:
        return 2 * (blk // 2) + i // 5, 20 * (blk % 2) + i % 5
    return 6, i


def p3_lds(c, kb):
    if c < 6:
        blk = 2 * (c // 2) + kb // 20
        w, r = (kb % 20) // 5, kb % 5
        return blk, (blk % 4) * 40960 + w * 10240 + ((c & 1) * 5 + r) * 1024
    return 6, 2 * 40960 + kb * 1024


def p3_dma(a, blk, vlane):
    L = []
    toks = []
    for i in range(10):
        c, kb = p3_src(blk, i)
        first = i in (0, 4, 5, 9) if blk < 6 else i % 4 == 0
        if first:
            i0 = i
            def setm(i=i, c=c, kb=kb):
                a.i(f"s_add_u32 s68, s67, {(blk % 4) * 40960 + i * 1024}")
                a.i("s_mov_b32 m0, s68")
                a.i(f"s_add_u32 s69, {'s66' if blk < 6 else 's59'}, {((c if c < 6 else 0) * 40 + kb) * 1024}")
            L.append(setm)
        tk = Tok(); toks.append(tk)
        L.append((f"buffer_load_dwordx4 v{vlane}, s[56:59 - 0], s69 offen offset:{(i - i0) * 1024} lds".replace("s[56:59 - 0]", "s[36:39]"), tk))
    return L, toks


def red_setup(a, stride, lds0, vbase):
    for rp in (1, 2, 3):
        a.i(f"s_add_u32 s20, s16, {rp}")
        a.i("s_and_b32 s20, s20, 3")
        a.i(f"s_mul_i32 s20, s20, {3*stride}")
        a.i(f"s_add_u32 s20, s20, {lds0 + (rp-1)*stride}")
        a.i(f"v_add_u32 v{vbase+rp-1}, s20, v2")
    a.i(f"s_mul_i32 s20, s16, {3*stride}")
    a.i(f"s_add_u32 s20, s20, {lds0}")
    a.i(f"v_add_u32 v{vbase+3}, s20, v2")


def mix(x, y):
    out = []
    k = 0
    for i, e in enumerate(x):
        out.append(e)
        while k < len(y) and (k + 1) * len(x) <= (i + 1) * len(y):
            out.append(y[k]); k += 1
    return out + y[k:]


def body_p2(a, pre_dma, tch0, tch, tch2):
    SF = "sc1"
    a.many(f"""s_add_u32 s19, s62, s18
              s_mul_i32 s19, s19, {1 if P2_ROT else 0}
              s_add_u32 s19, s19, s16
              s_and_b32 s19, s19, 3
              v_lshlrev_b32 v2, 4, v1
              v_add_u32 v3, 0x1000, v2
              v_lshrrev_b32 v8, 4, v1
              v_lshlrev_b32 v9, 4, v8""")
    a.many(f"""s_mul_i32 s22, s19, 5
              s_mul_i32 s27, s19, {26*1024}
              s_add_u32 s27, s27, {WS_KV}
              s_mul_i32 s28, s19, 640
              s_add_u32 s28, s28, {WS_Z}""")
    a.wait_lg0()
    srd(a, 8, 4, WS_BYTES)
    KVR, ZR = 16, 120
    KF, ZF = 160, 232
    NUM = [16, 64]; OF = [112, 132]; TT = 152
    ACC, WOF, PQF = 0, 96, 216
    ORDER = [1, 2, 3, 0]

    def z_loads(gq):
        return [f"buffer_load_dwordx4 {vr(ZR+ab*4)}, v9, s[8:11], s28 offen offset:{ab*64}" for ab in range(5 * gq, 5 * gq + 5)]

    def kv_loads(gq):
        L = []
        for i in range(13 * gq, 13 * gq + 13):
            if i % 8 == 0 or i == 13 * gq:
                L.append(f"s_add_u32 s29, s27, {(i // 8) * 8192}")
            L.append(f"buffer_load_dwordx4 {vr(KVR+i*4)}, {'v2' if i % 8 < 4 else 'v3'}, s[8:11], s29 offen offset:{(i % 4)*1024}")
        return L
    interleave(a, tch0 + z_loads(0) + kv_loads(0), [])
    srd(a, 12, 6, OUT_BYTES)
    srd(a, 36, 4, WS_WGU + 108 * 40960)
    srd(a, 96, 52, OUT_BYTES)
    for k, rp in enumerate(ORDER):
        a.i(f"s_add_u32 s23, s16, {rp}")
        a.i("s_and_b32 s23, s23, 3")
        a.i("s_lshl_b32 s23, s23, 10")
        a.i(f"v_add_u32 v{4+k}, s23, v2")
    a.many(f"""s_mul_i32 s24, s17, 20
              s_add_u32 s24, s24, s22
              s_lshl_b32 s24, s24, 12
              s_add_u32 s24, s24, {WS_PQ}
              s_mul_i32 s25, s18, 100
              s_add_u32 s25, s25, s22
              s_lshl_b32 s25, s25, 10
              s_add_u32 s25, s25, {WS_WO}
              s_lshl_b32 s26, s22, 10
              s_add_u32 s26, s26, {WS_RM}""")

    def pq_loads(k):
        L = []
        for j in range(5):
            L.append(f"s_add_u32 s29, s24, {j*4096}")
            L.append(f"buffer_load_dwordx4 {vr(PQF+(k % 2)*20+j*4, 4, 'a')}, v{4+k}, s[8:11], s29 offen")
        return L

    def wo_loads(b):
        L = [f"s_add_u32 s30, {'s25' if b < 5 else 's26'}, {b*20480 if b < 5 else 0}"]
        for j in range(5):
            L.append(f"buffer_load_dwordx4 {vr(WOF+(j*6+b)*4, 4, 'a')}, {'v2' if j < 4 else 'v3'}, s[8:11], s30 offen offset:{(j % 4)*1024}")
        return L
    pqtok = {2: [], 3: []}
    def pq_dma(k):
        L = []
        for j in range(5):
            def setm(j=j):
                a.i(f"s_add_u32 s29, s24, {j*4096}")
                a.i(f"s_add_u32 s68, s67, {(k-2)*5120 + j*1024}")
                a.i("s_mov_b32 m0, s68")
            L.append(setm)
            tk = Tok(); pqtok[k].append(tk)
            L.append((f"buffer_load_dwordx4 v{4+k}, s[8:11], s29 offen lds", tk))
        return L
    def pq_rd(k):
        return [(f"ds_read_b128 {vr(PQF+(k % 2)*20+j*4, 4, 'a')}, v159 offset:{(k-2)*5120 + j*1024}", None, pqtok[k]) for j in range(5)]
    interleave(a, pq_loads(0) + z_loads(1) + kv_loads(1) + pq_loads(1), [])
    for ap in range(5):
        m = 0
        for l in range(64):
            if (16 * ap + 4 * (l >> 4)) // 20 == (l & 3):
                m |= 1 << l
        smask(a, 40 + 2 * ap, m)
    smask(a, 50, 0xFFFFFFFFFFFF0000); smask(a, 52, 0xFFFFFFFF00000000); smask(a, 54, 0xFFFF000000000000)
    a.i(f"s_mov_b32 s32, {f32(1e-6)}"); a.i(f"s_mov_b32 s33, {f32(1e-6)}")
    for r in range(TT, TT + 8):
        a.ever.add(("v", r))
    if P2_FINE: stamp(a)
    conv = [[], []]
    zf = {}
    for zb in range(2):
        for j in ([0, 1, 2] if zb == 0 else [2, 3, 4]):
            r = ZF + len(zf) * 4
            zf[(zb, j)] = r
            for h in range(2):
                ab = 2 * j + h
                if ab // 5 == zb:
                    for jj in range(2):
                        conv[zb].append(f"v_cvt_pk_bf16_f32 v{r+2*h+jj}, v{ZR+ab*4+2*jj}, v{ZR+ab*4+2*jj+1}")
                    for jj in range(2):
                        conv[zb].append(f"v_cndmask_b32 v{r+2*h+jj}, 0, v{r+2*h+jj}, s[{40+2*(ab % 5)}:{41+2*(ab % 5)}]")
                else:
                    conv[zb] += [f"v_mov_b32 v{r+2*h}, 0", f"v_mov_b32 v{r+2*h+1}, 0"]
    kf = {}
    for b in range(10):
        for j in range(5):
            val = [(ab // 5 == b // 5 and abs(ab - b) <= 1) for ab in (2 * j, 2 * j + 1)]
            if not any(val):
                continue
            r = KF + len(kf) * 4
            kf[(b, j)] = r
            for h in range(2):
                ab = 2 * j + h
                if val[h]:
                    src = KVR + (13 * (b // 5) + 2 * (ab % 5) + (b % 5)) * 4
                    for jj in range(2):
                        conv[b // 5].append(f"v_cvt_pk_bf16_f32 v{r+2*h+jj}, v{src+2*jj}, v{src+2*jj+1}")
                else:
                    conv[b // 5] += [f"v_mov_b32 v{r+2*h}, 0", f"v_mov_b32 v{r+2*h+1}, 0"]
    wl = sum([wo_loads(b) for b in range(6)], [])

    def o_mfma(k):
        N = NUM[k % 2]
        L = []
        pq = lambda j: vr(PQF + (k % 2) * 20 + j * 4, 4, 'a')
        for zb in range(2):
            first = True
            for (z2, j), r in zf.items():
                if z2 == zb:
                    L.append(mfma(vr(N + 40 + zb * 4), vr(r), pq(j), "0" if first else None)); first = False
            for b in range(5 * zb, 5 * zb + 5):
                first = True
                for (b2, j), r in kf.items():
                    if b2 == b:
                        L.append(mfma(vr(N + b * 4), vr(r), pq(j), "0" if first else None)); first = False
        return L

    def o_valu(k):
        N = NUM[k % 2]; O = OF[k % 2]
        L = []
        for gq in range(2):
            d = N + 40 + gq * 4
            for h in (0, 2):
                L.append(f"v_pk_add_f32 {vr(d+h, 2)}, {vr(d+h, 2)}, s[32:33]")
            for h in range(4):
                L.append(f"v_rcp_f32 v{d+h}, v{d+h}")
            for q in range(3):
                L.append(f"v_cndmask_b32 v{TT+gq*3+q}, v{d+q}, v{d+q+1}, s[{50+2*q}:{51+2*q}]")
            for b in range(5 * gq, 5 * gq + 5):
                bp = b % 5
                fr = d if bp == 0 else (d + 3 if bp == 4 else TT + gq * 3 + bp - 1)
                sel = "op_sel_hi:[1,0]" if fr % 2 == 0 else "op_sel:[0,1]"
                for jj in (0, 2):
                    L.append(f"v_pk_mul_f32 {vr(N+b*4+jj, 2)}, {vr(N+b*4+jj, 2)}, {vr(fr - fr % 2, 2)} {sel}")
                for jj in range(2):
                    L.append(f"v_cvt_pk_bf16_f32 v{O+b*2+jj}, v{N+b*4+2*jj}, v{N+b*4+2*jj+1}")
        return L

    def main_mfma(k):
        O = OF[k % 2]; rp = ORDER[k]
        L = []
        for bp in range(3):
            for j in range(5):
                for b in (2 * bp, 2 * bp + 1):
                    L.append(mfma(vr(ACC + (rp * 6 + b) * 4, 4, 'a'), vr(WOF + (j * 6 + b) * 4, 4, 'a'), vr(O + j * 4), "0" if j == 0 else None))
        return L

    def red_wr(k):
        rp = ORDER[k]
        L = [f"ds_write_b128 v{10+rp-1}, {vr(ACC+(rp*6+b)*4, 4, 'a')} offset:{b*1024}" for b in range(5)]
        def mean_wr():
            a.i("s_mov_b64 exec, 0xffff")
            a.i(f"ds_write_b128 v{10+rp-1}, {vr(ACC+(rp*6+5)*4, 4, 'a')} offset:5120")
            a.i("s_mov_b64 exec, -1")
        return L + [mean_wr]
    interleave(a, conv[0] + conv[1], wl[:14])
    if P2_FINE: stamp(a)
    red_setup(a, 5376, 81920, 10)
    a.i("s_mov_b32 s58, s20")
    interleave(a, o_mfma(0), wl[14:24])
    a.i("v_add_u32 v159, s67, v2")
    interleave(a, o_mfma(1), mix(o_valu(0)[:36], wl[24:]))
    interleave(a, [], mix(o_valu(0)[36:], pq_dma(2) + pq_dma(3)))
    if P2_FINE: stamp(a)
    xs = f"""s_lshl_b32 s31, s17, 2
              s_add_u32 s31, s31, s16
              s_mul_i32 s76, s31, 20480
              s_mul_i32 s77, s18, 160
              s_add_u32 s76, s76, s77
              s_lshl_b32 s77, s31, 6
              s_add_u32 s77, s77, {WS_ST1 + 8192}
              s_mul_i32 s34, s16, 3072
              s_add_u32 s34, s34, 146432
              s_mov_b32 m0, s34
              s_movk_i32 s20, 0x199a
              v_and_b32 v14, 15, v1
              v_lshlrev_b32 v9, 2, v14""".split("\n")
    xtok = []
    for i in range(3):
        xs += [f"v_add_u32 v15, {64*i}, v1", "v_mul_u32_u24 v158, s20, v15", "v_lshrrev_b32 v158, 16, v158",
               f"v_mul_u32_u24 v158, {1280-160}, v158", "v_lshl_add_u32 v15, v15, 4, v158"]
        if i:
            xs.append(f"v_subrev_u32 v15, {1024*i}, v15")
        tk = Tok(); xtok.append(tk)
        xs.append((f"buffer_load_dwordx4 v15, s[12:15], s76 offen offset:{1024*i} lds", tk))
    xs.append("buffer_load_dword v158, v9, s[8:11], s77 offen")
    xs = [x.strip() if isinstance(x, str) else x for x in xs]
    interleave(a, main_mfma(0), o_valu(1)[:40] + xs + pq_rd(2))
    interleave(a, o_mfma(2), o_valu(1)[40:] + pq_rd(3) + red_wr(0))
    a.wait_lg0()
    interleave(a, main_mfma(1), mix(o_valu(2)[:45], pre_dma[:12]))
    interleave(a, o_mfma(3), mix(o_valu(2)[45:] + red_wr(1), pre_dma[12:20]))
    if P2_FINE: stamp(a)
    XR = 160
    xl = [f"v_mul_u32_u24 v15, 160, v14", "v_lshl_add_u32 v15, v8, 3, v15", "v_add_u32 v15, s34, v15"]
    xl += [(f"ds_read_b64 {vr(XR+2*b, 2)}, v15 offset:{b*32}", None, xtok) for b in range(5)]
    xl.append(f"v_mov_b32 v{XR+10}, v158")
    interleave(a, main_mfma(2), mix(o_valu(3), pre_dma[20:] + tch[:22]))
    interleave(a, [], red_wr(2) + tch2 + xl)
    a.wait_lg0()
    a.i("s_barrier")
    if P2_FINE: stamp(a)
    PS = 176
    side = []
    side += ["v_lshlrev_b32 v7, 4, v14", "v_add_u32 v7, s58, v7"]
    for q in range(3):
        side.append(f"ds_read_b32 v{76+q*4}, v7 offset:{q*5376+5120}")
    for b in range(5):
        for q in range(3):
            side.append(f"ds_read_b128 {vr(16+(b*3+q)*4)}, v13 offset:{q*5376+b*1024}")
    for b in (5, 0, 1, 2, 3, 4):
        for j in range(4 if b < 5 else 1):
            side.append(f"v_add_f32 v{PS+b*4+j}, v{16+b*12+j}, v{16+b*12+4+j}")
            side.append(f"v_add_f32 v{PS+b*4+j}, v{PS+b*4+j}, v{16+b*12+8+j}")
        if b == 5:
            side.append(f"v_add_f32 v{XR+10}, v{XR+10}, v{PS+20}")
    for b in range(5):
        for jj in range(2):
            h = XR + b * 2 + jj
            side.append(f"v_lshlrev_b32 v4, 16, v{h}")
            side.append(f"v_and_b32 v5, 0xffff0000, v{h}")
            side.append(f"v_add_f32 v{PS+b*4+2*jj}, v{PS+b*4+2*jj}, v4")
            side.append(f"v_add_f32 v{PS+b*4+2*jj+1}, v{PS+b*4+2*jj+1}, v5")
    side += f"""v_bfe_u32 v4, v1, 4, 1
              v_lshlrev_b32 v4, 9, v4
              v_lshl_add_u32 v4, v14, 4, v4
              v_lshrrev_b32 v6, 5, v1
              v_lshl_add_u32 v5, v6, 3, v4
              v_lshl_add_u32 v4, v6, 10, v4
              s_lshl_b32 s26, s17, 1
              s_lshr_b32 s27, s16, 1
              s_add_u32 s26, s26, s27
              s_mul_i32 s26, s26, 40
              s_mul_i32 s27, s18, 5
              s_add_u32 s26, s26, s27
              s_lshl_b32 s26, s26, 10
              s_and_b32 s27, s16, 1
              s_lshl_b32 s27, s27, 8
              s_add_u32 s27, s27, s26
              s_add_u32 s27, s27, {WS_H}
              s_add_u32 s26, s27, 4096
              v_lshlrev_b32 v6, 5, v14
              s_lshl_b32 s28, s31, 9
              s_lshl_b32 s29, s18, 2
              s_add_u32 s28, s28, s29
              s_add_u32 s28, s28, {WS_ST2}
              s_lshl_b32 s29, s31, 6
              s_add_u32 s29, s29, {WS_M2}""".split("\n")
    interleave(a, main_mfma(3), tch[22:] + [x.strip() for x in side])
    if P2_FINE: stamp(a)
    OUT = 16
    a.i(f"v_accvgpr_read_b32 v7, a{ACC+20}")
    for k in range(20):
        a.i(f"v_accvgpr_read_b32 v{OUT+k}, a{ACC+k}")
    a.i(f"v_add_f32 v{XR+10}, v{XR+10}, v7")
    for k in range(20):
        a.i(f"v_add_f32 v{OUT+k}, v{OUT+k}, v{PS+k}")
    for k in range(20):
        a.i(f"v_sub_f32 v{OUT+k}, v{OUT+k}, v{XR+10}")
    PK = 200
    for b in range(5):
        for jj in range(2):
            a.i(f"v_cvt_pk_bf16_f32 v{PK+b*2+jj}, v{OUT+b*4+2*jj}, v{OUT+b*4+2*jj+1}")
    for p in range(2):
        r = PK + p * 4
        a.i(f"v_permlane32_swap_b32 v{r}, v{r+2}")
        a.i(f"v_permlane32_swap_b32 v{r+1}, v{r+3}")
        a.i(f"buffer_store_dwordx4 {vr(r)}, v4, s[8:11], s27 offen offset:{p*2048} {SF}")
    a.i(f"buffer_store_dwordx2 {vr(PK+8, 2)}, v5, s[8:11], s26 offen {SF}")
    a.i(f"v_mul_f32 v14, v{OUT}, v{OUT}")
    a.i(f"v_mul_f32 v15, v{OUT+1}, v{OUT+1}")
    for k in range(2, 20):
        a.i(f"v_fmac_f32 v{14 + k % 2}, v{OUT+k}, v{OUT+k}")
    a.many("""v_add_f32 v14, v14, v15
              v_mov_b32 v15, v14
              v_permlane16_swap_b32 v14, v15
              v_add_f32 v14, v14, v15
              v_mov_b32 v15, v14
              v_permlane32_swap_b32 v14, v15
              v_add_f32 v14, v14, v15
              s_mov_b64 exec, 0xffff""")
    a.i(f"buffer_store_dword v14, v6, s[8:11], s28 offen {SF}")
    a.i(f"buffer_store_dword v{XR+10}, v9, s[8:11], s29 offen {SF}")
    a.i("s_mov_b64 exec, -1")


P3_STAMPS = (3,)
P2_FINE = False
T1N = 3
SYNC_FINE = -1
W4TOK = []
P4_NPRE = 10


def p4_wreg(j, b):
    n = j * 5 + b
    if j >= P4_NPRE:
        return vr(64 + (n - P4_NPRE * 5) * 4, 4, 'a')
    if n < 11:
        return vr(212 + n * 4)
    if n < 21:
        return vr(216 + (n - 11) * 4, 4, 'a')
    if n < 44:
        return vr(120 + (n - 21) * 4)
    return vr(192 + (n - 44) * 4, 4, 'a')


KORD = [0, 1, 4, 5, 7, 8, 11, 12, 2, 3, 6, 9, 10, 13]


def p4_setup(a):
    a.many(f"""s_mul_i32 s21, s16, 14
              s_mul_i32 s70, s17, 54
              s_add_u32 s70, s70, s21
              s_lshl_b32 s70, s70, 12
              s_add_u32 s70, s70, {WS_ACT}
              s_mul_i32 s71, s18, 270
              s_add_u32 s71, s71, s21
              s_lshl_b32 s71, s71, 10
              s_add_u32 s71, s71, {WS_WD}
              s_cmp_eq_u32 s16, 3
              s_cselect_b32 s72, s56, s71
              s_cselect_b32 s74, s56, s70""")


def p4_wloads(a, j):
    L = []
    k = KORD[j]
    for b in range(5):
        L.append(f"s_add_u32 s73, {'s71' if k < 12 else 's72'}, {(b*54 + k)*1024}")
        L.append(f"buffer_load_dwordx4 {p4_wreg(j, b)}, v2, s[8:11], s73 offen")
    return L


AQ_TOTAL = [0]
def body_p3(a, D, W4rest, bar_at=0.7, rd_ahead=6, dbg="", pace0=1, pace1=2, arate=3, w0=36, wstep=4.8, wgrp=4, pswitch=40):
    SF = "sc1"
    a.many(f"""v_lshlrev_b32 v2, 4, v1
              v_add_u32 v3, 0x1000, v2
              v_and_b32 v4, 31, v1
              s_lshl_b32 s26, s60, 2
              s_add_u32 s26, s26, s16
              s_mul_i32 s27, s26, 40960
              s_add_u32 s27, s27, {WS_H}
              v_lshlrev_b32 v5, 5, v4
              s_lshl_b32 s28, s26, 10
              s_add_u32 s28, s28, {WS_ST2}""")
    ACC = 16; ST = 80; RA2, RSQ = 8, 9; T = 96; PK = 88; WF = 160; NB = 7

    def slab(k0, k1):
        L = []
        for kb in range(k0, k1):
            if kb % 4 == 0 or kb == k0:
                L.append(f"s_add_u32 s34, s27, {(kb // 4) * 4096}")
            L.append(f"buffer_load_dwordx4 {vr(kb*4, 4, 'a')}, v2, s[8:11], s34 offen offset:{(kb % 4) * 1024} {'' if 'plain' in dbg else 'sc1'}")
        return L
    interleave(a, slab(0, NSLAB0), [])
    a.many(f"""s_lshl_b32 s30, s60, 1
              s_lshr_b32 s31, s16, 1
              s_add_u32 s30, s30, s31
              s_mul_i32 s30, s30, 108
              s_mul_i32 s31, s61, 7
              s_add_u32 s30, s30, s31
              s_lshl_b32 s30, s30, 1
              s_and_b32 s31, s16, 1
              s_add_u32 s30, s30, s31
              s_lshl_b32 s30, s30, 10
              s_add_u32 s30, s30, {WS_ACT}
              s_xor_b32 s32, s57, 1
              s_mul_i32 s32, s32, {6*2048}
              s_add_u32 s32, s32, s30
              s_lshl_b32 s31, s57, 11
              s_add_u32 s30, s30, s31
              s_cmp_eq_u32 s61, 15
              s_cselect_b32 s31, 0x7f000000, s30
              v_add_u32 v13, 0x10000, v2
              v_add_u32 v14, 0x20000, v2""")
    steps = sorted((gu_pos(c, kb), c, kb) for c in range(7) for kb in range(40))

    def rd(n):
        p, c, kb = steps[n]
        blk_, off = p3_lds(c, kb)
        assert blk_ == p // 40
        base = ["v2", "v13", "v14"][off >> 16]
        return f"ds_read_b128 {vr(WF + (n % 8) * 4, 4, 'a')}, {base} offset:{off & 0xffff}"

    def mm(n):
        p, c, kb = steps[n]
        sl = c % 4 if c < 6 else 2 + (kb & 1)
        d = vr(ACC + sl * 16, 16)
        return mfma32(d, vr(WF + (n % 8) * 4, 4, 'a'), vr(kb * 4, 4, 'a'), "0" if (kb == 0 or (c == 6 and kb == 1)) else None)

    sttok = {}
    def epi(c):
        L = []
        g0 = ACC + (c % 4) * 16
        u0 = g0 + 8
        pk = PK + (c % 2) * 4
        if c == 6:
            L += [f"v_add_f32 v{g0+j}, v{g0+j}, v{g0+16+j}" for j in range(16)]
        for hf in range(2):
            R = range(4 * hf, 4 * hf + 4)
            for j in R:
                L.append(f"v_mul_f32 v{T+j}, v{RA2}, v{g0+j}")
            for j in R:
                L.append(f"v_exp_f32 v{T+j}, v{T+j}")
                L.append(f"v_mul_f32 v{T+8+j}, v{g0+j}, v{u0+j}")
            for j in R:
                L.append(f"v_add_f32 v{T+j}, 1.0, v{T+j}")
            for j in R:
                L.append(f"v_rcp_f32 v{T+j}, v{T+j}")
                L.append(f"v_mul_f32 v{T+8+j}, v{RSQ}, v{T+8+j}")
            for j in R:
                L.append(f"v_mul_f32 v{T+8+j}, v{T+8+j}, v{T+j}")
            for jj in range(2 * hf, 2 * hf + 2):
                L.append(f"v_cvt_pk_bf16_f32 v{pk+jj}, v{T+8+2*jj}, v{T+8+2*jj+1}")
        L.append(f"s_add_u32 s35, {'s30' if c < 2 else ('s31' if c < 6 else 's32')}, {c*2048 if c < 6 else 0}")
        L.append((f"buffer_store_dwordx4 {vr(pk)}, v2, s[8:11], s35 offen {SF}", sttok.setdefault(c, Tok())))
        return L

    stats = [f"buffer_load_dwordx4 {vr(ST+q*4)}, v5, s[8:11], s28 offen offset:{q*16} sc1" for q in range(2)]
    sfin = [f"v_add_f32 v{ST}, v{ST}, v{ST+k}" for k in range(1, 8)]
    sfin += [f"v_mov_b32 v{ST+1}, {f32(1e-5)}", f"v_fmac_f32 v{ST+1}, {f32(1/640)}, v{ST}", f"v_rsq_f32 v{RA2}, v{ST+1}",
             f"v_rcp_f32 v{RSQ}, v{ST+1}", f"v_mul_f32 v{RA2}, {f32(-LOG2E)}, v{RA2}"]
    cut = int(40 * bar_at)

    def groups(L):
        out, cur = [], []
        for x in L:
            cur.append(x)
            t = x[0] if isinstance(x, tuple) else x
            if isinstance(t, str) and t.startswith("buffer_"):
                out.append(cur); cur = []
        if cur and out:
            out[-1] = out[-1] + cur
        return out
    vq = []
    if D23_IN_P3:
        vq += [(0, g) for g in groups(slab(NSLAB0, 30) + D[2][0] + slab(30, 40) + stats + D[3][0])]
    else:
        vq += [(0, g) for g in groups(slab(NSLAB0, 40) + stats)]
    for b in (4, 5, 6):
        vq += [(40 * (b - 3) + cut, g) for g in groups(D[b][0])]
    wq = [(w0 + int(wstep * k), g) for k, g in enumerate(groups(W4rest))]
    if "now4" in dbg:
        for j in range(P4_NPRE):
            for b in range(5):
                for r in regs_of(p4_wreg(j, b)): a.ever.add(r)
        wq = []
    if "hotw4" in dbg:
        wq = [(e, [x.replace("s71", "s27") if isinstance(x, str) else x for x in g]) for e, g in wq]
    if "latew4" in dbg:
        wq = [(160, g) for _, g in wq]
    def w4_dma(j):
        L = []
        k = KORD[j]
        base = (3 * 40960 if j < 12 else 0) + (j % 2) * 5120
        for b in range(5):
            def setm(b=b):
                a.i(f"s_add_u32 s68, s67, {base + b * 1024}")
                a.i("s_mov_b32 m0, s68")
                a.i(f"s_add_u32 s73, {'s71' if k < 12 else 's72'}, {(b*54 + k)*1024}")
            L.append(setm)
            L.append(f"buffer_load_dwordx4 v2, s[8:11], s73 offen lds")
        return L
    if W4_LDS:
        lq = groups(sum([w4_dma(j) for j in range(P4_NPRE, 14)], []))
        e0 = max(wq[-1][0] if wq else 0, 200 + cut)
        wq += [(min(e0 + 2 * k, 279), g) for k, g in enumerate(lq)]
    aq = [(60, [x]) for x in sfin]
    for c in range(6):
        aq += [(80 * (c // 2 + 1) + 1, [x]) for x in epi(c)]
    atotal = len(aq)

    def emit(items):
        for x in items:
            if callable(x): x()
            elif isinstance(x, tuple): a.i(*x)
            else: a.i(x)
    NB = 7
    a.wait_tok(D[0][1][-1], D[1][1][-1])
    a.i("s_barrier")
    nrd = 0
    rdseq = {}
    last_v = -99
    for n in range(NB * 40):
        blk, i = n // 40, n % 40
        if i == cut and 1 <= blk < NB - 1:
            a.wait_tok(D[blk + 1][1][-1])
            if blk == 5:
                need = len(sfin) + sum(len(epi(c)) for c in range(4))
                while atotal - len(aq) < need:
                    emit(aq.pop(0)[1])
                a.wait_tok(sttok[3])
            a.i("s_barrier")
            if blk == 5:
                flag_store(a, 1)
        if n in (160, 240):
            need = len(sfin) + sum(len(epi(c)) for c in range(2 if n == 160 else 4))
            while atotal - len(aq) < need:
                emit(aq.pop(0)[1])
        lim = min(n + rd_ahead + 1, (blk + 1) * 40 if (i < cut and blk >= 1) else min((blk + 2) * 40, NB * 40))
        while nrd < lim:
            a.i(rd(nrd)); rdseq[nrd] = a.lg_n - 1; nrd += 1
        if n % wgrp == 0:
            a.need(lgseq=rdseq[min(n + wgrp - 1, nrd - 1)])
        a.i(mm(n))
        pace = pace0 if n < pswitch else pace1
        if n - last_v >= pace:
            if vq and vq[0][0] <= n:
                emit(vq.pop(0)[1]); last_v = n
            elif wq and wq[0][0] <= n:
                emit(wq.pop(0)[1]); last_v = n
        k = 0
        while aq and aq[0][0] <= n and k < arate:
            emit(aq.pop(0)[1]); k += 1
        if i == 39 and blk in P3_STAMPS:
            stamp(a)
        if n == 268:
            poll_issue(a, 1, 12)
    assert not vq
    for q in (aq, wq):
        while q:
            emit(q.pop(0)[1])
    interleave(a, epi(6), [])
    return sttok[6]


def body_p4(a, name, last_store, depth=4):
    ACC = 16
    NK = 14
    ORDER = [1, 2, 3, 0]
    a.many("""v_lshrrev_b32 v8, 5, v1
              v_lshlrev_b32 v8, 11, v8
              v_bfe_u32 v9, v1, 4, 1
              v_lshl_add_u32 v8, v9, 9, v8
              v_and_b32 v9, 15, v1
              v_lshl_add_u32 v8, v9, 4, v8""")
    for k, rp in enumerate(ORDER):
        a.i(f"s_add_u32 s22, s16, {rp}")
        a.i("s_and_b32 s23, s22, 1")
        a.i("s_lshl_b32 s23, s23, 8")
        a.i("s_and_b32 s22, s22, 2")
        a.i("s_lshl_b32 s22, s22, 9")
        a.i("s_add_u32 s22, s22, s23")
        a.i(f"v_add_u32 v{4+k}, s22, v8")

    def aloads(j):
        base = (j % depth) * 16
        k = KORD[j]
        L = [f"s_add_u32 s75, {'s70' if k < 12 else 's74'}, {k*4096}"]
        L += [f"buffer_load_dwordx4 {vr(base+x*4, 4, 'a')}, v{4+x}, s[8:11], s75 offen sc1" for x in range(4)]
        return L
    poll_check(a, f"L_pa_{name}", 12)
    for j in range(depth - 1):
        interleave(a, aloads(j), [])
    a.wait_tok(last_store)
    a.i("s_barrier")
    flag_store(a, 2)
    if W4_LDS:
        a.i("v_add_u32 v13, s67, v2")
        a.i("v_add_u32 v14, 0x1e000, v13")
        late_w = []
        for j in range(P4_NPRE, 14):
            for b in range(5):
                late_w += [f"ds_read_b128 {p4_wreg(j, b)}, {'v14' if j < 12 else 'v13'} offset:{(j % 2) * 5120 + b * 1024}", "s_nop 0"]
    else:
        late_w = sum([p4_wloads(a, j) for j in range(P4_NPRE, 14)], [])
    HR = 100
    a.many(f"""v_bfe_u32 v10, v1, 4, 1
              v_lshlrev_b32 v10, 9, v10
              v_lshl_add_u32 v10, v9, 4, v10
              v_lshrrev_b32 v12, 5, v1
              v_lshl_add_u32 v10, v12, 3, v10
              v_lshlrev_b32 v11, 2, v9
              s_lshl_b32 s26, s17, 1
              s_lshr_b32 s27, s16, 1
              s_add_u32 s26, s26, s27
              s_mul_i32 s26, s26, 40
              s_mul_i32 s27, s18, 5
              s_add_u32 s26, s26, s27
              s_lshl_b32 s26, s26, 10
              s_and_b32 s27, s16, 1
              s_lshl_b32 s27, s27, 8
              s_add_u32 s27, s27, s26
              s_add_u32 s27, s27, {WS_H}
              s_add_u32 s26, s27, 4096
              s_lshl_b32 s28, s17, 2
              s_add_u32 s28, s28, s16
              s_lshl_b32 s28, s28, 6
              s_add_u32 s28, s28, {WS_M2}""")
    red_setup(a, 5120, 40960, 96)
    hl = [f"buffer_load_dwordx2 {vr(HR+2*b, 2)}, v10, s[8:11], s27 offen offset:{b*1024} sc1" for b in range(4)]
    hl += [f"buffer_load_dwordx2 {vr(HR+8, 2)}, v10, s[8:11], s26 offen sc1",
           f"buffer_load_dword v{HR+10}, v11, s[8:11], s28 offen sc1"]

    def mm(j, k):
        rp = ORDER[k]
        return [mfma(vr(ACC + (rp * 5 + b) * 4), p4_wreg(j, b), vr((j % depth) * 16 + k * 4, 4, 'a'), "0" if j == 0 else None) for b in range(5)]
    NT = 3
    for j in range(NK - NT):
        M = []
        for b in range(5):
            for k in range(4):
                M.append(mm(j, k)[b])
        side = aloads(j + depth - 1) if j + depth - 1 < NK else []
        if j == 2:
            side = side + hl
        if j < 4:
            side = side + late_w[j * 10:(j + 1) * 10]
        if j == 3:
            side = side + [lambda: poll_issue(a, 2, 12)]
        if j + depth - 1 == 8:
            poll_check(a, f"L_pb_{name}", 12)
        interleave(a, M, side)
    wr = lambda k: [f"ds_write_b128 v{96+ORDER[k]-1}, {vr(ACC+(ORDER[k]*5+b)*4)} offset:{b*1024}" for b in range(5)]
    tail = lambda k: sum([mm(j, k) for j in range(NK - NT, NK)], [])
    interleave(a, tail(0), [])
    interleave(a, tail(1), wr(0), start=4)
    interleave(a, tail(2), wr(1), start=4)
    side = f"""v_lshrrev_b32 v3, 4, v1
              s_movk_i32 s20, 1280
              v_mul_lo_u32 v2, v9, s20
              v_and_b32 v4, 1, v3
              v_lshlrev_b32 v4, 5, v4
              v_lshrrev_b32 v5, 1, v3
              v_lshlrev_b32 v5, 4, v5
              v_add3_u32 v4, v4, v5, v2
              v_lshl_add_u32 v5, v3, 3, v2
              s_lshl_b32 s20, s17, 2
              s_add_u32 s20, s20, s16
              s_mul_i32 s20, s20, 20480
              s_mul_i32 s21, s18, 160
              s_add_u32 s20, s20, s21""".split("\n")
    PS = 180
    for b in range(5):
        for jj in range(2):
            h = HR + b * 2 + jj
            side.append(f"v_lshlrev_b32 v{PS+b*4+2*jj}, 16, v{h}")
            side.append(f"v_and_b32 v{PS+b*4+2*jj+1}, 0xffff0000, v{h}")
    side += [f"v_add_f32 v{PS+k}, v{PS+k}, v{HR+10}" for k in range(20)]
    interleave(a, tail(3), wr(2) + [x.strip() for x in side], start=3)
    a.wait_lg0()
    a.i("s_barrier")
    for b in range(5):
        for q in range(3):
            a.i(f"ds_read_b128 {vr(120+(b*3+q)*4)}, v99 offset:{(q*5+b)*1024}")
    for k in range(20):
        a.i(f"v_add_f32 v{ACC+k}, v{ACC+k}, v{PS+k}")
    PK = 112
    for b in range(5):
        for j in range(4):
            a.i(f"v_add_f32 v{120+b*12+j}, v{120+b*12+j}, v{124+b*12+j}")
            a.i(f"v_add_f32 v{ACC+b*4+j}, v{ACC+b*4+j}, v{128+b*12+j}")
        for j in range(4):
            a.i(f"v_add_f32 v{ACC+b*4+j}, v{ACC+b*4+j}, v{120+b*12+j}")
        for jj in range(2):
            a.i(f"v_cvt_pk_bf16_f32 v{PK+(b % 4)*2+jj}, v{ACC+b*4+2*jj}, v{ACC+b*4+2*jj+1}")
        if b % 2 == 1:
            r = PK + (b // 2) * 4
            a.i(f"v_permlane16_swap_b32 v{r}, v{r+2}")
            a.i(f"v_permlane16_swap_b32 v{r+1}, v{r+3}")
            a.i(f"buffer_store_dwordx4 {vr(r)}, v4, s[96:99], s20 offen offset:{(b // 2)*64}")
    a.i(f"buffer_store_dwordx2 {vr(PK, 2)}, v5, s[96:99], s20 offen offset:128")


def gen_b(kidx, name="pb_kernel", dbg="", p3kw={}):
    a = Asm()
    prologue(a, name, 256, [(4, KA_WS), (6, KA_X), (52, KA_OUT)])
    a.many(f"""s_and_b32 s19, s2, 7
              s_lshr_b32 s20, s2, 3
              s_lshr_b32 s62, s20, 3
              s_and_b32 s18, s20, 7
              s_lshr_b32 s60, s19, 1
              s_lshl_b32 s60, s60, 2
              s_add_u32 s60, s60, s62
              s_and_b32 s21, s19, 1
              s_lshl_b32 s17, s60, 1
              s_add_u32 s17, s17, s21
              s_lshl_b32 s61, s21, 3
              s_add_u32 s61, s61, s18
              s_lshl_b32 s64, s60, 7
              s_lshl_b32 s63, s61, 2
              s_add_u32 s63, s63, s64
              s_mul_i32 s59, s61, {280*1024}
              s_add_u32 s59, s59, {WS_WGU}
              s_mul_i32 s67, s16, 10240
              s_mul_i32 s66, s16, 5120
              s_add_u32 s66, s66, s59
              s_add_u32 s59, s59, s67
              s_and_b32 s57, s61, 1
              s_mov_b32 s56, 0x7f000000
              s_mul_i32 s22, s57, 40960
              s_add_u32 s66, s66, s22
              s_xor_b32 s22, s57, 1
              s_mul_i32 s22, s22, {6*40960}
              s_add_u32 s59, s59, s22""")
    D = [p3_dma(a, b, 2) for b in range(7)]
    p4_setup(a)
    W4all = sum([p4_wloads(a, j) for j in range(P4_NPRE)], [])
    body_p2(a, D[0][0] + D[1][0], [], W4all[:2 * W4_P2], [])
    if "fine" not in dbg and SYNC_FINE != 1:
        stamp(a)
    signal_and_wait(a, name, 0, between=None if D23_IN_P3 else (lambda: interleave(a, D[2][0] + D[3][0] + W4all[2 * W4_P2:2 * W4_SY], [])))
    if SYNC_FINE != 1: stamp(a)
    last = body_p3(a, D, W4all[2 * W4_SY:], dbg=dbg, **p3kw)
    stamp(a)
    body_p4(a, name, last)
    epilogue(a, name, kidx, 256)
    print(name, "instrs", a.ninstr, "nops", a.nops)
    return name, kernel_wrap(name, a.text(), 256, 256), 256, 256, 163840
```

```python
import gen, layout
gen.STAMPS = True
from gen import *
import gen1, genb
from gen1 import *
from genb import *
build([dummy(0), dummy(1), gen_p1(2, st_flags="sc1", name="p1a_kernel"), gen_p1(3, st_flags="sc1", name="p1b_kernel")], "t_a.s")
build([dummy(0), dummy(1), gen_p1(2, st_flags="", name="p1a_kernel"), gen_p1(3, st_flags="", name="p1b_kernel")], "t_b.s")
```

```python
import gen
from gen import *
from asmgen import regs_of
from genb import mix

X_BYTES = 2048 * 1280
WQKV_BYTES = 640 * 3840
SLOT = 36864
POLL = 21
DRY_AFTER = 9
EARLY_D2 = True
PRE_IN_LOOP = True
START_FINE = False
AUX_FLAGS = None
AUX_LD = ""
EPI_FINE = False
NEARLY = 0
SPIN_SLEEP = 16


def spin(a, lbl, target, vtmp, stmp, srd_dbg, voff):
    a.raw(f"v_readfirstlane_b32 s{stmp}, v{vtmp}")
    a.raw("s_nop 1")
    a.raw(f"s_cmp_ge_u32 s{stmp}, {target}")
    a.raw(f"s_cbranch_scc1 {lbl}_ok")
    a.raw(f"s_mov_b32 s{stmp+1}, 0")
    a.label(f"{lbl}_loop")
    a.raw(f"s_sleep {SPIN_SLEEP}")
    a.raw(f"buffer_load_dword v{vtmp}, v{voff}, s[{srd_dbg}:{srd_dbg+3}], 0 offen sc1")
    a.raw("s_waitcnt vmcnt(0)")
    a.raw(f"v_readfirstlane_b32 s{stmp}, v{vtmp}")
    a.raw(f"s_add_u32 s{stmp+1}, s{stmp+1}, 1")
    a.raw(f"s_cmp_ge_u32 s{stmp+1}, 0x40000")
    a.raw(f"s_cbranch_scc1 {lbl}_ok")
    a.raw(f"s_cmp_lt_u32 s{stmp}, {target}")
    a.raw(f"s_cbranch_scc1 {lbl}_loop")
    a.label(f"{lbl}_ok")
    a.raw("s_nop 1")


def p1_gemm(a, role, name, st_flags, rot, dbg=""):
    isq = role == "q"
    ACC = 16
    XF, WFR = 0, 8
    a.many("""v_lshrrev_b32 v96, 3, v1
              v_and_b32 v97, 7, v1
              v_lshrrev_b32 v98, 4, v1
              s_movk_i32 s20, 1280""")
    for i in range(4):
        a.i(f"v_add_u32 v99, {8*i}, v96")
        a.i("v_mul_lo_u32 v99, v99, s20")
        a.i(f"v_add_u32 v100, {4*i}, v98")
        a.i("v_and_b32 v100, 7, v100")
        a.i("v_xor_b32 v100, v100, v97")
        a.i("v_lshl_add_u32 v99, v100, 4, v99")
        a.i(f"v_subrev_u32 v{4+i}, {1024*i}, v99")
    seg = 160 if isq else 1280
    a.i("s_mov_b32 s20, 52429"); a.i("s_movk_i32 s21, 3840")
    for i in range(5):
        a.i(f"v_add_u32 v99, {64*i}, v1")
        a.i("v_mul_lo_u32 v100, v99, s20")
        a.i("v_lshrrev_b32 v100, 20, v100")
        a.i("v_mul_u32_u24 v101, 20, v100")
        a.i("v_sub_u32 v99, v99, v101")
        a.i("v_mul_lo_u32 v100, v100, s21")
        a.i("v_lshl_add_u32 v100, v99, 4, v100")
        a.i("v_cmp_le_u32 vcc, 10, v99")
        a.i(f"v_mov_b32 v101, {seg-160}")
        a.i("v_cndmask_b32 v101, 0, v101, vcc")
        a.i("v_add_u32 v100, v100, v101")
        a.i(f"v_subrev_u32 v{8+i}, {1024*i if i < 4 else 0}, v100")
    a.ptrs()
    a.many("""s_lshl_b32 s26, s17, 2
              s_add_u32 s26, s26, s16
              s_mul_i32 s26, s26, 40960
              s_mul_i32 s27, s16, 61440""")
    if isq:
        a.i("s_mul_i32 s20, s18, 320")
    else:
        a.i("s_mul_i32 s20, s18, 160"); a.i("s_add_u32 s20, s20, 640")
    a.many("""s_add_u32 s27, s27, s20
              s_mul_i32 s30, s16, 5120
              s_lshl_b32 s31, s16, 12
              s_add_u32 s31, s31, 20480
              s_mov_b32 s33, 0
              s_mov_b32 s29, 0
              s_mov_b32 s28, 0x7f000000""")

    def dmaA():
        L = ["s_add_u32 s34, s30, s33", "s_mov_b32 m0, s34", "s_add_u32 s34, s34, 4096"]
        L += [f"buffer_load_dwordx4 v{8+i}, s[56:59], s27 offen offset:{1024*i} lds" for i in range(4)]
        return L

    def dmaB():
        L = ["s_mov_b32 m0, s34", "s_add_u32 s34, s31, s33", "buffer_load_dwordx4 v12, s[56:59], s27 offen lds", "s_mov_b32 m0, s34",
             f"s_add_u32 s27, s27, {64*3840}"]
        L += [f"buffer_load_dwordx4 v{4+i}, s[12:15], s26 offen offset:{1024*i} lds" for i in range(4)]
        L += ["s_cmp_eq_u32 s29, 7", "s_cselect_b32 s35, s28, 128", "s_add_u32 s26, s26, s35", f"s_add_u32 s33, s33, {SLOT}", f"s_cmp_eq_u32 s33, {4*SLOT}", "s_cselect_b32 s33, 0, s33"]
        return L
    if START_FINE: stamp(a)
    for st in range(2):
        interleave(a, dmaA() + dmaB(), [])
    if START_FINE: stamp(a)
    a.many("""v_and_b32 v96, 31, v1
              v_lshrrev_b32 v97, 5, v1
              v_bfe_u32 v103, v1, 1, 3
              v_lshlrev_b32 v102, 7, v96
              s_lshl_b32 s20, s16, 12
              v_add_u32 v102, s20, v102""")
    for j in range(4):
        a.i(f"v_add_u32 v104, {2*j}, v97")
        a.i("v_xor_b32 v104, v104, v103")
        a.i(f"v_lshl_add_u32 v{98+j}, v104, 4, v102")
    a.many(f"""v_bfe_u32 v103, v1, 2, 2
              v_lshl_add_u32 v103, v97, 3, v103
              v_mul_u32_u24 v103, 320, v103
              v_bfe_u32 v104, v1, 4, 1
              v_lshl_add_u32 v103, v104, 5, v103
              v_and_b32 v104, 3, v1
              v_lshl_add_u32 v102, v104, 3, v103
              v_mov_b32 v114, 0""")
    for j in range(4):
        a.i(f"v_mov_b32 v{104+j}, v{98+j}")
    a.i("v_mov_b32 v112, v102")
    for r in list(range(ACC, ACC + 80)) + [190, 191] + ([] if isq else list(range(240, 256))):
        a.i(f"v_mov_b32 v{r}, 0")

    def reads(j, nxt=False):
        L = [f"ds_read_b128 {vr(XF+(j % 2)*4, 4, 'a')}, v{108 if nxt else 104+j} offset:20480"]
        for blk in range(5):
            for u in range(2):
                L.append(f"ds_read_b64_tr_b16 {vr(WFR+(j % 2)*20+blk*4+u*2, 2, 'a')}, v{113 if nxt else 112} offset:{(16*j+4*u)*320+blk*64}")
        return L

    def mms(j):
        L = []
        for blk in range(5):
            d = vr(ACC + blk * 16, 16)
            w = vr(WFR + (j % 2) * 20 + blk * 4, 4, 'a'); x = vr(XF + (j % 2) * 4, 4, 'a')
            L.append(mfma32(d, w, x) if isq else mfma32(d, x, w))
        return L
    SV = 120
    a.many(f"""s_lshl_b32 s36, s17, 2
              s_add_u32 s36, s36, s16
              s_lshl_b32 s36, s36, 7
              s_add_u32 s36, s36, {WS_ST1}
              s_add_u32 s43, s36, 8192
              v_lshlrev_b32 v115, 2, v96
              v_lshlrev_b32 v116, 26, v97
              v_lshl_add_u32 v116, v116, 4, v115
              v_lshlrev_b32 v119, 4, v97
              s_mov_b32 s42, {f32(LOG2E)}""")
    ein = [f"buffer_load_dword v157, v115, s[8:11], s43 offen sc1"]
    if isq:
        a.many(f"""s_mul_i32 s37, s18, 640
                  s_add_u32 s37, s37, {WS_CS1}""")
        for blk in range(5):
            ein.append(f"buffer_load_dword v{152+blk}, v116, s[8:11], s37 offen offset:{128*blk} sc1")
        ein.append(f"buffer_load_dword v{SV}, v115, s[8:11], s36 offen sc1")
    else:
        a.many(f"""v_cmp_le_u32 vcc, 16, v96
                  v_mov_b32 v117, {2560-320}
                  v_cndmask_b32 v117, 0, v117, vcc
                  v_add_u32 v117, v117, v116
                  s_mul_i32 s37, s18, 320
                  s_add_u32 s37, s37, {WS_CS1 + 2560 - 4*320}""")
        offs = [("v116", 0), ("v116", 128), ("v117", 256), ("v116", 2560 + 64), ("v116", 2560 + 192)]
        for blk in range(5):
            ein.append(f"buffer_load_dword v{152+blk}, {offs[blk][0]}, s[8:11], s37 offen offset:{offs[blk][1]} sc1")
        for q in range(4):
            ein.append(f"buffer_load_dwordx4 {vr(SV+q*4)}, v119, s[8:11], s36 offen offset:{32*q} sc1")
    CW, CX = 160, 180
    corr = []
    for blk in range(5):
        r = CW + 4 * blk; c = 152 + blk
        corr += [f"v_cvt_pk_bf16_f32 v{r}, v{c}, v{c}", f"v_lshlrev_b32 v{r+1}, 16, v{r}", f"v_sub_f32 v{r+1}, v{c}, v{r+1}",
                 f"v_cvt_pk_bf16_f32 v{r+1}, v{r+1}, 0", f"v_mov_b32 v{r+2}, 0", f"v_mov_b32 v{r+3}, 0"]
    corr += ["v_sub_f32 v157, 0, v157", f"v_cvt_pk_bf16_f32 v{CX+1}, v157, 0", f"v_lshlrev_b32 v{CX}, 16, v{CX+1}",
             f"v_sub_f32 v{CX}, v157, v{CX}", f"v_cvt_pk_bf16_f32 v{CX}, v157, v{CX}", f"v_mov_b32 v{CX+2}, 0", f"v_mov_b32 v{CX+3}, 0"]
    RW = 20992
    L0 = 2 * SLOT
    LA, GA = 240, 248
    pre = []
    if not isq:
        pre += f"""s_mul_i32 s44, s16, 5
              s_mul_i32 s45, s16, 20
              s_mov_b32 s46, 52429
              s_sub_u32 s47, s18, 4
              s_mul_i32 s48, s47, {13*1024}
              s_add_u32 s48, s48, {WS_KV}
              s_mul_i32 s49, s47, 320
              s_add_u32 s49, s49, {WS_Z}
              s_sub_u32 s49, s49, s48
              s_mul_i32 s50, s16, {RW}
              s_add_u32 s50, s50, {L0}""".split("\n")
        for n in range(7):
            pre += f"""v_add_u32 v184, {64*n}, v1
                  v_mul_lo_u32 v185, v184, s46
                  v_lshrrev_b32 v185, 22, v185
                  v_mul_u32_u24 v186, 80, v185
                  v_sub_u32 v184, v184, v186
                  v_add_u32 v185, s44, v185
                  v_lshrrev_b32 v186, 2, v184
                  v_add_u32 v186, s45, v186
                  v_lshrrev_b32 v187, 3, v185
                  v_min_u32 v187, 1, v187
                  v_lshlrev_b32 v187, 5, v187
                  v_sub_u32 v187, v186, v187
                  v_add_u32 v187, 16, v187
                  v_lshl_add_u32 v187, v185, 6, v187
                  v_and_b32 v184, 3, v184
                  v_lshl_add_u32 v187, v187, 2, v184
                  v_lshlrev_b32 v{LA+n}, 2, v187
                  v_lshrrev_b32 v187, 2, v185
                  v_lshrrev_b32 v188, 4, v186
                  v_lshl_add_u32 v187, v187, 1, v188
                  v_and_b32 v185, 3, v185
                  v_lshl_add_u32 v187, v187, 2, v185
                  v_and_b32 v186, 15, v186
                  v_lshl_add_u32 v187, v187, 4, v186
                  v_lshl_add_u32 v187, v187, 2, v184
                  v_lshlrev_b32 v{GA+n}, 2, v187""".split("\n")
        pre += f"""v_subrev_u32 v184, 16, v1
              v_add_u32 v184, s45, v184
              v_lshlrev_b32 v184, 2, v184
              v_add_u32 v185, 20480, v184
              v_add_u32 v184, s49, v184
              v_cmp_le_u32 s[40:41], 16, v1
              v_cndmask_b32 v{LA+6}, v{LA+6}, v185, s[40:41]
              v_cndmask_b32 v{GA+6}, v{GA+6}, v184, s[40:41]
              v_lshlrev_b32 v190, 10, v97
              v_lshl_add_u32 v190, v96, 4, v190
              v_add_u32 v190, s50, v190
              v_lshlrev_b32 v191, 2, v96
              v_add_u32 v191, s50, v191""".split("\n")
    else:
        pre += f"""v_bfe_u32 v190, v1, 4, 1
                  v_lshlrev_b32 v190, 10, v190
                  v_lshl_add_u32 v190, v97, 8, v190
                  v_and_b32 v191, 15, v1
                  v_lshl_add_u32 v190, v191, 4, v190
                  s_lshl_b32 s48, s17, 1
                  s_lshr_b32 s49, s16, 1
                  s_add_u32 s48, s48, s49
                  s_mul_i32 s48, s48, 20
                  s_mul_i32 s49, s18, 5
                  s_add_u32 s48, s48, s49
                  s_lshl_b32 s48, s48, 2
                  s_and_b32 s49, s16, 1
                  s_lshl_b32 s49, s49, 1
                  s_add_u32 s48, s48, s49
                  s_lshl_b32 s48, s48, 10
                  s_add_u32 s48, s48, {WS_PQ}""".split("\n")
    pre = [x.strip() for x in pre if x.strip()]
    if EARLY_D2:
        interleave(a, dmaA(), [])
    if not PRE_IN_LOOP:
        interleave(a, pre, [])
    if DRY_AFTER < 3:
        a.i("s_mov_b64 exec, 0")
        a.i(f"s_branch L_epi_{role}_{name}")
        a.label(f"L_dry_{role}_{name}")
        a.i("s_mov_b64 exec, -1")
        a.fence()
    if not EARLY_D2:
        interleave(a, dmaA(), [])
    stamp(a)
    a.raw("s_waitcnt vmcnt(13)")
    if START_FINE: stamp(a)
    a.i("s_barrier")
    a.i("s_mov_b32 s29, 0")
    a.i("s_mov_b32 s32, 0")
    interleave(a, reads(0), [])
    LP = f"L_lp_{role}_{name}"
    a.vm_done = a.vm_n = 0
    a.label(LP)
    for k in ((2, 3) if PRE_IN_LOOP else ()) + (5, 6, 9):
        a.i(f"s_cmp_eq_u32 s29, {k}")
        a.i(f"s_cbranch_scc1 {LP}_x{k}")
    a.label(f"{LP}_r")
    a.many(f"""s_add_u32 s32, s32, {SLOT}
              s_cmp_eq_u32 s32, {4*SLOT}
              s_cselect_b32 s32, 0, s32
              v_add_u32 v108, s32, v98
              v_add_u32 v113, s32, v102""")

    def cond(items, lim, tag):
        def f():
            a.i(f"s_cmp_ge_u32 s29, {lim}")
            a.i(f"s_cbranch_scc1 {LP}_{tag}")
            for x in items:
                a.i(x)
            a.label(f"{LP}_{tag}")
            a.vm_done = a.vm_n = 0
        return f
    dB = dmaB()
    interleave(a, mms(0), mix(reads(1), dB[:7]))
    interleave(a, mms(1), mix(reads(2), dB[7:]))
    interleave(a, mms(2), reads(3))
    a.raw("s_waitcnt vmcnt(9)")
    a.i("s_barrier")
    upd = [f"v_add_u32 v{104+j}, s32, v{98+j}" for j in range(4)] + ["v_mov_b32 v112, v113"]
    interleave(a, mms(3), mix(reads(0, True), dmaA()) + upd)
    a.i("s_add_u32 s29, s29, 1")
    a.i("s_cmp_lt_u32 s29, 10")
    a.i(f"s_cbranch_scc1 {LP}")
    a.i(f"s_branch {LP}_done")
    keep = (a.lg_n, a.lg_done, dict(a.pend), dict(a.wr), a.t)
    if PRE_IN_LOOP:
        h = len(pre) // 2
        for k, part in ((2, pre[:h]), (3, pre[h:])):
            a.label(f"{LP}_x{k}")
            a.wr = {}
            for x in part:
                a.i(x)
            a.nop(2)
            a.raw(f"s_branch {LP}_r")
    a.label(f"{LP}_x5")
    if START_FINE: a.raw(f"s_memrealtime s[{80+2*a.nstamp}:{81+2*a.nstamp}]"); a.nstamp += 1; a.raw("s_waitcnt lgkmcnt(0)")
    a.raw("buffer_load_dword v118, v114, s[60:63], 0 offen sc1")
    a.raw(f"s_branch {LP}_r")
    a.label(f"{LP}_x6")
    a.raw("s_waitcnt vmcnt(9)")
    spin(a, f"L_spin_{role}_{name}", 64, 118, 38, 60, 114)
    for x in ein:
        a.raw(x)
        for r in regs_of(x.split(",")[0]): a.ever.add(r)
    a.raw(f"s_branch {LP}_r")
    a.label(f"{LP}_x9")
    a.raw("s_waitcnt vmcnt(13)")
    a.pend = {}
    for x in corr:
        a.i(x)
    a.nop(2)
    a.raw(f"s_branch {LP}_r")
    a.label(f"{LP}_done")
    a.lg_n, a.lg_done, a.pend, a.wr, a.t = keep
    a.vm_done = a.vm_n = 0
    stamp(a)
    T = 208

    def cmf(blk):
        d = vr(ACC + blk * 16, 16)
        return mfma32(d, vr(CW + 4 * blk), vr(CX)) if isq else mfma32(d, vr(CX), vr(CW + 4 * blk))

    C1, CL, CE, CR = 184, 186, 188, 122

    def phi(blk, hf, dst_is_acc=True):
        R = range(8 * hf, 8 * hf + 8)
        R2 = range(8 * hf, 8 * hf + 8, 2)
        ac = lambda j: ACC + blk * 16 + j
        t = lambda j: T + (j % 8)
        t2 = lambda j: (ac(j) if dst_is_acc else T + 8 + (j % 8))
        rs = lambda j: (CR if isq else SV + j)
        L = []
        for j in R2: L.append(f"v_pk_fma_f32 {vr(t2(j), 2)}, {vr(ac(j), 2)}, {vr(rs(j), 2)}, {vr(C1, 2)}")
        for j in R2: L.append(f"v_pk_fma_f32 {vr(t(j), 2)}, {vr(t2(j), 2)}, {vr(CL, 2)}, {vr(CL, 2)} neg_lo:[0,0,1] neg_hi:[0,0,1]")
        for j in R: L.append(f"v_exp_f32 v{t(j)}, v{t(j)}")
        for j in R: L.append(f"v_med3_f32 v{t2(j)}, v{t(j)}, v{t2(j)}, 1.0")
        for j in R2: L.append(f"v_pk_add_f32 {vr(t2(j), 2)}, {vr(t2(j), 2)}, {vr(CE, 2)}")
        return L
    a.raw("s_waitcnt vmcnt(0)")
    a.wait_lg0()
    a.label(f"L_epi_{role}_{name}")
    a.guard = f"L_g{role}_{name}" if DRY_AFTER < 3 else None
    for r, val in ((C1, "1.0"), (CL, "s42"), (CE, f32(1e-6))):
        a.i(f"v_mov_b32 v{r}, {val}"); a.i(f"v_mov_b32 v{r+1}, {val}")
    if isq:
        a.many(f"""s_load_dwordx2 s[64:65], s[0:1], 16
                  s_load_dwordx2 s[66:67], s[0:1], 48
                  s_lshl_b32 s20, s17, 2
                  s_add_u32 s20, s20, s18
                  s_lshl_b32 s20, s20, 2
                  s_add_u32 s20, s20, s16
                  s_add_u32 s21, s20, 284
                  s_cmp_lt_u32 s20, 200
                  s_cselect_b32 s20, s20, s21
                  s_cselect_b32 s52, 20, 54
                  s_cselect_b32 s53, 8, 16
                  s_cselect_b32 s54, 16, 8
                  s_mov_b32 s21, {WS_WD}
                  s_cselect_b32 s55, {WS_WO}, s21
                  s_mov_b32 s21, {1728*1280}
                  s_cselect_b32 s70, {640*1280}, s21
                  s_mov_b32 s71, 0x20000""")
        a.wait_lg0(True)
        a.many(f"""s_cselect_b32 s68, s64, s66
                  s_cselect_b32 s69, s65, s67
                  s_and_b32 s69, s69, 0xffff
                  s_mul_hi_u32 s22, s20, {(1 << 32)//10 + 1}
                  s_mul_i32 s21, s22, 10
                  s_sub_u32 s21, s20, s21
                  s_mul_i32 s23, s22, {32*1280}
                  s_lshl_b32 s24, s21, 7
                  s_add_u32 s23, s23, s24
                  s_mul_i32 s21, s21, s52
                  s_lshl_b32 s21, s21, 2
                  s_add_u32 s21, s21, s22
                  s_lshl_b32 s21, s21, 10
                  s_add_u32 s55, s55, s21
                  s_lshl_b32 s52, s52, 10
                  s_lshl_b32 s54, s54, 7
                  s_lshl_b32 s24, s16, 12
                  s_add_u32 s24, s24, {4*SLOT}
                  s_mov_b32 m0, s24
                  v_lshrrev_b32 v4, 3, v1
                  v_and_b32 v5, 7, v1
                  v_bfe_u32 v6, v1, 4, 2
                  v_lshlrev_b32 v7, 1, v6
                  v_xor_b32 v5, v5, v7
                  v_mul_u32_u24 v4, 1280, v4
                  v_lshl_add_u32 v4, v5, 4, v4""")
        qtok = Tok()
        for i in range(4):
            a.i(f"buffer_load_dwordx4 v4, s[68:71], s23 offen offset:{1024*i} lds", qtok)
            a.i(f"s_add_u32 s23, s23, {8*1280 - 1024}")
        a.many("""v_lshrrev_b32 v5, 1, v6
                  v_mul_lo_u32 v5, v5, s53
                  v_and_b32 v7, 1, v6
                  v_lshl_add_u32 v5, v7, 2, v5
                  v_bfe_u32 v7, v1, 2, 2
                  v_add_u32 v5, v5, v7
                  v_bfe_u32 v7, v5, 1, 2
                  v_and_b32 v8, 3, v1
                  v_lshlrev_b32 v8, 3, v8
                  v_lshl_add_u32 v5, v5, 7, v8
                  v_add_u32 v5, s24, v5
                  v_lshlrev_b32 v13, 4, v1""")
        for nb in range(4):
            a.i(f"v_xor_b32 v8, {nb}, v7")
            a.i(f"v_lshl_add_u32 v{104+nb}, v8, 5, v5")
            a.i(f"v_add_u32 v{108+nb}, s54, v{104+nb}")
        a.i(f"v_mov_b32 v{CR}, v{SV}"); a.i(f"v_mov_b32 v{CR+1}, v{SV}")
        for blk in range(5):
            a.i(cmf(blk))
        for blk in range(5):
            for x in phi(blk, 0) + phi(blk, 1):
                a.i(x)
            pk = 224 + (blk % 2) * 8
            for q in range(4):
                dst = pk + (q & 1) * 4 + (q >> 1) * 2
                for jj in range(2):
                    a.i(f"v_cvt_pk_bf16_f32 v{dst+jj}, v{ACC+blk*16+4*q+2*jj}, v{ACC+blk*16+4*q+2*jj+1}")
            a.i(f"s_add_u32 s51, s48, {blk*4096}")
            a.i(f"buffer_store_dwordx4 {vr(pk)}, v190, s[8:11], s51 offen {st_flags}")
            a.i(f"buffer_store_dwordx4 {vr(pk+4)}, v190, s[8:11], s51 offen offset:512 {st_flags}")
            if blk == 2:
                a.wait_tok(qtok)
                for nb in range(4):
                    a.i(f"ds_read_b64_tr_b16 {vr(136+nb*4, 2)}, v{104+nb}")
                    a.i(f"ds_read_b64_tr_b16 {vr(138+nb*4, 2)}, v{108+nb}")
            if blk == 3:
                for nb in range(4):
                    a.i(f"buffer_store_dwordx4 {vr(136+nb*4)}, v13, s[8:11], s55 offen {st_flags}")
                    a.i("s_add_u32 s55, s55, s52")
        a.guard_end()
        (a.i(f"s_cbranch_execz L_dry_{role}_{name}") if DRY_AFTER < 3 else None)
        return
    smask(a, 40, 0x0000FFFF0000FFFF)
    P = {0: 136, 1: 144, 2: 192, 3: 200, 4: 224}
    ONES = 232
    for blk in (0, 2, 3, 1, 4):
        a.i(cmf(blk))
    for k in range(4):
        a.i(f"v_mov_b32 v{ONES+k}, 0x3f803f80")

    def fin(blk):
        L = []
        for hf in range(2):
            R = range(8 * hf, 8 * hf + 8)
            ac = lambda j: ACC + blk * 16 + j
            if blk < 2:
                L += phi(blk, hf)
            else:
                if blk == 2:
                    L += phi(blk, hf, False)
                for j in range(8 * hf, 8 * hf + 8, 2): L.append(f"v_pk_mul_f32 {vr(ac(j), 2)}, {vr(ac(j), 2)}, {vr(SV+j, 2)}")
                if blk == 2:
                    for j in R: L.append(f"v_cndmask_b32 v{ac(j)}, v{ac(j)}, v{T+8+(j % 8)}, s[40:41]")
            for jj in range(4):
                L.append(f"v_cvt_pk_bf16_f32 v{P[blk]+hf*4+jj}, v{ac(8*hf+2*jj)}, v{ac(8*hf+2*jj+1)}")
        return L
    def prod(kb, vb, d):
        if vb is None:
            return [mfma32(vr(d, 16), vr(ONES), vr(P[kb] + u * 4), "0" if u == 0 else None) for u in range(2)]
        return [mfma32(vr(d, 16), vr(P[kb] + u * 4), vr(P[vb] + u * 4), "0" if u == 0 else None) for u in range(2)]
    def wr(kb, vb, d):
        L = []
        if vb is None:
            return [f"ds_write_b32 v191, v{d} offset:{20480 + 128*kb}"]
        for qd in {(0, 2): (0, 1, 2), (1, 4): (1, 2, 3), (2, 4): (0, 1)}.get((kb, vb), (0, 1, 2, 3)):
            if True:
                es = {(0, 2): 0, (0, 3): 32, (1, 3): 0, (1, 4): 32, (2, 4): 32}[(kb, vb)]
                L.append(f"ds_write_b128 v190, {vr(d+4*qd)} offset:{((8*kb+2*qd)*64 + es)*16}")
        return L
    A0, A1, A2, A3, A4 = [ACC + 16 * b for b in range(5)]
    interleave(a, fin(0) + fin(2) + fin(3), [])
    if EPI_FINE: stamp(a)
    interleave(a, prod(0, 2, A0) + prod(0, 3, A2) + prod(0, None, A3) + prod(2, None, 160), fin(1))
    a.i("s_barrier")
    interleave(a, prod(1, 3, A1) + prod(1, None, 100), fin(4) + wr(0, 2, A0) + wr(0, 3, A2))
    interleave(a, prod(1, 4, A4) + prod(2, 4, A0), wr(0, None, A3) + wr(2, None, 160) + wr(1, 3, A1) + wr(1, None, 100))
    interleave(a, wr(1, 4, A4) + wr(2, 4, A0), [])
    for n in range(7):
        a.i(f"v_add_u32 v{136+n}, {L0 + 2*RW}, v{LA+n}")
        a.i(f"v_add_u32 v{144+n}, {L0}, v{LA+n}")
    a.guard_end()
    (a.i(f"s_cbranch_execz L_dry_{role}_{name}") if DRY_AFTER < 3 else None)
    if EPI_FINE: stamp(a)
    a.wait_lg0()
    a.i("s_barrier")
    if EPI_FINE: stamp(a)
    for n in range(7):
        for w in range(4):
            a.i(f"ds_read_b32 v{32+4*n+w}, v{(144 if w < 2 else 136)+n} offset:{(w % 2)*RW}")
    for n in range(7):
        a.i(f"v_add_f32 v{32+4*n}, v{32+4*n}, v{33+4*n}")
        a.i(f"v_add_f32 v{34+4*n}, v{34+4*n}, v{35+4*n}")
        a.i(f"v_add_f32 v{32+4*n}, v{32+4*n}, v{34+4*n}")
        if n == 6:
            a.i("s_mov_b32 exec_hi, 15")
        a.i(f"buffer_atomic_add_f32 v{32+4*n}, v{GA+n}, s[8:11], s48 offen")
    a.i("s_mov_b64 exec, -1")
    if EPI_FINE: stamp(a)


def row_reduce16(a, regs):
    for sh in (8, 4, 2, 1):
        for r in regs:
            a.i(f"v_add_f32_dpp v{r}, v{r}, v{r} row_ror:{sh} row_mask:0xf bank_mask:0xf")


def p1_aux(a, name, st_flags):
    OOB = 0x7f000000
    a.many(f"""s_cmp_lt_u32 s17, 30
              s_cselect_b32 s48, s56, s12
              s_cselect_b32 s49, s57, s13
              s_cselect_b32 s50, s58, s14
              s_mov_b32 s51, 0x20000
              s_cselect_b32 s52, 30720, 64
              s_cselect_b32 s53, 30720, 64
              s_cselect_b32 s54, 3, 4
              s_cselect_b32 s55, 7, 15
              s_movk_i32 s22, 1280
              s_cselect_b32 s22, 3840, s22
              s_mul_i32 s23, s16, 614400
              s_lshl_b32 s24, s17, 7
              s_add_u32 s23, s23, s24
              s_sub_u32 s33, s17, 30
              s_lshl_b32 s33, s33, 2
              s_add_u32 s33, s33, s16
              s_mul_i32 s24, s33, 20480
              s_cmp_lt_u32 s17, 30
              s_cselect_b32 s23, s23, s24
              s_cselect_b32 s52, s52, 256
              s_cselect_b32 s53, s53, 4096
              v_lshrrev_b32 v8, s54, v1
              v_and_b32 v9, s55, v1
              v_mul_lo_u32 v10, v8, s22
              v_lshl_add_u32 v10, v9, 4, v10""")
    for i in range(20):
        a.i(f"buffer_load_dwordx4 {vr(32+4*i)}, v10, s[48:51], s23 offen")
        a.i(f"s_add_u32 s23, s23, {'s53' if i % 5 == 4 else 's52'}")
    a.many(f"""v_lshlrev_b32 v2, 4, v1
              v_mov_b32 v4, 0
              v_mov_b32 v5, 0
              v_mov_b32 v6, 0
              v_mov_b32 v7, 0
              s_lshl_b32 s20, s17, 11
              s_lshl_b32 s21, s16, 9
              s_add_u32 s20, s20, s21
              s_add_u32 s20, s20, {WS_KV}
              s_mov_b32 exec_hi, 0""")
    a.i("buffer_store_dwordx4 v[4:7], v2, s[8:11], s20 offen sc1")
    a.i("s_mov_b64 exec, -1")
    a.many("""s_lshl_b32 s18, s17, 2
              s_add_u32 s18, s18, s16
              s_mul_i32 s19, s16, 40960
              v_lshrrev_b32 v112, 3, v1
              v_and_b32 v113, 7, v1
              v_bfe_u32 v114, v1, 4, 2
              v_lshlrev_b32 v115, 1, v114
              v_xor_b32 v113, v113, v115
              v_xor_b32 v115, 4, v113
              v_mul_u32_u24 v11, 1280, v112
              v_lshl_add_u32 v11, v113, 4, v11
              v_mul_u32_u24 v12, 3456, v112
              v_lshl_add_u32 v13, v115, 4, v12
              v_lshl_add_u32 v12, v113, 4, v12""")
    tasks = [("gu", 0, 0), ("gu", 256, 8192), ("wd", 0, 16384), ("wd", 228, 20480), ("gu", 512, 24576)]
    toks = {}

    def decode(ti):
        kind, add, lo = tasks[ti]
        ncg = {"gu": 27, "wd": 10}[kind]
        stride = 3456 if kind == "gu" else 1280
        nk, base = {"gu": (40, WS_WGU), "wd": (54, WS_WD)}[kind]
        chk = {512: "s_cmp_lt_u32 s18, 28", 228: "s_cmp_ge_u32 s18, 28"}.get(add, "s_cmp_eq_u32 s18, s18")
        a.many(f"""s_add_u32 s24, s18, {add}
                  s_mul_hi_u32 s26, s24, {(1 << 32)//ncg + 1}
                  s_mul_i32 s25, s26, {ncg}
                  s_sub_u32 s25, s24, s25
                  {chk}
                  s_cselect_b32 s27, 0, {OOB}
                  s_mul_i32 s28, s26, {32*stride}
                  s_lshl_b32 s29, s25, 7
                  s_add_u32 s28, s28, s29
                  s_add_u32 s28, s28, s27
                  s_mul_i32 s29, s25, {4*nk*1024}
                  s_lshl_b32 s26, s26, {11 if kind == 'gu' else 10}
                  s_add_u32 s29, s29, s26
                  s_add_u32 s29, s29, s27
                  s_add_u32 s{36+ti}, s29, {base}""")

    def issue(ti):
        kind, add, lo = tasks[ti]
        decode(ti)
        stride = 3456 if kind == "gu" else 1280
        for img in range(2 if kind == "gu" else 1):
            sr = {"gu": (68, 72)[img], "wd": 44, "wo": 64}[kind]
            vo = {"gu": (12, 13)[img], "wd": 11, "wo": 11}[kind]
            for i in range(4):
                a.i(f"s_add_u32 s30, s19, {lo + img*4096 + i*1024}")
                a.i("s_mov_b32 m0, s30")
                a.i(f"s_add_u32 s31, s28, {8*i*stride}")
                tk = Tok(); toks[ti] = tk
                a.i(f"buffer_load_dwordx4 v{vo}, s[{sr}:{sr+3}], s31 offen {AUX_LD} lds", tk)
    for ti in range(NEARLY):
        issue(ti)
    for k in range(8):
        a.i(f"v_mov_b32 v{16+k}, 0")
    a.i("s_cmp_ge_u32 s17, 30")
    a.i(f"s_cbranch_scc1 L_aux_stats_{name}")
    st0 = (a.vm_n, a.vm_done, dict(a.pend))
    SCR = 36864
    a.many("""s_mov_b32 s22, 0x3f80
              s_mov_b32 s23, 0x3f800000""")
    for i in range(20):
        for d in range(4):
            a.i(f"v_dot2_f32_bf16 v{16+2*d}, v{32+4*i+d}, s22, v{16+2*d}")
            a.i(f"v_dot2_f32_bf16 v{17+2*d}, v{32+4*i+d}, s23, v{17+2*d}")
    a.nop(4)
    for k in range(8):
        a.i(f"v_add_f32_dpp v{16+k}, v{16+k}, v{16+k} row_ror:8 row_mask:0xf bank_mask:0xf")
    for sw in ("v_permlane16_swap_b32", "v_permlane32_swap_b32"):
        for k in range(8): a.i(f"v_mov_b32 v{24+k}, v{16+k}")
        for k in range(8): a.i(f"{sw} v{16+k}, v{24+k}")
        for k in range(8): a.i(f"v_add_f32 v{16+k}, v{16+k}, v{24+k}")
    a.many(f"""v_lshlrev_b32 v10, 5, v9
              s_lshl_b32 s20, s16, 8
              s_add_u32 s20, s20, {SCR}
              v_add_u32 v10, s20, v10
              ds_write_b128 v10, v[16:19]
              ds_write_b128 v10, v[20:23] offset:16
              v_lshlrev_b32 v10, 2, v1
              v_add_u32 v24, {SCR}, v10""")
    a.wait_lg0()
    a.i("s_barrier")
    for w in range(4):
        a.i(f"ds_read_b32 v{16+w}, v24 offset:{256*w}")
    a.many(f"""v_add_f32 v16, v16, v17
              v_add_f32 v18, v18, v19
              v_add_f32 v16, v16, v18
              s_lshl_b32 s20, s17, 8
              s_add_u32 s20, s20, {WS_CS1}
              s_cmp_eq_u32 s16, 0
              s_cselect_b32 s20, s20, {OOB}""")
    a.i("buffer_store_dword v16, v10, s[8:11], s20 offen sc1")
    a.i(f"s_branch L_aux_sig_{name}")
    a.label(f"L_aux_stats_{name}")
    a.vm_n, a.vm_done, a.pend = st0[0], st0[1], dict(st0[2])
    a.fence()
    a.i("s_mov_b32 s22, 0x3f803f80")
    for i in range(4):
        for d in range(20):
            r = 32 + 20 * i + d
            a.i(f"v_dot2_f32_bf16 v{16+2*i}, v{r}, s22, v{16+2*i}")
            a.i(f"v_dot2_f32_bf16 v{17+2*i}, v{r}, v{r}, v{17+2*i}")
    a.nop(4)
    row_reduce16(a, range(16, 24))
    for i in range(4):
        s_, q_ = 16 + 2 * i, 17 + 2 * i
        a.many(f"""v_mul_f32 v{q_}, {f32(1/640)}, v{q_}
                  v_mul_f32 v24, {f32(1/640)}, v{s_}
                  v_fma_f32 v{s_}, -v24, v24, v{q_}
                  v_max_f32 v{s_}, 0, v{s_}
                  v_add_f32 v{s_}, {f32(1e-5)}, v{s_}
                  v_rsq_f32 v{s_}, v{s_}
                  v_mov_b32 v{q_}, v24""")
    a.many(f"""v_lshlrev_b32 v10, 2, v8
              s_lshl_b32 s20, s33, 6
              s_add_u32 s20, s20, {WS_ST1}
              s_cmp_lt_u32 s17, 62
              s_cselect_b32 s20, s20, {OOB}
              s_add_u32 s21, s20, 8192
              s_mov_b32 exec_lo, 0x00010001
              s_mov_b32 exec_hi, 0x00010001""")
    for i in range(4):
        a.i(f"buffer_store_dword v{16+2*i}, v10, s[8:11], s20 offen offset:{16*i} sc1")
        a.i(f"buffer_store_dword v{17+2*i}, v10, s[8:11], s21 offen offset:{16*i} sc1")
    a.i("s_mov_b64 exec, -1")
    a.label(f"L_aux_sig_{name}")
    a.wait_all()
    a.fence()
    stamp(a)
    a.i("s_barrier")
    a.many("""v_mov_b32 v4, 1
              v_mov_b32 v5, 0
              s_cmp_eq_u32 s16, 0""")
    a.i(f"s_cselect_b32 s20, 0, {OOB}")
    a.i("s_mov_b64 exec, 1")
    a.i("buffer_atomic_add v4, v5, s[60:63], s20 offen sc1")
    a.i("s_mov_b64 exec, -1")
    for ti in range(NEARLY, len(tasks)):
        issue(ti)
    a.many(f"""s_lshl_b32 s33, s18, 2
              v_lshrrev_b32 v14, 4, v1
              v_and_b32 v37, 15, v1
              v_mul_u32_u24 v38, 1280, v14
              v_lshl_add_u32 v38, v37, 4, v38
              s_mul_i32 s32, s33, 1280""")
    for m in range(5):
        a.i(f"buffer_load_dwordx4 {vr(128+4*m)}, v38, s[64:67], s32 offen offset:{256*m}")
    a.many("""v_bfe_u32 v15, v1, 2, 2
              v_and_b32 v16, 3, v1
              v_lshlrev_b32 v16, 3, v16
              v_add_u32 v16, s19, v16
              v_lshl_add_u32 v17, v14, 2, v15
              v_lshrrev_b32 v18, 1, v14
              v_and_b32 v19, 1, v14
              v_lshl_add_u32 v20, v19, 2, v15
              v_lshl_add_u32 v20, v18, 4, v20
              v_lshl_add_u32 v21, v18, 2, v15""")
    for k, (rowreg, base) in ((1, (20, 28)), (2, (21, 32))):
        a.i(f"v_bfe_u32 v22, v{rowreg}, 1, 2")
        if k == 2:
            a.i("v_lshlrev_b32 v23, 1, v19")
            a.i("v_xor_b32 v22, v22, v23")
        a.i(f"v_lshl_add_u32 v23, v{rowreg}, 7, v16")
        if k == 2:
            a.i("v_lshl_add_u32 v23, v19, 12, v23")
        for nb in range(4):
            a.i(f"v_xor_b32 v36, {nb}, v22")
            a.i(f"v_lshl_add_u32 v{base+nb}, v36, 5, v23")
    RB = [48, 80, 192, 224]
    stamp(a)
    for ti, (kind, add, lo) in enumerate(tasks):
        R0 = RB[ti % 4]
        a.wait_tok(toks[ti])
        if ti in (0, 3): stamp(a)
        if kind == "gu":
            for nb in range(4):
                for kbl in range(2):
                    r = R0 + (nb * 2 + kbl) * 4
                    for u in range(2):
                        a.i(f"ds_read_b64_tr_b16 {vr(r+2*u, 2)}, v{32+nb} offset:{lo + (16*kbl+8*u)*128}")
            for nb in range(4):
                a.i(f"s_add_u32 s29, s{36+ti}, {nb*40960}")
                for kbl in range(2):
                    a.i(f"buffer_store_dwordx4 {vr(R0+(nb*2+kbl)*4)}, v2, s[8:11], s29 offen offset:{kbl*1024} {st_flags}")
        else:
            nks, ar, us = (54, 28, 8) if kind == "wd" else (20, 24, 16)
            for nb in range(4):
                for u in range(2):
                    a.i(f"ds_read_b64_tr_b16 {vr(R0+nb*4+2*u, 2)}, v{ar+nb} offset:{lo + us*u*128}")
            for nb in range(4):
                a.i(f"s_add_u32 s29, s{36+ti}, {nb*nks*1024}")
                a.i(f"buffer_store_dwordx4 {vr(R0+nb*4)}, v2, s[8:11], s29 offen {st_flags}")
    stamp(a)
    a.i("s_mov_b32 s22, 0x3f803f80")
    a.i("v_mov_b32 v40, 0"); a.i("v_mov_b32 v41, 0")
    for d in range(20):
        a.i(f"v_dot2_f32_bf16 v{40 + d % 2}, v{128+d}, s22, v{40 + d % 2}")
    a.nop(4)
    a.i("v_add_f32 v40, v40, v41")
    row_reduce16(a, [40])
    for i in range(1):
        a.many(f"""v_mul_f32 v{40+i}, {f32(1/640)}, v{40+i}
                  v_cvt_pk_bf16_f32 v{40+i}, v{40+i}, v{40+i}
                  v_add_u32 v44, s33, v14
                  v_add_u32 v44, {4*i}, v44
                  v_lshrrev_b32 v45, 5, v44
                  v_lshlrev_b32 v45, 10, v45
                  v_bfe_u32 v46, v44, 2, 2
                  v_lshl_add_u32 v45, v46, 8, v45
                  v_lshl_add_u32 v45, v37, 4, v45
                  v_bfe_u32 v46, v44, 4, 1
                  v_lshl_add_u32 v45, v46, 3, v45
                  v_and_b32 v46, 3, v44
                  v_lshl_add_u32 v45, v46, 1, v45
                  v_cmp_gt_u32 vcc, 640, v44
                  v_mov_b32 v46, {OOB}
                  v_cndmask_b32 v45, v46, v45, vcc
                  s_mov_b32 s20, {WS_RM}""")
        a.i(f"buffer_store_short v{40+i}, v45, s[8:11], s20 offen {st_flags}")


def gen_p1(kidx, name="p1_kernel", st_flags="", rot=True, dbg="", merged=None):
    a = Asm()
    prologue(a, name, 256, [])
    a.i("s_load_dwordx4 s[4:7], s[0:1], 0")
    a.i("s_load_dwordx4 s[24:27], s[0:1], 64")
    a.many("""s_and_b32 s19, s2, 7
              s_lshr_b32 s20, s2, 3
              s_mov_b32 s11, 0x20000
              s_mov_b32 s15, 0x20000
              s_mov_b32 s59, 0x20000
              s_mov_b32 s63, 0x20000""")
    a.i(f"s_mov_b32 s10, {WS_BYTES}"); a.i(f"s_mov_b32 s14, {X_BYTES}"); a.i(f"s_mov_b32 s58, {WQKV_BYTES}"); a.i("s_movk_i32 s62, 256")

    def ptrs():
        a.wait_lg0(True)
        for d, p in ((12, 4), (56, 6), (60, 24), (8, 26)):
            a.i(f"s_mov_b32 s{d}, s{p}"); a.i(f"s_and_b32 s{d+1}, s{p+1}, 0xffff")
    a.ptrs = ptrs
    a.i("s_cmp_lt_u32 s20, 8")
    a.i(f"s_cbranch_scc0 L_gemm_{name}")
    a.i("s_load_dwordx2 s[28:29], s[0:1], 16")
    a.i("s_load_dwordx4 s[32:35], s[0:1], 32")
    a.i("s_load_dwordx2 s[30:31], s[0:1], 48")
    ptrs()
    srd(a, 64, 28, 640 * 1280)
    srd(a, 68, 32, 640 * 3456)
    srd(a, 72, 34, 640 * 3456)
    srd(a, 44, 30, 1728 * 1280)
    a.many("""s_lshl_b32 s17, s19, 3
              s_add_u32 s17, s17, s20""")
    ns = getattr(a, "nstamp", 0)
    p1_aux(a, name, st_flags if AUX_FLAGS is None else AUX_FLAGS)
    if merged:
        a.i("v_mov_b32 v114, 0")
        a.i("buffer_load_dword v118, v114, s[60:63], 0 offen sc1")
        a.wait_vm0()
        spin(a, f"L_spin_aux_{name}", 64, 118, 38, 60, 114)
        a.i("s_lshl_b32 s78, s17, 2")
        a.i("s_add_u32 s78, s78, 0x1800")
    a.i(f"s_branch L_fin_{name}")
    a.label(f"L_gemm_{name}")
    a.reset_state(); a.fence()
    a.nstamp = ns
    a.many("""s_sub_u32 s20, s20, 8
              s_mul_i32 s21, s20, 43
              s_lshr_b32 s21, s21, 8
              s_mul_i32 s22, s21, 6
              s_sub_u32 s22, s20, s22
              s_lshr_b32 s17, s19, 1
              s_lshl_b32 s17, s17, 2
              s_add_u32 s17, s17, s21
              s_and_b32 s23, s19, 1
              s_nop 0""")
    a.i("s_cmp_lt_u32 s22, 2")
    a.i(f"s_cbranch_scc0 L_kv_{name}")
    a.many("""s_lshl_b32 s18, s23, 1
              s_add_u32 s18, s18, s22""")
    p1_gemm(a, "q", name, st_flags, rot, dbg)
    if merged:
        a.many("""s_lshl_b32 s78, s17, 7
                  s_lshl_b32 s20, s18, 2
                  s_add_u32 s78, s78, s20
                  s_add_u32 s78, s78, 0x2000""")
    a.i(f"s_branch L_fin_{name}")
    a.label(f"L_kv_{name}")
    a.reset_state(); a.fence()
    a.nstamp = ns
    a.many("""s_lshl_b32 s18, s23, 2
              s_add_u32 s18, s18, s22
              s_add_u32 s18, s18, 2""")
    p1_gemm(a, "kv", name, st_flags, rot, dbg)
    if merged:
        a.many(f"""s_lshl_b32 s78, s17, 3
                  s_add_u32 s78, s78, s18
                  s_lshl_b32 s78, s78, 2
                  s_add_u32 s78, s78, {0x3000 - 16}""")
    a.label(f"L_fin_{name}")
    if merged:
        a.reset_state(); a.fence()
        a.nstamp = 1
        return merged(a)
    if gen.STAMPS:
        a.raw("s_waitcnt vmcnt(0) lgkmcnt(0)")
        a.reset_state(); a.fence()
    a.nstamp = 6
    epilogue(a, name, kidx, 256)
    print(name, "instrs", a.ninstr, "nops", a.nops)
    return name, kernel_wrap(name, a.text(), 256, 64), 256, 256, 163840
```

```python
import gen
from gen import *
from asmgen import regs_of


P4_ROT = False
P4_FINE = False
P4_DEPTH = 4
OUT_FLAGS = ""
MERGED = False
PLAIN_W = False
NSLAB0 = 12
W4_LDS = True
W4_P2 = 0
W4_SY = 0
D23_IN_P3 = False
P2_ROT = True
SYNC_FINE = -1
POLL_SLEEP = 2
POLL_POS = 0.75
def signal_and_wait(a, name, phase, between=None):
    a.wait_vm0()
    a.wait_lg0()
    if SYNC_FINE == phase: stamp(a)
    a.i("s_barrier")
    flag_store(a, phase)
    if SYNC_FINE == phase: stamp(a)
    if between:
        n = int(len(between) * POLL_POS)
        interleave(a, between[:n], [])
        poll_issue(a, phase, 12)
        interleave(a, between[n:], [])
    else:
        poll_issue(a, phase, 12)
    if SYNC_FINE == phase: stamp(a)
    poll_check(a, f"L_sy{phase}_{name}", 12)


def flag_store(a, phase):
    a.many(f"""s_cmp_eq_u32 s16, 0
              s_cselect_b32 s20, {WS_FLAG + phase*2048}, s56
              v_mov_b32 v10, s63
              v_mov_b32 v11, 1
              s_mov_b64 exec, 1""")
    a.i("buffer_store_dword v11, v10, s[8:11], s20 offen sc1")
    a.i("s_mov_b64 exec, -1")


def poll_issue(a, phase, v):
    a.many(f"""v_and_b32 v{v+3}, 15, v1
              v_lshlrev_b32 v{v+3}, 2, v{v+3}
              v_add_u32 v{v+3}, s64, v{v+3}
              s_mov_b32 s79, {WS_FLAG + phase*2048}""")
    a.i(f"buffer_load_dword v{v}, v{v+3}, s[8:11], s79 offen sc1")


def poll_check(a, lbl, v):
    a.i(f"v_cmp_ne_u32 vcc, 1, v{v}")
    a.nop(2)
    a.i(f"s_cbranch_vccz {lbl}_ok")
    a.raw("s_mov_b32 s21, 0")
    a.label(f"{lbl}_lp")
    a.raw(f"s_sleep {POLL_SLEEP}")
    a.raw(f"buffer_load_dword v{v}, v{v+3}, s[8:11], s79 offen sc1")
    a.raw("s_waitcnt vmcnt(0)")
    a.raw(f"v_cmp_ne_u32 vcc, 1, v{v}")
    a.raw("s_add_u32 s21, s21, 1")
    a.raw("s_cmp_ge_u32 s21, 0x40000")
    a.raw(f"s_cbranch_scc1 {lbl}_ok")
    a.raw("s_nop 1")
    a.raw(f"s_cbranch_vccnz {lbl}_lp")
    a.label(f"{lbl}_ok")
    a.nop(2)


def touches(a, sbase, nl_wave, vtmp, dst, add=0):
    L = []
    n = (nl_wave + 63) // 64
    for i in range(n):
        def f(i=i):
            if (i + 1) * 64 > nl_wave:
                a.i(f"v_min_u32 v{vtmp}, {nl_wave-1-64*i}, v1")
                a.i(f"v_lshlrev_b32 v{vtmp}, 7, v{vtmp}")
            else:
                a.i(f"v_lshlrev_b32 v{vtmp}, 7, v1")
            a.i(f"s_add_u32 s35, s{sbase}, {add + 8192*i}")
            a.i(f"buffer_load_dword v{dst}, v{vtmp}, s[8:11], s35 offen")
        L.append(f)
    return L


def LF():
    return " sc1" if (MERGED and not PLAIN_W) else ""


def p3_src(blk, i):
    if blk < 6:
        return 2 * (blk // 2) + i // 5, 20 * (blk % 2) + i % 5
    return 6, i


def p3_lds(c, kb):
    if c < 6:
        blk = 2 * (c // 2) + kb // 20
        w, r = (kb % 20) // 5, kb % 5
        return blk, (blk % 4) * 40960 + w * 10240 + ((c & 1) * 5 + r) * 1024
    return 6, 2 * 40960 + kb * 1024


def p3_dma(a, blk, vlane):
    L = []
    toks = []
    for i in range(10):
        c, kb = p3_src(blk, i)
        first = i in (0, 4, 5, 9) if blk < 6 else i % 4 == 0
        if first:
            i0 = i
            def setm(i=i, c=c, kb=kb):
                a.i(f"s_add_u32 s68, s67, {(blk % 4) * 40960 + i * 1024}")
                a.i("s_mov_b32 m0, s68")
                a.i(f"s_add_u32 s69, {'s66' if blk < 6 else 's59'}, {((c if c < 6 else 0) * 40 + kb) * 1024}")
            L.append(setm)
        tk = Tok(); toks.append(tk)
        L.append((f"buffer_load_dwordx4 v{vlane}, s[56:59 - 0], s69 offen offset:{(i - i0) * 1024}{LF()} lds".replace("s[56:59 - 0]", "s[36:39]"), tk))
    return L, toks


def red_setup(a, stride, lds0, vbase):
    for rp in (1, 2, 3):
        a.i(f"s_add_u32 s20, s16, {rp}")
        a.i("s_and_b32 s20, s20, 3")
        a.i(f"s_mul_i32 s20, s20, {3*stride}")
        a.i(f"s_add_u32 s20, s20, {lds0 + (rp-1)*stride}")
        a.i(f"v_add_u32 v{vbase+rp-1}, s20, v2")
    a.i(f"s_mul_i32 s20, s16, {3*stride}")
    a.i(f"s_add_u32 s20, s20, {lds0}")
    a.i(f"v_add_u32 v{vbase+3}, s20, v2")


def mix(x, y):
    if not y:
        return list(x)
    out = []
    k = 0
    for i, e in enumerate(x):
        out.append(e)
        while k < len(y) and (k + 1) * len(x) <= (i + 1) * len(y):
            out.append(y[k]); k += 1
    return out + y[k:]


def body_p2(a, pre_dma, tch0, tch, tch2):
    SF = "sc1"
    a.many(f"""s_add_u32 s19, s62, s18
              s_mul_i32 s19, s19, {1 if P2_ROT else 0}
              s_add_u32 s19, s19, s16
              s_and_b32 s19, s19, 3
              v_lshlrev_b32 v2, 4, v1
              v_add_u32 v3, 0x1000, v2
              v_lshrrev_b32 v8, 4, v1
              v_lshlrev_b32 v157, 4, v8""")
    a.many(f"""s_mul_i32 s22, s19, 5
              s_mul_i32 s27, s19, {26*1024}
              s_add_u32 s27, s27, {WS_KV}
              s_mul_i32 s28, s19, 640
              s_add_u32 s28, s28, {WS_Z}""")
    a.wait_lg0()
    srd(a, 8, 4, WS_BYTES)
    KVR, ZR = 16, 120
    KF, ZF = 160, 232
    NUM = [16, 64]; OF = [112, 132]; TT = 152
    ACC, WOF, PQF = 0, 96, 216
    ORDER = [1, 2, 3, 0]

    def z_loads(gq):
        return [f"buffer_load_dwordx4 {vr(ZR+ab*4)}, v157, s[8:11], s28 offen offset:{ab*64}{LF()}" for ab in range(5 * gq, 5 * gq + 5)]

    def kv_loads(gq):
        L = []
        for i in range(13 * gq, 13 * gq + 13):
            if i % 8 == 0 or i == 13 * gq:
                L.append(f"s_add_u32 s29, s27, {(i // 8) * 8192}")
            L.append(f"buffer_load_dwordx4 {vr(KVR+i*4)}, {'v2' if i % 8 < 4 else 'v3'}, s[8:11], s29 offen offset:{(i % 4)*1024}{LF()}")
        return L
    if not MERGED:
        interleave(a, tch0 + z_loads(0) + kv_loads(0), [])
    srd(a, 12, 6, OUT_BYTES)
    srd(a, 36, 4, WS_WGU + 108 * 40960)
    srd(a, 96, 52, OUT_BYTES)
    for k, rp in enumerate(ORDER):
        a.i(f"s_add_u32 s23, s16, {rp}")
        a.i("s_and_b32 s23, s23, 3")
        a.i("s_lshl_b32 s23, s23, 10")
        a.i(f"v_add_u32 v{4+k}, s23, v2")
    a.many(f"""s_mul_i32 s24, s17, 20
              s_add_u32 s24, s24, s22
              s_lshl_b32 s24, s24, 12
              s_add_u32 s24, s24, {WS_PQ}
              s_mul_i32 s25, s18, 100
              s_add_u32 s25, s25, s22
              s_lshl_b32 s25, s25, 10
              s_add_u32 s25, s25, {WS_WO}
              s_lshl_b32 s26, s22, 10
              s_add_u32 s26, s26, {WS_RM}""")

    def pq_loads(k):
        L = []
        for j in range(5):
            L.append(f"s_add_u32 s29, s24, {j*4096}")
            L.append(f"buffer_load_dwordx4 {vr(PQF+(k % 2)*20+j*4, 4, 'a')}, v{4+k}, s[8:11], s29 offen{LF()}")
        return L

    def wo_loads(b):
        L = [f"s_add_u32 s30, {'s25' if b < 5 else 's26'}, {b*20480 if b < 5 else 0}"]
        for j in range(5):
            L.append(f"buffer_load_dwordx4 {vr(WOF+(j*6+b)*4, 4, 'a')}, {'v2' if j < 4 else 'v3'}, s[8:11], s30 offen offset:{(j % 4)*1024}{LF()}")
        return L
    pqtok = {2: [], 3: []}
    def pq_dma(k):
        L = []
        for j in range(5):
            def setm(j=j):
                a.i(f"s_add_u32 s29, s24, {j*4096}")
                a.i(f"s_add_u32 s68, s67, {(k-2)*5120 + j*1024}")
                a.i("s_mov_b32 m0, s68")
            L.append(setm)
            tk = Tok(); pqtok[k].append(tk)
            L.append((f"buffer_load_dwordx4 v{4+k}, s[8:11], s29 offen{LF()} lds", tk))
        return L
    def pq_rd(k):
        return [(f"ds_read_b128 {vr(PQF+(k % 2)*20+j*4, 4, 'a')}, v159 offset:{(k-2)*5120 + j*1024}", None, pqtok[k]) for j in range(5)]
    wl = sum([wo_loads(b) for b in range(6)], [])
    pqd = pq_dma(2) + pq_dma(3)
    if not MERGED:
        interleave(a, pq_loads(0) + z_loads(1) + kv_loads(1) + pq_loads(1), [])
    else:
        a.many(f"""v_lshlrev_b32 v10, 2, v1
                  v_lshrrev_b32 v11, 2, v1
                  v_lshlrev_b32 v11, 7, v11
                  v_and_b32 v12, 3, v1
                  v_lshl_add_u32 v11, v12, 2, v11
                  v_lshlrev_b32 v12, 3, v1
                  s_mov_b32 s79, {WS_FLAG + 0x1800}
                  s_mov_b32 s75, {WS_FLAG + 0x3000}""")
        gpoll(a, "L_gp1", ["buffer_load_dword v14, v10, s[8:11], s79 offen sc1", "buffer_load_dword v15, v11, s[8:11], s79 offen offset:2048 sc1"], [14, 15])
        stamp(a)
        interleave(a, wl + pq_loads(0) + pq_loads(1) + pqd, [])
        wl = []; pqd = []
        gpoll(a, "L_gp2", ["buffer_load_dwordx2 v[14:15], v12, s[8:11], s75 offen sc1"], [14, 15])
        stamp(a)
        interleave(a, z_loads(0) + kv_loads(0) + z_loads(1) + kv_loads(1), [])
    for ap in range(5):
        m = 0
        for l in range(64):
            if (16 * ap + 4 * (l >> 4)) // 20 == (l & 3):
                m |= 1 << l
        smask(a, 40 + 2 * ap, m)
    smask(a, 50, 0xFFFFFFFFFFFF0000); smask(a, 52, 0xFFFFFFFF00000000); smask(a, 54, 0xFFFF000000000000)
    a.i(f"s_mov_b32 s32, {f32(1e-6)}"); a.i(f"s_mov_b32 s33, {f32(1e-6)}")
    for r in range(TT, TT + 8):
        a.ever.add(("v", r))
    if P2_FINE: stamp(a)
    conv = [[], []]
    zf = {}
    for zb in range(2):
        for j in ([0, 1, 2] if zb == 0 else [2, 3, 4]):
            r = ZF + len(zf) * 4
            zf[(zb, j)] = r
            for h in range(2):
                ab = 2 * j + h
                if ab // 5 == zb:
                    for jj in range(2):
                        conv[zb].append(f"v_cvt_pk_bf16_f32 v{r+2*h+jj}, v{ZR+ab*4+2*jj}, v{ZR+ab*4+2*jj+1}")
                    for jj in range(2):
                        conv[zb].append(f"v_cndmask_b32 v{r+2*h+jj}, 0, v{r+2*h+jj}, s[{40+2*(ab % 5)}:{41+2*(ab % 5)}]")
                else:
                    conv[zb] += [f"v_mov_b32 v{r+2*h}, 0", f"v_mov_b32 v{r+2*h+1}, 0"]
    kf = {}
    for b in range(10):
        for j in range(5):
            val = [(ab // 5 == b // 5 and abs(ab - b) <= 1) for ab in (2 * j, 2 * j + 1)]
            if not any(val):
                continue
            r = KF + len(kf) * 4
            kf[(b, j)] = r
            for h in range(2):
                ab = 2 * j + h
                if val[h]:
                    src = KVR + (13 * (b // 5) + 2 * (ab % 5) + (b % 5)) * 4
                    for jj in range(2):
                        conv[b // 5].append(f"v_cvt_pk_bf16_f32 v{r+2*h+jj}, v{src+2*jj}, v{src+2*jj+1}")
                else:
                    conv[b // 5] += [f"v_mov_b32 v{r+2*h}, 0", f"v_mov_b32 v{r+2*h+1}, 0"]

    def o_mfma(k):
        N = NUM[k % 2]
        L = []
        pq = lambda j: vr(PQF + (k % 2) * 20 + j * 4, 4, 'a')
        for zb in range(2):
            first = True
            for (z2, j), r in zf.items():
                if z2 == zb:
                    L.append(mfma(vr(N + 40 + zb * 4), vr(r), pq(j), "0" if first else None)); first = False
            for b in range(5 * zb, 5 * zb + 5):
                first = True
                for (b2, j), r in kf.items():
                    if b2 == b:
                        L.append(mfma(vr(N + b * 4), vr(r), pq(j), "0" if first else None)); first = False
        return L

    OLOC = [OF[0], OF[1], NUM[0], NUM[1]]

    def o_valu(k):
        N = NUM[k % 2]; O = OLOC[k]
        L = []
        for gq in range(2):
            d = N + 40 + gq * 4
            for h in (0, 2):
                L.append(f"v_pk_add_f32 {vr(d+h, 2)}, {vr(d+h, 2)}, s[32:33]")
            for h in range(4):
                L.append(f"v_rcp_f32 v{d+h}, v{d+h}")
            for q in range(3):
                L.append(f"v_cndmask_b32 v{TT+gq*3+q}, v{d+q}, v{d+q+1}, s[{50+2*q}:{51+2*q}]")
            for b in range(5 * gq, 5 * gq + 5):
                bp = b % 5
                fr = d if bp == 0 else (d + 3 if bp == 4 else TT + gq * 3 + bp - 1)
                sel = "op_sel_hi:[1,0]" if fr % 2 == 0 else "op_sel:[0,1]"
                for jj in (0, 2):
                    L.append(f"v_pk_mul_f32 {vr(N+b*4+jj, 2)}, {vr(N+b*4+jj, 2)}, {vr(fr - fr % 2, 2)} {sel}")
                for jj in range(2):
                    L.append(f"v_cvt_pk_bf16_f32 v{O+b*2+jj}, v{N+b*4+2*jj}, v{N+b*4+2*jj+1}")
        return L

    def main_mfma(k, bps=(0, 1, 2)):
        O = OLOC[k]; rp = ORDER[k]
        L = []
        for bp in bps:
            for j in range(5):
                for b in (2 * bp, 2 * bp + 1):
                    L.append(mfma(vr(ACC + (rp * 6 + b) * 4, 4, 'a'), vr(WOF + (j * 6 + b) * 4, 4, 'a'), vr(O + j * 4), "0" if j == 0 else None))
        return L

    def red_wr(k):
        rp = ORDER[k]
        L = [f"ds_write_b128 v{10+rp-1}, {vr(ACC+(rp*6+b)*4, 4, 'a')} offset:{b*1024}" for b in range(5)]
        def mean_wr():
            a.i("s_mov_b64 exec, 0xffff")
            a.i(f"ds_write_b128 v{10+rp-1}, {vr(ACC+(rp*6+5)*4, 4, 'a')} offset:5120")
            a.i("s_mov_b64 exec, -1")
        return L + [mean_wr]
    xs = f"""s_lshl_b32 s31, s17, 2
              s_add_u32 s31, s31, s16
              s_mul_i32 s76, s31, 20480
              s_mul_i32 s77, s18, 160
              s_add_u32 s76, s76, s77
              s_lshl_b32 s77, s31, 6
              s_add_u32 s77, s77, {WS_ST1 + 8192}
              s_mul_i32 s34, s16, 3072
              s_add_u32 s34, s34, 146432
              s_mov_b32 m0, s34
              s_movk_i32 s20, 0x199a
              v_and_b32 v14, 15, v1
              v_lshlrev_b32 v9, 2, v14""".split("\n")
    xtok = []
    for i in range(3):
        xs += [f"v_add_u32 v15, {64*i}, v1", "v_mul_u32_u24 v13, s20, v15", "v_lshrrev_b32 v13, 16, v13",
               f"v_mul_u32_u24 v13, {1280-160}, v13", "v_lshl_add_u32 v15, v15, 4, v13"]
        if i:
            xs.append(f"v_subrev_u32 v15, {1024*i}, v15")
        tk = Tok(); xtok.append(tk)
        xs.append((f"buffer_load_dwordx4 v15, s[12:15], s76 offen offset:{1024*i} lds", tk))
    xs.append(f"buffer_load_dword v158, v9, s[8:11], s77 offen{LF()}")
    xs = [x.strip() if isinstance(x, str) else x for x in xs]
    interleave(a, conv[0] + conv[1], pqd + xs[:-1])
    if P2_FINE: stamp(a)
    red_setup(a, 5376, 81920, 10)
    a.i("s_mov_b32 s58, s20")
    a.i("v_add_u32 v159, s67, v2")
    interleave(a, o_mfma(0), xs[-1:] + wl[:10])
    interleave(a, o_mfma(1), mix(o_valu(0), wl[10:20]) + pq_rd(2))
    interleave(a, o_mfma(2), mix(o_valu(1), wl[20:30]) + pq_rd(3))
    interleave(a, o_mfma(3), mix(o_valu(2), wl[30:]))
    if P2_FINE: stamp(a)
    a.wait_lg0()
    XR = 160
    xl = [f"v_mul_u32_u24 v15, 160, v14", "v_lshl_add_u32 v15, v8, 3, v15", "v_add_u32 v15, s34, v15"]
    xl += [(f"ds_read_b64 {vr(XR+2*b, 2)}, v15 offset:{b*32}", None, xtok) for b in range(5)]
    xl.append(f"v_mov_b32 v{XR+10}, v158")
    ov3 = o_valu(3) + xl
    interleave(a, main_mfma(0, (0,)) + main_mfma(1, (0,)) + main_mfma(2, (0,)), mix(ov3[:40], pre_dma[:9]))
    interleave(a, main_mfma(0, (1,)) + main_mfma(1, (1,)) + main_mfma(2, (1,)),
               mix(ov3[40:] + red_wr(0)[:2] + red_wr(1)[:2] + red_wr(2)[:2], pre_dma[9:18]))
    if P2_FINE: stamp(a)
    interleave(a, main_mfma(0, (2,)) + main_mfma(1, (2,)) + main_mfma(2, (2,)),
               mix(red_wr(0)[2:4] + red_wr(1)[2:4] + red_wr(2)[2:4] + red_wr(0)[4:], pre_dma[18:]) + red_wr(1)[4:])
    interleave(a, main_mfma(3, (0,)), red_wr(2)[4:], start=3)
    a.wait_lg0()
    a.i("s_barrier")
    if P2_FINE: stamp(a)
    PS = 176
    side = []
    side += ["v_lshlrev_b32 v7, 4, v14", "v_add_u32 v7, s58, v7"]
    RBUF = [16, 28, 40, 52, 84, 96]
    for q in range(3):
        side.append(f"ds_read_b32 v{RBUF[5]+q*4}, v7 offset:{q*5376+5120}")
    for b in range(5):
        for q in range(3):
            side.append(f"ds_read_b128 {vr(RBUF[b]+q*4)}, v13 offset:{q*5376+b*1024}")
    for b in (5, 0, 1, 2, 3, 4):
        for j in range(4 if b < 5 else 1):
            side.append(f"v_add_f32 v{PS+b*4+j}, v{RBUF[b]+j}, v{RBUF[b]+4+j}")
            side.append(f"v_add_f32 v{PS+b*4+j}, v{PS+b*4+j}, v{RBUF[b]+8+j}")
        if b == 5:
            side.append(f"v_add_f32 v{XR+10}, v{XR+10}, v{PS+20}")
    for b in range(5):
        for jj in range(2):
            h = XR + b * 2 + jj
            side.append(f"v_lshlrev_b32 v4, 16, v{h}")
            side.append(f"v_and_b32 v5, 0xffff0000, v{h}")
            side.append(f"v_add_f32 v{PS+b*4+2*jj}, v{PS+b*4+2*jj}, v4")
            side.append(f"v_add_f32 v{PS+b*4+2*jj+1}, v{PS+b*4+2*jj+1}, v5")
    side += f"""v_bfe_u32 v4, v1, 4, 1
              v_lshlrev_b32 v4, 9, v4
              v_lshl_add_u32 v4, v14, 4, v4
              v_lshrrev_b32 v6, 5, v1
              v_lshl_add_u32 v5, v6, 3, v4
              v_lshl_add_u32 v4, v6, 10, v4
              s_lshl_b32 s26, s17, 1
              s_lshr_b32 s27, s16, 1
              s_add_u32 s26, s26, s27
              s_mul_i32 s26, s26, 40
              s_mul_i32 s27, s18, 5
              s_add_u32 s26, s26, s27
              s_lshl_b32 s26, s26, 10
              s_and_b32 s27, s16, 1
              s_lshl_b32 s27, s27, 8
              s_add_u32 s27, s27, s26
              s_add_u32 s27, s27, {WS_H}
              s_add_u32 s26, s27, 4096
              v_lshlrev_b32 v6, 5, v14
              s_lshl_b32 s28, s31, 9
              s_lshl_b32 s29, s18, 2
              s_add_u32 s28, s28, s29
              s_add_u32 s28, s28, {WS_ST2}
              s_lshl_b32 s29, s31, 6
              s_add_u32 s29, s29, {WS_M2}""".split("\n")
    interleave(a, main_mfma(3, (1, 2)), [x.strip() for x in side])
    if P2_FINE: stamp(a)
    OUT = 16
    a.i(f"v_accvgpr_read_b32 v7, a{ACC+20}")
    for k in range(20):
        a.i(f"v_accvgpr_read_b32 v{OUT+k}, a{ACC+k}")
    a.i(f"v_add_f32 v{XR+10}, v{XR+10}, v7")
    for k in range(20):
        a.i(f"v_add_f32 v{OUT+k}, v{OUT+k}, v{PS+k}")
    for k in range(20):
        a.i(f"v_sub_f32 v{OUT+k}, v{OUT+k}, v{XR+10}")
    PK = 200
    for b in range(5):
        for jj in range(2):
            a.i(f"v_cvt_pk_bf16_f32 v{PK+b*2+jj}, v{OUT+b*4+2*jj}, v{OUT+b*4+2*jj+1}")
    for p in range(2):
        r = PK + p * 4
        a.i(f"v_permlane32_swap_b32 v{r}, v{r+2}")
        a.i(f"v_permlane32_swap_b32 v{r+1}, v{r+3}")
        a.i(f"buffer_store_dwordx4 {vr(r)}, v4, s[8:11], s27 offen offset:{p*2048} {SF}")
    a.i(f"buffer_store_dwordx2 {vr(PK+8, 2)}, v5, s[8:11], s26 offen {SF}")
    a.i(f"v_mul_f32 v14, v{OUT}, v{OUT}")
    a.i(f"v_mul_f32 v15, v{OUT+1}, v{OUT+1}")
    for k in range(2, 20):
        a.i(f"v_fmac_f32 v{14 + k % 2}, v{OUT+k}, v{OUT+k}")
    a.many("""v_add_f32 v14, v14, v15
              v_mov_b32 v15, v14
              v_permlane16_swap_b32 v14, v15
              v_add_f32 v14, v14, v15
              v_mov_b32 v15, v14
              v_permlane32_swap_b32 v14, v15
              v_add_f32 v14, v14, v15
              s_mov_b64 exec, 0xffff""")
    a.i(f"buffer_store_dword v14, v6, s[8:11], s28 offen {SF}")
    a.i(f"buffer_store_dword v{XR+10}, v9, s[8:11], s29 offen {SF}")
    a.i("s_mov_b64 exec, -1")


P3_STAMPS = (3,)
P2_FINE = False
T1N = 3
SYNC_FINE = -1
W4TOK = []
P4_NPRE = 10


def p4_wreg(j, b):
    n = j * 5 + b
    if j >= P4_NPRE:
        return vr(64 + (n - P4_NPRE * 5) * 4, 4, 'a')
    if n < 11:
        return vr(212 + n * 4)
    if n < 21:
        return vr(216 + (n - 11) * 4, 4, 'a')
    if n < 44:
        return vr(120 + (n - 21) * 4)
    return vr(192 + (n - 44) * 4, 4, 'a')


KORD = [0, 1, 4, 5, 7, 8, 11, 12, 2, 3, 6, 9, 10, 13]


def p4_setup(a):
    a.many(f"""s_mul_i32 s21, s16, 14
              s_mul_i32 s70, s17, 54
              s_add_u32 s70, s70, s21
              s_lshl_b32 s70, s70, 12
              s_add_u32 s70, s70, {WS_ACT}
              s_mul_i32 s71, s18, 270
              s_add_u32 s71, s71, s21
              s_lshl_b32 s71, s71, 10
              s_add_u32 s71, s71, {WS_WD}
              s_cmp_eq_u32 s16, 3
              s_cselect_b32 s72, s56, s71
              s_cselect_b32 s74, s56, s70""")


def p4_wloads(a, j):
    L = []
    k = KORD[j]
    for b in range(5):
        L.append(f"s_add_u32 s73, {'s71' if k < 12 else 's72'}, {(b*54 + k)*1024}")
        L.append(f"buffer_load_dwordx4 {p4_wreg(j, b)}, v2, s[8:11], s73 offen{LF()}")
    return L


AQ_TOTAL = [0]
def body_p3(a, D, W4rest, bar_at=0.7, rd_ahead=6, dbg="", pace0=1, pace1=2, arate=3, w0=36, wstep=4.8, wgrp=4, pswitch=40):
    SF = "sc1"
    a.many(f"""v_lshlrev_b32 v2, 4, v1
              v_add_u32 v3, 0x1000, v2
              v_and_b32 v4, 31, v1
              s_lshl_b32 s26, s60, 2
              s_add_u32 s26, s26, s16
              s_mul_i32 s27, s26, 40960
              s_add_u32 s27, s27, {WS_H}
              v_lshlrev_b32 v5, 5, v4
              s_lshl_b32 s28, s26, 10
              s_add_u32 s28, s28, {WS_ST2}""")
    ACC = 16; ST = 80; RA2, RSQ = 8, 9; T = 96; PK = 88; WF = 160; NB = 7

    def slab(k0, k1):
        L = []
        for kb in range(k0, k1):
            if kb % 4 == 0 or kb == k0:
                L.append(f"s_add_u32 s34, s27, {(kb // 4) * 4096}")
            L.append(f"buffer_load_dwordx4 {vr(kb*4, 4, 'a')}, v2, s[8:11], s34 offen offset:{(kb % 4) * 1024} {'' if 'plain' in dbg else 'sc1'}")
        return L
    interleave(a, slab(0, NSLAB0), [])
    a.many(f"""s_lshl_b32 s30, s60, 1
              s_lshr_b32 s31, s16, 1
              s_add_u32 s30, s30, s31
              s_mul_i32 s30, s30, 108
              s_mul_i32 s31, s61, 7
              s_add_u32 s30, s30, s31
              s_lshl_b32 s30, s30, 1
              s_and_b32 s31, s16, 1
              s_add_u32 s30, s30, s31
              s_lshl_b32 s30, s30, 10
              s_add_u32 s30, s30, {WS_ACT}
              s_xor_b32 s32, s57, 1
              s_mul_i32 s32, s32, {6*2048}
              s_add_u32 s32, s32, s30
              s_lshl_b32 s31, s57, 11
              s_add_u32 s30, s30, s31
              s_cmp_eq_u32 s61, 15
              s_cselect_b32 s31, 0x7f000000, s30
              v_add_u32 v13, 0x10000, v2
              v_add_u32 v14, 0x20000, v2""")
    steps = sorted((gu_pos(c, kb), c, kb) for c in range(7) for kb in range(40))

    def rd(n):
        p, c, kb = steps[n]
        blk_, off = p3_lds(c, kb)
        assert blk_ == p // 40
        base = ["v2", "v13", "v14"][off >> 16]
        return f"ds_read_b128 {vr(WF + (n % 8) * 4, 4, 'a')}, {base} offset:{off & 0xffff}"

    def mm(n):
        p, c, kb = steps[n]
        sl = c % 4 if c < 6 else 2 + (kb & 1)
        d = vr(ACC + sl * 16, 16)
        return mfma32(d, vr(WF + (n % 8) * 4, 4, 'a'), vr(kb * 4, 4, 'a'), "0" if (kb == 0 or (c == 6 and kb == 1)) else None)

    sttok = {}
    def epi(c):
        L = []
        g0 = ACC + (c % 4) * 16
        u0 = g0 + 8
        pk = PK + (c % 2) * 4
        if c == 6:
            L += [f"v_add_f32 v{g0+j}, v{g0+j}, v{g0+16+j}" for j in range(16)]
        for hf in range(2):
            R = range(4 * hf, 4 * hf + 4)
            for j in R:
                L.append(f"v_mul_f32 v{T+j}, v{RA2}, v{g0+j}")
            for j in R:
                L.append(f"v_exp_f32 v{T+j}, v{T+j}")
                L.append(f"v_mul_f32 v{T+8+j}, v{g0+j}, v{u0+j}")
            for j in R:
                L.append(f"v_add_f32 v{T+j}, 1.0, v{T+j}")
            for j in R:
                L.append(f"v_rcp_f32 v{T+j}, v{T+j}")
                L.append(f"v_mul_f32 v{T+8+j}, v{RSQ}, v{T+8+j}")
            for j in R:
                L.append(f"v_mul_f32 v{T+8+j}, v{T+8+j}, v{T+j}")
            for jj in range(2 * hf, 2 * hf + 2):
                L.append(f"v_cvt_pk_bf16_f32 v{pk+jj}, v{T+8+2*jj}, v{T+8+2*jj+1}")
        L.append(f"s_add_u32 s35, {'s30' if c < 2 else ('s31' if c < 6 else 's32')}, {c*2048 if c < 6 else 0}")
        L.append((f"buffer_store_dwordx4 {vr(pk)}, v2, s[8:11], s35 offen {SF}", sttok.setdefault(c, Tok())))
        return L

    stats = [f"buffer_load_dwordx4 {vr(ST+q*4)}, v5, s[8:11], s28 offen offset:{q*16} sc1" for q in range(2)]
    sfin = [f"v_add_f32 v{ST}, v{ST}, v{ST+k}" for k in range(1, 8)]
    sfin += [f"v_mov_b32 v{ST+1}, {f32(1e-5)}", f"v_fmac_f32 v{ST+1}, {f32(1/640)}, v{ST}", f"v_rsq_f32 v{RA2}, v{ST+1}",
             f"v_rcp_f32 v{RSQ}, v{ST+1}", f"v_mul_f32 v{RA2}, {f32(-LOG2E)}, v{RA2}"]
    cut = int(40 * bar_at)

    def groups(L):
        out, cur = [], []
        for x in L:
            cur.append(x)
            t = x[0] if isinstance(x, tuple) else x
            if isinstance(t, str) and t.startswith("buffer_"):
                out.append(cur); cur = []
        if cur and out:
            out[-1] = out[-1] + cur
        return out
    vq = []
    if D23_IN_P3:
        vq += [(0, g) for g in groups(slab(NSLAB0, 30) + D[2][0] + slab(30, 40) + stats + D[3][0])]
    else:
        vq += [(0, g) for g in groups(slab(NSLAB0, 40) + stats)]
    for b in (4, 5, 6):
        vq += [(40 * (b - 3) + cut, g) for g in groups(D[b][0])]
    wq = [(w0 + int(wstep * k), g) for k, g in enumerate(groups(W4rest))]
    if "now4" in dbg:
        for j in range(P4_NPRE):
            for b in range(5):
                for r in regs_of(p4_wreg(j, b)): a.ever.add(r)
        wq = []
    if "hotw4" in dbg:
        wq = [(e, [x.replace("s71", "s27") if isinstance(x, str) else x for x in g]) for e, g in wq]
    if "latew4" in dbg:
        wq = [(160, g) for _, g in wq]
    def w4_dma(j):
        L = []
        k = KORD[j]
        base = (3 * 40960 if j < 12 else 0) + (j % 2) * 5120
        for b in range(5):
            def setm(b=b):
                a.i(f"s_add_u32 s68, s67, {base + b * 1024}")
                a.i("s_mov_b32 m0, s68")
                a.i(f"s_add_u32 s73, {'s71' if k < 12 else 's72'}, {(b*54 + k)*1024}")
            L.append(setm)
            L.append(f"buffer_load_dwordx4 v2, s[8:11], s73 offen{LF()} lds")
        return L
    if W4_LDS:
        lq = groups(sum([w4_dma(j) for j in range(P4_NPRE, 14)], []))
        e0 = max(wq[-1][0] if wq else 0, 200 + cut)
        wq += [(min(e0 + 2 * k, 279), g) for k, g in enumerate(lq)]
    aq = [(60, [x]) for x in sfin]
    for c in range(6):
        aq += [(80 * (c // 2 + 1) + 1, [x]) for x in epi(c)]
    atotal = len(aq)

    def emit(items):
        for x in items:
            if callable(x): x()
            elif isinstance(x, tuple): a.i(*x)
            else: a.i(x)
    NB = 7
    a.wait_tok(D[0][1][-1], D[1][1][-1])
    a.i("s_barrier")
    nrd = 0
    rdseq = {}
    last_v = -99
    for n in range(NB * 40):
        blk, i = n // 40, n % 40
        if i == cut and 1 <= blk < NB - 1:
            a.wait_tok(D[blk + 1][1][-1])
            if blk == 5:
                need = len(sfin) + sum(len(epi(c)) for c in range(4))
                while atotal - len(aq) < need:
                    emit(aq.pop(0)[1])
                a.wait_tok(sttok[3])
            a.i("s_barrier")
            if blk == 5:
                flag_store(a, 1)
        if n in (160, 240):
            need = len(sfin) + sum(len(epi(c)) for c in range(2 if n == 160 else 4))
            while atotal - len(aq) < need:
                emit(aq.pop(0)[1])
        lim = min(n + rd_ahead + 1, (blk + 1) * 40 if (i < cut and blk >= 1) else min((blk + 2) * 40, NB * 40))
        while nrd < lim:
            a.i(rd(nrd)); rdseq[nrd] = a.lg_n - 1; nrd += 1
        if n % wgrp == 0:
            a.need(lgseq=rdseq[min(n + wgrp - 1, nrd - 1)])
        a.i(mm(n))
        pace = pace0 if n < pswitch else pace1
        if n - last_v >= pace:
            if vq and vq[0][0] <= n:
                emit(vq.pop(0)[1]); last_v = n
            elif wq and wq[0][0] <= n:
                emit(wq.pop(0)[1]); last_v = n
        k = 0
        while aq and aq[0][0] <= n and k < arate:
            emit(aq.pop(0)[1]); k += 1
        if i == 39 and blk in P3_STAMPS:
            stamp(a)
        if n == 268:
            poll_issue(a, 1, 12)
    assert not vq
    for q in (aq, wq):
        while q:
            emit(q.pop(0)[1])
    interleave(a, epi(6), [])
    return sttok[6]


def body_p4(a, name, last_store, depth=4):
    ACC = 16
    NK = 14
    ORDER = [1, 2, 3, 0]
    a.many("""v_lshrrev_b32 v8, 5, v1
              v_lshlrev_b32 v8, 11, v8
              v_bfe_u32 v9, v1, 4, 1
              v_lshl_add_u32 v8, v9, 9, v8
              v_and_b32 v9, 15, v1
              v_lshl_add_u32 v8, v9, 4, v8""")
    for k, rp in enumerate(ORDER):
        a.i(f"s_add_u32 s22, s16, {rp}")
        a.i("s_and_b32 s23, s22, 1")
        a.i("s_lshl_b32 s23, s23, 8")
        a.i("s_and_b32 s22, s22, 2")
        a.i("s_lshl_b32 s22, s22, 9")
        a.i("s_add_u32 s22, s22, s23")
        a.i(f"v_add_u32 v{4+k}, s22, v8")

    def aloads(j):
        base = (j % depth) * 16
        k = KORD[j]
        L = [f"s_add_u32 s75, {'s70' if k < 12 else 's74'}, {k*4096}"]
        L += [f"buffer_load_dwordx4 {vr(base+x*4, 4, 'a')}, v{4+x}, s[8:11], s75 offen sc1" for x in range(4)]
        return L
    poll_check(a, f"L_pa_{name}", 12)
    for j in range(depth - 1):
        interleave(a, aloads(j), [])
    a.wait_tok(last_store)
    a.i("s_barrier")
    flag_store(a, 2)
    if P4_FINE: stamp(a)
    if W4_LDS:
        a.i("v_add_u32 v13, s67, v2")
        a.i("v_add_u32 v14, 0x1e000, v13")
        late_w = []
        for j in range(P4_NPRE, 14):
            for b in range(5):
                late_w += [f"ds_read_b128 {p4_wreg(j, b)}, {'v14' if j < 12 else 'v13'} offset:{(j % 2) * 5120 + b * 1024}", "s_nop 0"]
    else:
        late_w = sum([p4_wloads(a, j) for j in range(P4_NPRE, 14)], [])
    HR = 100
    a.many(f"""v_bfe_u32 v10, v1, 4, 1
              v_lshlrev_b32 v10, 9, v10
              v_lshl_add_u32 v10, v9, 4, v10
              v_lshrrev_b32 v12, 5, v1
              v_lshl_add_u32 v10, v12, 3, v10
              v_lshlrev_b32 v11, 2, v9
              s_lshl_b32 s26, s17, 1
              s_lshr_b32 s27, s16, 1
              s_add_u32 s26, s26, s27
              s_mul_i32 s26, s26, 40
              s_mul_i32 s27, s18, 5
              s_add_u32 s26, s26, s27
              s_lshl_b32 s26, s26, 10
              s_and_b32 s27, s16, 1
              s_lshl_b32 s27, s27, 8
              s_add_u32 s27, s27, s26
              s_add_u32 s27, s27, {WS_H}
              s_add_u32 s26, s27, 4096
              s_lshl_b32 s28, s17, 2
              s_add_u32 s28, s28, s16
              s_lshl_b32 s28, s28, 6
              s_add_u32 s28, s28, {WS_M2}""")
    red_setup(a, 5120, 40960, 96)
    hl = [f"buffer_load_dwordx2 {vr(HR+2*b, 2)}, v10, s[8:11], s27 offen offset:{b*1024} sc1" for b in range(4)]
    hl += [f"buffer_load_dwordx2 {vr(HR+8, 2)}, v10, s[8:11], s26 offen sc1",
           f"buffer_load_dword v{HR+10}, v11, s[8:11], s28 offen sc1"]

    def mm(j, k):
        rp = ORDER[k]
        return [mfma(vr(ACC + (rp * 5 + b) * 4), p4_wreg(j, b), vr((j % depth) * 16 + k * 4, 4, 'a'), "0" if j == 0 else None) for b in range(5)]
    NT = 3
    for j in range(NK - NT):
        M = []
        for b in range(5):
            for k in range(4):
                M.append(mm(j, k)[b])
        side = aloads(j + depth - 1) if j + depth - 1 < NK else []
        if j == 2:
            side = side + hl
        if j < 4:
            side = side + late_w[j * 10:(j + 1) * 10]
        if j == 3:
            side = side + [lambda: poll_issue(a, 2, 12)]
        if j + depth - 1 == 8:
            if P4_FINE: stamp(a)
            poll_check(a, f"L_pb_{name}", 12)
            if P4_FINE: stamp(a)
        interleave(a, M, side)
    wr = lambda k: [f"ds_write_b128 v{96+ORDER[k]-1}, {vr(ACC+(ORDER[k]*5+b)*4)} offset:{b*1024}" for b in range(5)]
    tail = lambda k: sum([mm(j, k) for j in range(NK - NT, NK)], [])
    if P4_FINE: stamp(a)
    interleave(a, tail(0), [])
    interleave(a, tail(1), wr(0), start=4)
    interleave(a, tail(2), wr(1), start=4)
    side = f"""v_lshrrev_b32 v3, 4, v1
              s_movk_i32 s20, 1280
              v_mul_lo_u32 v2, v9, s20
              v_and_b32 v4, 1, v3
              v_lshlrev_b32 v4, 5, v4
              v_lshrrev_b32 v5, 1, v3
              v_lshlrev_b32 v5, 4, v5
              v_add3_u32 v4, v4, v5, v2
              v_lshl_add_u32 v5, v3, 3, v2
              s_lshl_b32 s20, s17, 2
              s_add_u32 s20, s20, s16
              s_mul_i32 s20, s20, 20480
              s_mul_i32 s21, s18, 160
              s_add_u32 s20, s20, s21""".split("\n")
    PS = 180
    for b in range(5):
        for jj in range(2):
            h = HR + b * 2 + jj
            side.append(f"v_lshlrev_b32 v{PS+b*4+2*jj}, 16, v{h}")
            side.append(f"v_and_b32 v{PS+b*4+2*jj+1}, 0xffff0000, v{h}")
    side += [f"v_add_f32 v{PS+k}, v{PS+k}, v{HR+10}" for k in range(20)]
    interleave(a, tail(3), wr(2) + [x.strip() for x in side], start=3)
    a.wait_lg0()
    a.i("s_barrier")
    if P4_FINE: stamp(a)
    for b in range(5):
        for q in range(3):
            a.i(f"ds_read_b128 {vr(120+(b*3+q)*4)}, v99 offset:{(q*5+b)*1024}")
    for k in range(20):
        a.i(f"v_add_f32 v{ACC+k}, v{ACC+k}, v{PS+k}")
    PK = 112
    for b in range(5):
        for j in range(4):
            a.i(f"v_add_f32 v{120+b*12+j}, v{120+b*12+j}, v{124+b*12+j}")
            a.i(f"v_add_f32 v{ACC+b*4+j}, v{ACC+b*4+j}, v{128+b*12+j}")
        for j in range(4):
            a.i(f"v_add_f32 v{ACC+b*4+j}, v{ACC+b*4+j}, v{120+b*12+j}")
        for jj in range(2):
            a.i(f"v_cvt_pk_bf16_f32 v{PK+(b % 4)*2+jj}, v{ACC+b*4+2*jj}, v{ACC+b*4+2*jj+1}")
        if b % 2 == 1:
            r = PK + (b // 2) * 4
            a.i(f"v_permlane16_swap_b32 v{r}, v{r+2}")
            a.i(f"v_permlane16_swap_b32 v{r+1}, v{r+3}")
            a.i(f"buffer_store_dwordx4 {vr(r)}, v4, s[96:99], s20 offen offset:{(b // 2)*64} {OUT_FLAGS}")
    a.i(f"buffer_store_dwordx2 {vr(PK, 2)}, v5, s[96:99], s20 offen offset:128 {OUT_FLAGS}")


def gpoll(a, lbl, loads, regs):
    a.i("s_cmp_lg_u32 s16, 0")
    a.i(f"s_cbranch_scc1 {lbl}_w")
    a.raw("s_mov_b32 s21, 0")
    a.label(f"{lbl}_p")
    for x in loads:
        a.raw(x)
    a.raw("s_waitcnt vmcnt(0)")
    for r in regs[1:]:
        a.raw(f"v_and_b32 v{regs[0]}, v{regs[0]}, v{r}")
    a.raw(f"v_cmp_ne_u32 vcc, 1, v{regs[0]}")
    a.raw("s_add_u32 s21, s21, 1")
    a.raw("s_cmp_ge_u32 s21, 0x40000")
    a.raw(f"s_cbranch_scc1 {lbl}_w")
    a.raw(f"s_cbranch_vccz {lbl}_w")
    a.raw(f"s_sleep {GPOLL_SLEEP}")
    a.raw(f"s_branch {lbl}_p")
    a.label(f"{lbl}_w")
    a.i("s_barrier")
    a.nop(2)


GPOLL_SLEEP = 4


def gen_b(kidx, name="pb_kernel", dbg="", p3kw={}, a=None):
    global MERGED
    MERGED = a is not None
    if a is None:
        a = Asm()
        prologue(a, name, 256, [(4, KA_WS), (6, KA_X), (52, KA_OUT)])
    else:
        for sreg, off in [(4, KA_WS), (6, KA_X), (52, KA_OUT)]:
            a.i(f"s_load_dwordx2 s[{sreg}:{sreg+1}], s[0:1], {off}")
        a.raw("s_waitcnt vmcnt(0)")
        a.i("s_barrier")
        a.many(f"""s_cmp_eq_u32 s16, 0
                  s_mov_b32 s20, 0x7f000000
                  s_cselect_b32 s20, {WS_FLAG}, s20
                  v_mov_b32 v10, s78
                  v_mov_b32 v11, 1
                  s_mov_b64 exec, 1""")
        a.i("buffer_store_dword v11, v10, s[8:11], s20 offen sc1")
        a.i("s_mov_b64 exec, -1")
        stamp(a)
    a.many(f"""s_and_b32 s19, s2, 7
              s_lshr_b32 s20, s2, 3
              s_lshr_b32 s62, s20, 3
              s_and_b32 s18, s20, 7
              s_lshr_b32 s60, s19, 1
              s_lshl_b32 s60, s60, 2
              s_add_u32 s60, s60, s62
              s_and_b32 s21, s19, 1
              s_lshl_b32 s17, s60, 1
              s_add_u32 s17, s17, s21
              s_lshl_b32 s61, s21, 3
              s_add_u32 s61, s61, s18
              s_lshl_b32 s64, s60, 7
              s_lshl_b32 s63, s61, 2
              s_add_u32 s63, s63, s64
              s_mul_i32 s59, s61, {280*1024}
              s_add_u32 s59, s59, {WS_WGU}
              s_mul_i32 s67, s16, 10240
              s_mul_i32 s66, s16, 5120
              s_add_u32 s66, s66, s59
              s_add_u32 s59, s59, s67
              s_and_b32 s57, s61, 1
              s_mov_b32 s56, 0x7f000000
              s_mul_i32 s22, s57, 40960
              s_add_u32 s66, s66, s22
              s_xor_b32 s22, s57, 1
              s_mul_i32 s22, s22, {6*40960}
              s_add_u32 s59, s59, s22""")
    D = [p3_dma(a, b, 2) for b in range(7)]
    p4_setup(a)
    W4all = sum([p4_wloads(a, j) for j in range(P4_NPRE)], [])
    body_p2(a, D[0][0] + D[1][0], [], W4all[:2 * W4_P2], [])
    if "fine" not in dbg and SYNC_FINE != 1 and not P4_FINE:
        stamp(a)
    signal_and_wait(a, name, 0, between=None if D23_IN_P3 else D[2][0] + D[3][0] + W4all[2 * W4_P2:2 * W4_SY])
    if SYNC_FINE != 1 and not P4_FINE: stamp(a)
    last = body_p3(a, D, W4all[2 * W4_SY:], dbg=dbg, **p3kw)
    stamp(a)
    body_p4(a, name, last, depth=P4_DEPTH)
    epilogue(a, name, kidx, 256)
    print(name, "instrs", a.ninstr, "nops", a.nops)
    return name, kernel_wrap(name, a.text(), 256, 256), 256, 256, 163840
```

```python
import gen
from gen import *
from asmgen import regs_of
from genb import mix

X_BYTES = 2048 * 1280
WQKV_BYTES = 640 * 3840
SLOT = 36864
POLL = 21
DRY_AFTER = 9
EARLY_D2 = True
PRE_IN_LOOP = True
START_FINE = False
EPI_FINE = False
NEARLY = 0
SPIN_SLEEP = 16


def spin(a, lbl, target, vtmp, stmp, srd_dbg, voff):
    a.raw(f"v_readfirstlane_b32 s{stmp}, v{vtmp}")
    a.raw("s_nop 1")
    a.raw(f"s_cmp_ge_u32 s{stmp}, {target}")
    a.raw(f"s_cbranch_scc1 {lbl}_ok")
    a.raw(f"s_mov_b32 s{stmp+1}, 0")
    a.label(f"{lbl}_loop")
    a.raw(f"s_sleep {SPIN_SLEEP}")
    a.raw(f"buffer_load_dword v{vtmp}, v{voff}, s[{srd_dbg}:{srd_dbg+3}], 0 offen sc1")
    a.raw("s_waitcnt vmcnt(0)")
    a.raw(f"v_readfirstlane_b32 s{stmp}, v{vtmp}")
    a.raw(f"s_add_u32 s{stmp+1}, s{stmp+1}, 1")
    a.raw(f"s_cmp_ge_u32 s{stmp+1}, 0x40000")
    a.raw(f"s_cbranch_scc1 {lbl}_ok")
    a.raw(f"s_cmp_lt_u32 s{stmp}, {target}")
    a.raw(f"s_cbranch_scc1 {lbl}_loop")
    a.label(f"{lbl}_ok")
    a.raw("s_nop 1")


def p1_gemm(a, role, name, st_flags, rot, dbg=""):
    isq = role == "q"
    ACC = 16
    XF, WFR = 0, 8
    a.many("""v_lshrrev_b32 v96, 3, v1
              v_and_b32 v97, 7, v1
              v_lshrrev_b32 v98, 4, v1
              s_movk_i32 s20, 1280""")
    for i in range(4):
        a.i(f"v_add_u32 v99, {8*i}, v96")
        a.i("v_mul_lo_u32 v99, v99, s20")
        a.i(f"v_add_u32 v100, {4*i}, v98")
        a.i("v_and_b32 v100, 7, v100")
        a.i("v_xor_b32 v100, v100, v97")
        a.i("v_lshl_add_u32 v99, v100, 4, v99")
        a.i(f"v_subrev_u32 v{4+i}, {1024*i}, v99")
    seg = 160 if isq else 1280
    a.i("s_mov_b32 s20, 52429"); a.i("s_movk_i32 s21, 3840")
    for i in range(5):
        a.i(f"v_add_u32 v99, {64*i}, v1")
        a.i("v_mul_lo_u32 v100, v99, s20")
        a.i("v_lshrrev_b32 v100, 20, v100")
        a.i("v_mul_u32_u24 v101, 20, v100")
        a.i("v_sub_u32 v99, v99, v101")
        a.i("v_mul_lo_u32 v100, v100, s21")
        a.i("v_lshl_add_u32 v100, v99, 4, v100")
        a.i("v_cmp_le_u32 vcc, 10, v99")
        a.i(f"v_mov_b32 v101, {seg-160}")
        a.i("v_cndmask_b32 v101, 0, v101, vcc")
        a.i("v_add_u32 v100, v100, v101")
        a.i(f"v_subrev_u32 v{8+i}, {1024*i if i < 4 else 0}, v100")
    a.ptrs()
    a.many("""s_lshl_b32 s26, s17, 2
              s_add_u32 s26, s26, s16
              s_mul_i32 s26, s26, 40960
              s_mul_i32 s27, s16, 61440""")
    if isq:
        a.i("s_mul_i32 s20, s18, 320")
    else:
        a.i("s_mul_i32 s20, s18, 160"); a.i("s_add_u32 s20, s20, 640")
    a.many("""s_add_u32 s27, s27, s20
              s_mul_i32 s30, s16, 5120
              s_lshl_b32 s31, s16, 12
              s_add_u32 s31, s31, 20480
              s_mov_b32 s33, 0
              s_mov_b32 s29, 0
              s_mov_b32 s28, 0x7f000000""")

    def dmaA():
        L = ["s_add_u32 s34, s30, s33", "s_mov_b32 m0, s34", "s_add_u32 s34, s34, 4096"]
        L += [f"buffer_load_dwordx4 v{8+i}, s[56:59], s27 offen offset:{1024*i} lds" for i in range(4)]
        return L

    def dmaB():
        L = ["s_mov_b32 m0, s34", "s_add_u32 s34, s31, s33", "buffer_load_dwordx4 v12, s[56:59], s27 offen lds", "s_mov_b32 m0, s34",
             f"s_add_u32 s27, s27, {64*3840}"]
        L += [f"buffer_load_dwordx4 v{4+i}, s[12:15], s26 offen offset:{1024*i} lds" for i in range(4)]
        L += ["s_cmp_eq_u32 s29, 7", "s_cselect_b32 s35, s28, 128", "s_add_u32 s26, s26, s35", f"s_add_u32 s33, s33, {SLOT}", f"s_cmp_eq_u32 s33, {4*SLOT}", "s_cselect_b32 s33, 0, s33"]
        return L
    if START_FINE: stamp(a)
    for st in range(2):
        interleave(a, dmaA() + dmaB(), [])
    if START_FINE: stamp(a)
    a.many("""v_and_b32 v96, 31, v1
              v_lshrrev_b32 v97, 5, v1
              v_bfe_u32 v103, v1, 1, 3
              v_lshlrev_b32 v102, 7, v96
              s_lshl_b32 s20, s16, 12
              v_add_u32 v102, s20, v102""")
    for j in range(4):
        a.i(f"v_add_u32 v104, {2*j}, v97")
        a.i("v_xor_b32 v104, v104, v103")
        a.i(f"v_lshl_add_u32 v{98+j}, v104, 4, v102")
    a.many(f"""v_bfe_u32 v103, v1, 2, 2
              v_lshl_add_u32 v103, v97, 3, v103
              v_mul_u32_u24 v103, 320, v103
              v_bfe_u32 v104, v1, 4, 1
              v_lshl_add_u32 v103, v104, 5, v103
              v_and_b32 v104, 3, v1
              v_lshl_add_u32 v102, v104, 3, v103
              v_mov_b32 v114, 0""")
    for j in range(4):
        a.i(f"v_mov_b32 v{104+j}, v{98+j}")
    a.i("v_mov_b32 v112, v102")
    for r in list(range(ACC, ACC + 80)) + [190, 191] + ([] if isq else list(range(240, 256))):
        a.i(f"v_mov_b32 v{r}, 0")

    def reads(j, nxt=False):
        L = [f"ds_read_b128 {vr(XF+(j % 2)*4, 4, 'a')}, v{108 if nxt else 104+j} offset:20480"]
        for blk in range(5):
            for u in range(2):
                L.append(f"ds_read_b64_tr_b16 {vr(WFR+(j % 2)*20+blk*4+u*2, 2, 'a')}, v{113 if nxt else 112} offset:{(16*j+4*u)*320+blk*64}")
        return L

    def mms(j):
        L = []
        for blk in range(5):
            d = vr(ACC + blk * 16, 16)
            w = vr(WFR + (j % 2) * 20 + blk * 4, 4, 'a'); x = vr(XF + (j % 2) * 4, 4, 'a')
            L.append(mfma32(d, w, x) if isq else mfma32(d, x, w))
        return L
    SV = 120
    a.many(f"""s_lshl_b32 s36, s17, 2
              s_add_u32 s36, s36, s16
              s_lshl_b32 s36, s36, 7
              s_add_u32 s36, s36, {WS_ST1}
              s_add_u32 s43, s36, 8192
              v_lshlrev_b32 v115, 2, v96
              v_lshlrev_b32 v116, 26, v97
              v_lshl_add_u32 v116, v116, 4, v115
              v_lshlrev_b32 v119, 4, v97
              s_mov_b32 s42, {f32(LOG2E)}""")
    ein = [f"buffer_load_dword v157, v115, s[8:11], s43 offen sc1"]
    if isq:
        a.many(f"""s_mul_i32 s37, s18, 640
                  s_add_u32 s37, s37, {WS_CS1}""")
        for blk in range(5):
            ein.append(f"buffer_load_dword v{152+blk}, v116, s[8:11], s37 offen offset:{128*blk} sc1")
        ein.append(f"buffer_load_dword v{SV}, v115, s[8:11], s36 offen sc1")
    else:
        a.many(f"""v_cmp_le_u32 vcc, 16, v96
                  v_mov_b32 v117, {2560-320}
                  v_cndmask_b32 v117, 0, v117, vcc
                  v_add_u32 v117, v117, v116
                  s_mul_i32 s37, s18, 320
                  s_add_u32 s37, s37, {WS_CS1 + 2560 - 4*320}""")
        offs = [("v116", 0), ("v116", 128), ("v117", 256), ("v116", 2560 + 64), ("v116", 2560 + 192)]
        for blk in range(5):
            ein.append(f"buffer_load_dword v{152+blk}, {offs[blk][0]}, s[8:11], s37 offen offset:{offs[blk][1]} sc1")
        for q in range(4):
            ein.append(f"buffer_load_dwordx4 {vr(SV+q*4)}, v119, s[8:11], s36 offen offset:{32*q} sc1")
    CW, CX = 160, 180
    corr = []
    for blk in range(5):
        r = CW + 4 * blk; c = 152 + blk
        corr += [f"v_cvt_pk_bf16_f32 v{r}, v{c}, v{c}", f"v_lshlrev_b32 v{r+1}, 16, v{r}", f"v_sub_f32 v{r+1}, v{c}, v{r+1}",
                 f"v_cvt_pk_bf16_f32 v{r+1}, v{r+1}, 0", f"v_mov_b32 v{r+2}, 0", f"v_mov_b32 v{r+3}, 0"]
    corr += ["v_sub_f32 v157, 0, v157", f"v_cvt_pk_bf16_f32 v{CX+1}, v157, 0", f"v_lshlrev_b32 v{CX}, 16, v{CX+1}",
             f"v_sub_f32 v{CX}, v157, v{CX}", f"v_cvt_pk_bf16_f32 v{CX}, v157, v{CX}", f"v_mov_b32 v{CX+2}, 0", f"v_mov_b32 v{CX+3}, 0"]
    RW = 20992
    L0 = 2 * SLOT
    LA, GA = 240, 248
    pre = []
    if not isq:
        pre += f"""s_mul_i32 s44, s16, 5
              s_mul_i32 s45, s16, 20
              s_mov_b32 s46, 52429
              s_sub_u32 s47, s18, 4
              s_mul_i32 s48, s47, {13*1024}
              s_add_u32 s48, s48, {WS_KV}
              s_mul_i32 s49, s47, 320
              s_add_u32 s49, s49, {WS_Z}
              s_sub_u32 s49, s49, s48
              s_mul_i32 s50, s16, {RW}
              s_add_u32 s50, s50, {L0}""".split("\n")
        for n in range(7):
            pre += f"""v_add_u32 v184, {64*n}, v1
                  v_mul_lo_u32 v185, v184, s46
                  v_lshrrev_b32 v185, 22, v185
                  v_mul_u32_u24 v186, 80, v185
                  v_sub_u32 v184, v184, v186
                  v_add_u32 v185, s44, v185
                  v_lshrrev_b32 v186, 2, v184
                  v_add_u32 v186, s45, v186
                  v_lshrrev_b32 v187, 3, v185
                  v_min_u32 v187, 1, v187
                  v_lshlrev_b32 v187, 5, v187
                  v_sub_u32 v187, v186, v187
                  v_add_u32 v187, 16, v187
                  v_lshl_add_u32 v187, v185, 6, v187
                  v_and_b32 v184, 3, v184
                  v_lshl_add_u32 v187, v187, 2, v184
                  v_lshlrev_b32 v{LA+n}, 2, v187
                  v_lshrrev_b32 v187, 2, v185
                  v_lshrrev_b32 v188, 4, v186
                  v_lshl_add_u32 v187, v187, 1, v188
                  v_and_b32 v185, 3, v185
                  v_lshl_add_u32 v187, v187, 2, v185
                  v_and_b32 v186, 15, v186
                  v_lshl_add_u32 v187, v187, 4, v186
                  v_lshl_add_u32 v187, v187, 2, v184
                  v_lshlrev_b32 v{GA+n}, 2, v187""".split("\n")
        pre += f"""v_subrev_u32 v184, 16, v1
              v_add_u32 v184, s45, v184
              v_lshlrev_b32 v184, 2, v184
              v_add_u32 v185, 20480, v184
              v_add_u32 v184, s49, v184
              v_cmp_le_u32 s[40:41], 16, v1
              v_cndmask_b32 v{LA+6}, v{LA+6}, v185, s[40:41]
              v_cndmask_b32 v{GA+6}, v{GA+6}, v184, s[40:41]
              v_lshlrev_b32 v190, 10, v97
              v_lshl_add_u32 v190, v96, 4, v190
              v_add_u32 v190, s50, v190
              v_lshlrev_b32 v191, 4, v97
              v_add_u32 v191, s50, v191""".split("\n")
    else:
        pre += f"""v_bfe_u32 v190, v1, 4, 1
                  v_lshlrev_b32 v190, 10, v190
                  v_lshl_add_u32 v190, v97, 8, v190
                  v_and_b32 v191, 15, v1
                  v_lshl_add_u32 v190, v191, 4, v190
                  s_lshl_b32 s48, s17, 1
                  s_lshr_b32 s49, s16, 1
                  s_add_u32 s48, s48, s49
                  s_mul_i32 s48, s48, 20
                  s_mul_i32 s49, s18, 5
                  s_add_u32 s48, s48, s49
                  s_lshl_b32 s48, s48, 2
                  s_and_b32 s49, s16, 1
                  s_lshl_b32 s49, s49, 1
                  s_add_u32 s48, s48, s49
                  s_lshl_b32 s48, s48, 10
                  s_add_u32 s48, s48, {WS_PQ}""".split("\n")
    pre = [x.strip() for x in pre if x.strip()]
    if EARLY_D2:
        interleave(a, dmaA(), [])
    if not PRE_IN_LOOP:
        interleave(a, pre, [])
    if DRY_AFTER < 3:
        a.i("s_mov_b64 exec, 0")
        a.i(f"s_branch L_epi_{role}_{name}")
        a.label(f"L_dry_{role}_{name}")
        a.i("s_mov_b64 exec, -1")
        a.fence()
    if not EARLY_D2:
        interleave(a, dmaA(), [])
    stamp(a)
    a.raw("s_waitcnt vmcnt(13)")
    if START_FINE: stamp(a)
    a.i("s_barrier")
    a.i("s_mov_b32 s29, 0")
    a.i("s_mov_b32 s32, 0")
    interleave(a, reads(0), [])
    LP = f"L_lp_{role}_{name}"
    a.vm_done = a.vm_n = 0
    a.label(LP)
    for k in ((2, 3) if PRE_IN_LOOP else ()) + (5, 6, 9):
        a.i(f"s_cmp_eq_u32 s29, {k}")
        a.i(f"s_cbranch_scc1 {LP}_x{k}")
    a.label(f"{LP}_r")
    a.many(f"""s_add_u32 s32, s32, {SLOT}
              s_cmp_eq_u32 s32, {4*SLOT}
              s_cselect_b32 s32, 0, s32
              v_add_u32 v108, s32, v98
              v_add_u32 v113, s32, v102""")

    def cond(items, lim, tag):
        def f():
            a.i(f"s_cmp_ge_u32 s29, {lim}")
            a.i(f"s_cbranch_scc1 {LP}_{tag}")
            for x in items:
                a.i(x)
            a.label(f"{LP}_{tag}")
            a.vm_done = a.vm_n = 0
        return f
    dB = dmaB()
    interleave(a, mms(0), mix(reads(1), dB[:7]))
    interleave(a, mms(1), mix(reads(2), dB[7:]))
    interleave(a, mms(2), reads(3))
    a.raw("s_waitcnt vmcnt(9)")
    a.i("s_barrier")
    upd = [f"v_add_u32 v{104+j}, s32, v{98+j}" for j in range(4)] + ["v_mov_b32 v112, v113"]
    interleave(a, mms(3), mix(reads(0, True), dmaA()) + upd)
    a.i("s_add_u32 s29, s29, 1")
    a.i("s_cmp_lt_u32 s29, 10")
    a.i(f"s_cbranch_scc1 {LP}")
    a.i(f"s_branch {LP}_done")
    keep = (a.lg_n, a.lg_done, dict(a.pend), dict(a.wr), a.t)
    if PRE_IN_LOOP:
        h = len(pre) // 2
        for k, part in ((2, pre[:h]), (3, pre[h:])):
            a.label(f"{LP}_x{k}")
            a.wr = {}
            for x in part:
                a.i(x)
            a.nop(2)
            a.raw(f"s_branch {LP}_r")
    a.label(f"{LP}_x5")
    if START_FINE: a.raw(f"s_memrealtime s[{80+2*a.nstamp}:{81+2*a.nstamp}]"); a.nstamp += 1; a.raw("s_waitcnt lgkmcnt(0)")
    a.raw("buffer_load_dword v118, v114, s[60:63], 0 offen sc1")
    a.raw(f"s_branch {LP}_r")
    a.label(f"{LP}_x6")
    a.raw("s_waitcnt vmcnt(9)")
    spin(a, f"L_spin_{role}_{name}", 64, 118, 38, 60, 114)
    for x in ein:
        a.raw(x)
        for r in regs_of(x.split(",")[0]): a.ever.add(r)
    a.raw(f"s_branch {LP}_r")
    a.label(f"{LP}_x9")
    a.raw("s_waitcnt vmcnt(13)")
    a.pend = {}
    for x in corr:
        a.i(x)
    a.nop(2)
    a.raw(f"s_branch {LP}_r")
    a.label(f"{LP}_done")
    a.lg_n, a.lg_done, a.pend, a.wr, a.t = keep
    a.vm_done = a.vm_n = 0
    stamp(a)
    T = 208

    def cmf(blk):
        d = vr(ACC + blk * 16, 16)
        return mfma32(d, vr(CW + 4 * blk), vr(CX)) if isq else mfma32(d, vr(CX), vr(CW + 4 * blk))

    C1, CL, CE, CR = 184, 186, 188, 122

    def phi(blk, hf, dst_is_acc=True):
        R = range(8 * hf, 8 * hf + 8)
        R2 = range(8 * hf, 8 * hf + 8, 2)
        ac = lambda j: ACC + blk * 16 + j
        t = lambda j: T + (j % 8)
        t2 = lambda j: (ac(j) if dst_is_acc else T + 8 + (j % 8))
        rs = lambda j: (CR if isq else SV + j)
        L = []
        for j in R2: L.append(f"v_pk_fma_f32 {vr(t2(j), 2)}, {vr(ac(j), 2)}, {vr(rs(j), 2)}, {vr(C1, 2)}")
        for j in R2: L.append(f"v_pk_fma_f32 {vr(t(j), 2)}, {vr(t2(j), 2)}, {vr(CL, 2)}, {vr(CL, 2)} neg_lo:[0,0,1] neg_hi:[0,0,1]")
        for j in R: L.append(f"v_exp_f32 v{t(j)}, v{t(j)}")
        for j in R: L.append(f"v_med3_f32 v{t2(j)}, v{t(j)}, v{t2(j)}, 1.0")
        for j in R2: L.append(f"v_pk_add_f32 {vr(t2(j), 2)}, {vr(t2(j), 2)}, {vr(CE, 2)}")
        return L
    a.raw("s_waitcnt vmcnt(0)")
    a.wait_lg0()
    a.label(f"L_epi_{role}_{name}")
    a.guard = f"L_g{role}_{name}" if DRY_AFTER < 3 else None
    for r, val in ((C1, "1.0"), (CL, "s42"), (CE, f32(1e-6))):
        a.i(f"v_mov_b32 v{r}, {val}"); a.i(f"v_mov_b32 v{r+1}, {val}")
    if isq:
        a.many(f"""s_load_dwordx2 s[64:65], s[0:1], 16
                  s_load_dwordx2 s[66:67], s[0:1], 48
                  s_lshl_b32 s20, s17, 2
                  s_add_u32 s20, s20, s18
                  s_lshl_b32 s20, s20, 2
                  s_add_u32 s20, s20, s16
                  s_add_u32 s21, s20, 284
                  s_cmp_lt_u32 s20, 200
                  s_cselect_b32 s20, s20, s21
                  s_cselect_b32 s52, 20, 54
                  s_cselect_b32 s53, 8, 16
                  s_cselect_b32 s54, 16, 8
                  s_mov_b32 s21, {WS_WD}
                  s_cselect_b32 s55, {WS_WO}, s21
                  s_mov_b32 s21, {1728*1280}
                  s_cselect_b32 s70, {640*1280}, s21
                  s_mov_b32 s71, 0x20000""")
        a.wait_lg0(True)
        a.many(f"""s_cselect_b32 s68, s64, s66
                  s_cselect_b32 s69, s65, s67
                  s_and_b32 s69, s69, 0xffff
                  s_mul_hi_u32 s22, s20, {(1 << 32)//10 + 1}
                  s_mul_i32 s21, s22, 10
                  s_sub_u32 s21, s20, s21
                  s_mul_i32 s23, s22, {32*1280}
                  s_lshl_b32 s24, s21, 7
                  s_add_u32 s23, s23, s24
                  s_mul_i32 s21, s21, s52
                  s_lshl_b32 s21, s21, 2
                  s_add_u32 s21, s21, s22
                  s_lshl_b32 s21, s21, 10
                  s_add_u32 s55, s55, s21
                  s_lshl_b32 s52, s52, 10
                  s_lshl_b32 s54, s54, 7
                  s_lshl_b32 s24, s16, 12
                  s_add_u32 s24, s24, {4*SLOT}
                  s_mov_b32 m0, s24
                  v_lshrrev_b32 v4, 3, v1
                  v_and_b32 v5, 7, v1
                  v_bfe_u32 v6, v1, 4, 2
                  v_lshlrev_b32 v7, 1, v6
                  v_xor_b32 v5, v5, v7
                  v_mul_u32_u24 v4, 1280, v4
                  v_lshl_add_u32 v4, v5, 4, v4""")
        qtok = Tok()
        for i in range(4):
            a.i(f"buffer_load_dwordx4 v4, s[68:71], s23 offen offset:{1024*i} lds", qtok)
            a.i(f"s_add_u32 s23, s23, {8*1280 - 1024}")
        a.many("""v_lshrrev_b32 v5, 1, v6
                  v_mul_lo_u32 v5, v5, s53
                  v_and_b32 v7, 1, v6
                  v_lshl_add_u32 v5, v7, 2, v5
                  v_bfe_u32 v7, v1, 2, 2
                  v_add_u32 v5, v5, v7
                  v_bfe_u32 v7, v5, 1, 2
                  v_and_b32 v8, 3, v1
                  v_lshlrev_b32 v8, 3, v8
                  v_lshl_add_u32 v5, v5, 7, v8
                  v_add_u32 v5, s24, v5
                  v_lshlrev_b32 v13, 4, v1""")
        for nb in range(4):
            a.i(f"v_xor_b32 v8, {nb}, v7")
            a.i(f"v_lshl_add_u32 v{104+nb}, v8, 5, v5")
            a.i(f"v_add_u32 v{108+nb}, s54, v{104+nb}")
        a.i(f"v_mov_b32 v{CR}, v{SV}"); a.i(f"v_mov_b32 v{CR+1}, v{SV}")
        for blk in range(5):
            a.i(cmf(blk))
        for blk in range(5):
            for x in phi(blk, 0) + phi(blk, 1):
                a.i(x)
            pk = 224 + (blk % 2) * 8
            for q in range(4):
                dst = pk + (q & 1) * 4 + (q >> 1) * 2
                for jj in range(2):
                    a.i(f"v_cvt_pk_bf16_f32 v{dst+jj}, v{ACC+blk*16+4*q+2*jj}, v{ACC+blk*16+4*q+2*jj+1}")
            a.i(f"s_add_u32 s51, s48, {blk*4096}")
            a.i(f"buffer_store_dwordx4 {vr(pk)}, v190, s[8:11], s51 offen {st_flags}")
            a.i(f"buffer_store_dwordx4 {vr(pk+4)}, v190, s[8:11], s51 offen offset:512 {st_flags}")
            if blk == 2:
                a.wait_tok(qtok)
                for nb in range(4):
                    a.i(f"ds_read_b64_tr_b16 {vr(136+nb*4, 2)}, v{104+nb}")
                    a.i(f"ds_read_b64_tr_b16 {vr(138+nb*4, 2)}, v{108+nb}")
            if blk == 3:
                for nb in range(4):
                    a.i(f"buffer_store_dwordx4 {vr(136+nb*4)}, v13, s[8:11], s55 offen {st_flags}")
                    a.i("s_add_u32 s55, s55, s52")
        a.guard_end()
        (a.i(f"s_cbranch_execz L_dry_{role}_{name}") if DRY_AFTER < 3 else None)
        return
    smask(a, 40, 0x0000FFFF0000FFFF)
    P = {0: 136, 1: 144, 2: 192, 3: 200, 4: 224}
    ONES = 232
    for blk in (0, 2, 3, 1, 4):
        a.i(cmf(blk))
    for k in range(4):
        a.i(f"v_mov_b32 v{ONES+k}, 0x3f803f80")

    def fin(blk):
        L = []
        for hf in range(2):
            R = range(8 * hf, 8 * hf + 8)
            ac = lambda j: ACC + blk * 16 + j
            if blk < 2:
                L += phi(blk, hf)
            else:
                if blk == 2:
                    L += phi(blk, hf, False)
                for j in range(8 * hf, 8 * hf + 8, 2): L.append(f"v_pk_mul_f32 {vr(ac(j), 2)}, {vr(ac(j), 2)}, {vr(SV+j, 2)}")
                if blk == 2:
                    for j in R: L.append(f"v_cndmask_b32 v{ac(j)}, v{ac(j)}, v{T+8+(j % 8)}, s[40:41]")
            for jj in range(4):
                L.append(f"v_cvt_pk_bf16_f32 v{P[blk]+hf*4+jj}, v{ac(8*hf+2*jj)}, v{ac(8*hf+2*jj+1)}")
        return L
    def prod(kb, vb, d):
        return [mfma32(vr(d, 16), vr(P[kb] + u * 4), vr(P[vb] + u * 4) if vb is not None else vr(ONES), "0" if u == 0 else None) for u in range(2)]
    def wr(kb, vb, d):
        L = []
        for qd in range(2 if kb == 2 else 4):
            if vb is None:
                L.append(f"ds_write_b128 v191, {vr(d+4*qd)} offset:{20480 + (8*kb+2*qd)*16}")
            else:
                es = {(0, 2): 0, (0, 3): 32, (1, 3): 0, (1, 4): 32, (2, 4): 32}[(kb, vb)]
                L.append(f"ds_write_b128 v190, {vr(d+4*qd)} offset:{((8*kb+2*qd)*64 + es)*16}")
        return L
    A0, A1, A2, A3, A4 = [ACC + 16 * b for b in range(5)]
    interleave(a, fin(0) + fin(2) + fin(3), [])
    if EPI_FINE: stamp(a)
    interleave(a, prod(0, 2, A0) + prod(0, 3, A2) + prod(0, None, A3) + prod(2, None, 160), fin(1))
    a.i("s_barrier")
    interleave(a, prod(1, 3, A1) + prod(1, None, 100), fin(4) + wr(0, 2, A0) + wr(0, 3, A2))
    interleave(a, prod(1, 4, A4) + prod(2, 4, A0), wr(1, 3, A1))
    a.i("s_mov_b32 exec_lo, 1"); a.i("s_mov_b32 exec_hi, 1")
    interleave(a, wr(0, None, A3) + wr(2, None, 160) + wr(1, None, 100), [])
    a.i("s_mov_b64 exec, -1")
    interleave(a, wr(1, 4, A4) + wr(2, 4, A0), [])
    for n in range(7):
        a.i(f"v_add_u32 v{136+n}, {L0 + 2*RW}, v{LA+n}")
        a.i(f"v_add_u32 v{144+n}, {L0}, v{LA+n}")
    a.guard_end()
    (a.i(f"s_cbranch_execz L_dry_{role}_{name}") if DRY_AFTER < 3 else None)
    if EPI_FINE: stamp(a)
    a.wait_lg0()
    a.i("s_barrier")
    if EPI_FINE: stamp(a)
    for n in range(7):
        for w in range(4):
            a.i(f"ds_read_b32 v{32+4*n+w}, v{(144 if w < 2 else 136)+n} offset:{(w % 2)*RW}")
    for n in range(7):
        a.i(f"v_add_f32 v{32+4*n}, v{32+4*n}, v{33+4*n}")
        a.i(f"v_add_f32 v{34+4*n}, v{34+4*n}, v{35+4*n}")
        a.i(f"v_add_f32 v{32+4*n}, v{32+4*n}, v{34+4*n}")
        if n == 6:
            a.i("s_mov_b32 exec_hi, 15")
        a.i(f"buffer_atomic_add_f32 v{32+4*n}, v{GA+n}, s[8:11], s48 offen")
    a.i("s_mov_b64 exec, -1")
    if EPI_FINE: stamp(a)


def row_reduce16(a, regs):
    for sh in (8, 4, 2, 1):
        for r in regs:
            a.i(f"v_add_f32_dpp v{r}, v{r}, v{r} row_ror:{sh} row_mask:0xf bank_mask:0xf")


def p1_aux(a, name, st_flags):
    OOB = 0x7f000000
    a.many(f"""s_cmp_lt_u32 s17, 30
              s_cselect_b32 s48, s56, s12
              s_cselect_b32 s49, s57, s13
              s_cselect_b32 s50, s58, s14
              s_mov_b32 s51, 0x20000
              s_cselect_b32 s52, 30720, 64
              s_cselect_b32 s53, 30720, 64
              s_cselect_b32 s54, 3, 4
              s_cselect_b32 s55, 7, 15
              s_movk_i32 s22, 1280
              s_cselect_b32 s22, 3840, s22
              s_mul_i32 s23, s16, 614400
              s_lshl_b32 s24, s17, 7
              s_add_u32 s23, s23, s24
              s_sub_u32 s33, s17, 30
              s_lshl_b32 s33, s33, 2
              s_add_u32 s33, s33, s16
              s_mul_i32 s24, s33, 20480
              s_cmp_lt_u32 s17, 30
              s_cselect_b32 s23, s23, s24
              s_cselect_b32 s52, s52, 256
              s_cselect_b32 s53, s53, 4096
              v_lshrrev_b32 v8, s54, v1
              v_and_b32 v9, s55, v1
              v_mul_lo_u32 v10, v8, s22
              v_lshl_add_u32 v10, v9, 4, v10""")
    for i in range(20):
        a.i(f"buffer_load_dwordx4 {vr(32+4*i)}, v10, s[48:51], s23 offen")
        a.i(f"s_add_u32 s23, s23, {'s53' if i % 5 == 4 else 's52'}")
    a.many(f"""v_lshlrev_b32 v2, 4, v1
              v_mov_b32 v4, 0
              v_mov_b32 v5, 0
              v_mov_b32 v6, 0
              v_mov_b32 v7, 0
              s_lshl_b32 s20, s17, 11
              s_lshl_b32 s21, s16, 9
              s_add_u32 s20, s20, s21
              s_add_u32 s20, s20, {WS_KV}
              s_mov_b32 exec_hi, 0""")
    a.i("buffer_store_dwordx4 v[4:7], v2, s[8:11], s20 offen sc1")
    a.i("s_mov_b64 exec, -1")
    a.many("""s_lshl_b32 s18, s17, 2
              s_add_u32 s18, s18, s16
              s_mul_i32 s19, s16, 40960
              v_lshrrev_b32 v112, 3, v1
              v_and_b32 v113, 7, v1
              v_bfe_u32 v114, v1, 4, 2
              v_lshlrev_b32 v115, 1, v114
              v_xor_b32 v113, v113, v115
              v_xor_b32 v115, 4, v113
              v_mul_u32_u24 v11, 1280, v112
              v_lshl_add_u32 v11, v113, 4, v11
              v_mul_u32_u24 v12, 3456, v112
              v_lshl_add_u32 v13, v115, 4, v12
              v_lshl_add_u32 v12, v113, 4, v12""")
    tasks = [("gu", 0, 0), ("gu", 256, 8192), ("wd", 0, 16384), ("wd", 228, 20480), ("gu", 512, 24576)]
    toks = {}

    def decode(ti):
        kind, add, lo = tasks[ti]
        ncg = {"gu": 27, "wd": 10}[kind]
        stride = 3456 if kind == "gu" else 1280
        nk, base = {"gu": (40, WS_WGU), "wd": (54, WS_WD)}[kind]
        chk = {512: "s_cmp_lt_u32 s18, 28", 228: "s_cmp_ge_u32 s18, 28"}.get(add, "s_cmp_eq_u32 s18, s18")
        a.many(f"""s_add_u32 s24, s18, {add}
                  s_mul_hi_u32 s26, s24, {(1 << 32)//ncg + 1}
                  s_mul_i32 s25, s26, {ncg}
                  s_sub_u32 s25, s24, s25
                  {chk}
                  s_cselect_b32 s27, 0, {OOB}
                  s_mul_i32 s28, s26, {32*stride}
                  s_lshl_b32 s29, s25, 7
                  s_add_u32 s28, s28, s29
                  s_add_u32 s28, s28, s27
                  s_mul_i32 s29, s25, {4*nk*1024}
                  s_lshl_b32 s26, s26, {11 if kind == 'gu' else 10}
                  s_add_u32 s29, s29, s26
                  s_add_u32 s29, s29, s27
                  s_add_u32 s{36+ti}, s29, {base}""")

    def issue(ti):
        kind, add, lo = tasks[ti]
        decode(ti)
        stride = 3456 if kind == "gu" else 1280
        for img in range(2 if kind == "gu" else 1):
            sr = {"gu": (68, 72)[img], "wd": 44, "wo": 64}[kind]
            vo = {"gu": (12, 13)[img], "wd": 11, "wo": 11}[kind]
            for i in range(4):
                a.i(f"s_add_u32 s30, s19, {lo + img*4096 + i*1024}")
                a.i("s_mov_b32 m0, s30")
                a.i(f"s_add_u32 s31, s28, {8*i*stride}")
                tk = Tok(); toks[ti] = tk
                a.i(f"buffer_load_dwordx4 v{vo}, s[{sr}:{sr+3}], s31 offen lds", tk)
    for ti in range(NEARLY):
        issue(ti)
    for k in range(8):
        a.i(f"v_mov_b32 v{16+k}, 0")
    a.i("s_cmp_ge_u32 s17, 30")
    a.i(f"s_cbranch_scc1 L_aux_stats_{name}")
    st0 = (a.vm_n, a.vm_done, dict(a.pend))
    SCR = 36864
    a.many("""s_mov_b32 s22, 0x3f80
              s_mov_b32 s23, 0x3f800000""")
    for i in range(20):
        for d in range(4):
            a.i(f"v_dot2_f32_bf16 v{16+2*d}, v{32+4*i+d}, s22, v{16+2*d}")
            a.i(f"v_dot2_f32_bf16 v{17+2*d}, v{32+4*i+d}, s23, v{17+2*d}")
    a.nop(4)
    for k in range(8):
        a.i(f"v_add_f32_dpp v{16+k}, v{16+k}, v{16+k} row_ror:8 row_mask:0xf bank_mask:0xf")
    for sw in ("v_permlane16_swap_b32", "v_permlane32_swap_b32"):
        for k in range(8): a.i(f"v_mov_b32 v{24+k}, v{16+k}")
        for k in range(8): a.i(f"{sw} v{16+k}, v{24+k}")
        for k in range(8): a.i(f"v_add_f32 v{16+k}, v{16+k}, v{24+k}")
    a.many(f"""v_lshlrev_b32 v10, 5, v9
              s_lshl_b32 s20, s16, 8
              s_add_u32 s20, s20, {SCR}
              v_add_u32 v10, s20, v10
              ds_write_b128 v10, v[16:19]
              ds_write_b128 v10, v[20:23] offset:16
              v_lshlrev_b32 v10, 2, v1
              v_add_u32 v24, {SCR}, v10""")
    a.wait_lg0()
    a.i("s_barrier")
    for w in range(4):
        a.i(f"ds_read_b32 v{16+w}, v24 offset:{256*w}")
    a.many(f"""v_add_f32 v16, v16, v17
              v_add_f32 v18, v18, v19
              v_add_f32 v16, v16, v18
              s_lshl_b32 s20, s17, 8
              s_add_u32 s20, s20, {WS_CS1}
              s_cmp_eq_u32 s16, 0
              s_cselect_b32 s20, s20, {OOB}""")
    a.i("buffer_store_dword v16, v10, s[8:11], s20 offen sc1")
    a.i(f"s_branch L_aux_sig_{name}")
    a.label(f"L_aux_stats_{name}")
    a.vm_n, a.vm_done, a.pend = st0[0], st0[1], dict(st0[2])
    a.fence()
    a.i("s_mov_b32 s22, 0x3f803f80")
    for i in range(4):
        for d in range(20):
            r = 32 + 20 * i + d
            a.i(f"v_dot2_f32_bf16 v{16+2*i}, v{r}, s22, v{16+2*i}")
            a.i(f"v_dot2_f32_bf16 v{17+2*i}, v{r}, v{r}, v{17+2*i}")
    a.nop(4)
    row_reduce16(a, range(16, 24))
    for i in range(4):
        s_, q_ = 16 + 2 * i, 17 + 2 * i
        a.many(f"""v_mul_f32 v{q_}, {f32(1/640)}, v{q_}
                  v_mul_f32 v24, {f32(1/640)}, v{s_}
                  v_fma_f32 v{s_}, -v24, v24, v{q_}
                  v_max_f32 v{s_}, 0, v{s_}
                  v_add_f32 v{s_}, {f32(1e-5)}, v{s_}
                  v_rsq_f32 v{s_}, v{s_}
                  v_mov_b32 v{q_}, v24""")
    a.many(f"""v_lshlrev_b32 v10, 2, v8
              s_lshl_b32 s20, s33, 6
              s_add_u32 s20, s20, {WS_ST1}
              s_cmp_lt_u32 s17, 62
              s_cselect_b32 s20, s20, {OOB}
              s_add_u32 s21, s20, 8192
              s_mov_b32 exec_lo, 0x00010001
              s_mov_b32 exec_hi, 0x00010001""")
    for i in range(4):
        a.i(f"buffer_store_dword v{16+2*i}, v10, s[8:11], s20 offen offset:{16*i} sc1")
        a.i(f"buffer_store_dword v{17+2*i}, v10, s[8:11], s21 offen offset:{16*i} sc1")
    a.i("s_mov_b64 exec, -1")
    a.label(f"L_aux_sig_{name}")
    a.wait_all()
    a.fence()
    stamp(a)
    a.i("s_barrier")
    a.many("""v_mov_b32 v4, 1
              v_mov_b32 v5, 0
              s_cmp_eq_u32 s16, 0""")
    a.i(f"s_cselect_b32 s20, 0, {OOB}")
    a.i("s_mov_b64 exec, 1")
    a.i("buffer_atomic_add v4, v5, s[60:63], s20 offen sc1")
    a.i("s_mov_b64 exec, -1")
    for ti in range(NEARLY, len(tasks)):
        issue(ti)
    a.many(f"""s_lshl_b32 s33, s18, 2
              v_lshrrev_b32 v14, 4, v1
              v_and_b32 v37, 15, v1
              v_mul_u32_u24 v38, 1280, v14
              v_lshl_add_u32 v38, v37, 4, v38
              s_mul_i32 s32, s33, 1280""")
    for m in range(5):
        a.i(f"buffer_load_dwordx4 {vr(128+4*m)}, v38, s[64:67], s32 offen offset:{256*m}")
    a.many("""v_bfe_u32 v15, v1, 2, 2
              v_and_b32 v16, 3, v1
              v_lshlrev_b32 v16, 3, v16
              v_add_u32 v16, s19, v16
              v_lshl_add_u32 v17, v14, 2, v15
              v_lshrrev_b32 v18, 1, v14
              v_and_b32 v19, 1, v14
              v_lshl_add_u32 v20, v19, 2, v15
              v_lshl_add_u32 v20, v18, 4, v20
              v_lshl_add_u32 v21, v18, 2, v15""")
    for k, (rowreg, base) in ((1, (20, 28)), (2, (21, 32))):
        a.i(f"v_bfe_u32 v22, v{rowreg}, 1, 2")
        if k == 2:
            a.i("v_lshlrev_b32 v23, 1, v19")
            a.i("v_xor_b32 v22, v22, v23")
        a.i(f"v_lshl_add_u32 v23, v{rowreg}, 7, v16")
        if k == 2:
            a.i("v_lshl_add_u32 v23, v19, 12, v23")
        for nb in range(4):
            a.i(f"v_xor_b32 v36, {nb}, v22")
            a.i(f"v_lshl_add_u32 v{base+nb}, v36, 5, v23")
    RB = [48, 80, 192, 224]
    for ti, (kind, add, lo) in enumerate(tasks):
        R0 = RB[ti % 4]
        a.wait_tok(toks[ti])
        if kind == "gu":
            for nb in range(4):
                for kbl in range(2):
                    r = R0 + (nb * 2 + kbl) * 4
                    for u in range(2):
                        a.i(f"ds_read_b64_tr_b16 {vr(r+2*u, 2)}, v{32+nb} offset:{lo + (16*kbl+8*u)*128}")
            for nb in range(4):
                a.i(f"s_add_u32 s29, s{36+ti}, {nb*40960}")
                for kbl in range(2):
                    a.i(f"buffer_store_dwordx4 {vr(R0+(nb*2+kbl)*4)}, v2, s[8:11], s29 offen offset:{kbl*1024} {st_flags}")
        else:
            nks, ar, us = (54, 28, 8) if kind == "wd" else (20, 24, 16)
            for nb in range(4):
                for u in range(2):
                    a.i(f"ds_read_b64_tr_b16 {vr(R0+nb*4+2*u, 2)}, v{ar+nb} offset:{lo + us*u*128}")
            for nb in range(4):
                a.i(f"s_add_u32 s29, s{36+ti}, {nb*nks*1024}")
                a.i(f"buffer_store_dwordx4 {vr(R0+nb*4)}, v2, s[8:11], s29 offen {st_flags}")
    a.i("s_mov_b32 s22, 0x3f803f80")
    a.i("v_mov_b32 v40, 0"); a.i("v_mov_b32 v41, 0")
    for d in range(20):
        a.i(f"v_dot2_f32_bf16 v{40 + d % 2}, v{128+d}, s22, v{40 + d % 2}")
    a.nop(4)
    a.i("v_add_f32 v40, v40, v41")
    row_reduce16(a, [40])
    for i in range(1):
        a.many(f"""v_mul_f32 v{40+i}, {f32(1/640)}, v{40+i}
                  v_cvt_pk_bf16_f32 v{40+i}, v{40+i}, v{40+i}
                  v_add_u32 v44, s33, v14
                  v_add_u32 v44, {4*i}, v44
                  v_lshrrev_b32 v45, 5, v44
                  v_lshlrev_b32 v45, 10, v45
                  v_bfe_u32 v46, v44, 2, 2
                  v_lshl_add_u32 v45, v46, 8, v45
                  v_lshl_add_u32 v45, v37, 4, v45
                  v_bfe_u32 v46, v44, 4, 1
                  v_lshl_add_u32 v45, v46, 3, v45
                  v_and_b32 v46, 3, v44
                  v_lshl_add_u32 v45, v46, 1, v45
                  v_cmp_gt_u32 vcc, 640, v44
                  v_mov_b32 v46, {OOB}
                  v_cndmask_b32 v45, v46, v45, vcc
                  s_mov_b32 s20, {WS_RM}""")
        a.i(f"buffer_store_short v{40+i}, v45, s[8:11], s20 offen {st_flags}")


def gen_p1(kidx, name="p1_kernel", st_flags="", rot=True, dbg=""):
    a = Asm()
    prologue(a, name, 256, [])
    a.i("s_load_dwordx4 s[4:7], s[0:1], 0")
    a.i("s_load_dwordx4 s[24:27], s[0:1], 64")
    a.many("""s_and_b32 s19, s2, 7
              s_lshr_b32 s20, s2, 3
              s_mov_b32 s11, 0x20000
              s_mov_b32 s15, 0x20000
              s_mov_b32 s59, 0x20000
              s_mov_b32 s63, 0x20000""")
    a.i(f"s_mov_b32 s10, {WS_BYTES}"); a.i(f"s_mov_b32 s14, {X_BYTES}"); a.i(f"s_mov_b32 s58, {WQKV_BYTES}"); a.i("s_movk_i32 s62, 256")

    def ptrs():
        a.wait_lg0(True)
        for d, p in ((12, 4), (56, 6), (60, 24), (8, 26)):
            a.i(f"s_mov_b32 s{d}, s{p}"); a.i(f"s_and_b32 s{d+1}, s{p+1}, 0xffff")
    a.ptrs = ptrs
    a.i("s_cmp_lt_u32 s20, 8")
    a.i(f"s_cbranch_scc0 L_gemm_{name}")
    a.i("s_load_dwordx2 s[28:29], s[0:1], 16")
    a.i("s_load_dwordx4 s[32:35], s[0:1], 32")
    a.i("s_load_dwordx2 s[30:31], s[0:1], 48")
    ptrs()
    srd(a, 64, 28, 640 * 1280)
    srd(a, 68, 32, 640 * 3456)
    srd(a, 72, 34, 640 * 3456)
    srd(a, 44, 30, 1728 * 1280)
    a.many("""s_lshl_b32 s17, s19, 3
              s_add_u32 s17, s17, s20""")
    ns = getattr(a, "nstamp", 0)
    p1_aux(a, name, st_flags)
    a.i(f"s_branch L_fin_{name}")
    a.label(f"L_gemm_{name}")
    a.reset_state(); a.fence()
    a.nstamp = ns
    a.many("""s_sub_u32 s20, s20, 8
              s_mul_i32 s21, s20, 43
              s_lshr_b32 s21, s21, 8
              s_mul_i32 s22, s21, 6
              s_sub_u32 s22, s20, s22
              s_lshr_b32 s17, s19, 1
              s_lshl_b32 s17, s17, 2
              s_add_u32 s17, s17, s21
              s_and_b32 s23, s19, 1
              s_nop 0""")
    a.i("s_cmp_lt_u32 s22, 2")
    a.i(f"s_cbranch_scc0 L_kv_{name}")
    a.many("""s_lshl_b32 s18, s23, 1
              s_add_u32 s18, s18, s22""")
    p1_gemm(a, "q", name, st_flags, rot, dbg)
    a.i(f"s_branch L_fin_{name}")
    a.label(f"L_kv_{name}")
    a.reset_state(); a.fence()
    a.nstamp = ns
    a.many("""s_lshl_b32 s18, s23, 2
              s_add_u32 s18, s18, s22
              s_add_u32 s18, s18, 2""")
    p1_gemm(a, "kv", name, st_flags, rot, dbg)
    a.label(f"L_fin_{name}")
    if gen.STAMPS:
        a.raw("s_waitcnt vmcnt(0) lgkmcnt(0)")
        a.reset_state(); a.fence()
    a.nstamp = 6
    epilogue(a, name, kidx, 256)
    print(name, "instrs", a.ninstr, "nops", a.nops)
    return name, kernel_wrap(name, a.text(), 256, 64), 256, 256, 163840
```

```python
import gen
from gen import *
from asmgen import regs_of
from genb import mix

X_BYTES = 2048 * 1280
WQKV_BYTES = 640 * 3840
SLOT = 36864
POLL = 21
DRY_AFTER = 9
EARLY_D2 = True
PRE_IN_LOOP = True
START_FINE = False
EPI_FINE = False
NEARLY = 0
SPIN_SLEEP = 16


def spin(a, lbl, target, vtmp, stmp, srd_dbg, voff):
    a.raw(f"v_readfirstlane_b32 s{stmp}, v{vtmp}")
    a.raw("s_nop 1")
    a.raw(f"s_cmp_ge_u32 s{stmp}, {target}")
    a.raw(f"s_cbranch_scc1 {lbl}_ok")
    a.raw(f"s_mov_b32 s{stmp+1}, 0")
    a.label(f"{lbl}_loop")
    a.raw(f"s_sleep {SPIN_SLEEP}")
    a.raw(f"buffer_load_dword v{vtmp}, v{voff}, s[{srd_dbg}:{srd_dbg+3}], 0 offen sc1")
    a.raw("s_waitcnt vmcnt(0)")
    a.raw(f"v_readfirstlane_b32 s{stmp}, v{vtmp}")
    a.raw(f"s_add_u32 s{stmp+1}, s{stmp+1}, 1")
    a.raw(f"s_cmp_ge_u32 s{stmp+1}, 0x40000")
    a.raw(f"s_cbranch_scc1 {lbl}_ok")
    a.raw(f"s_cmp_lt_u32 s{stmp}, {target}")
    a.raw(f"s_cbranch_scc1 {lbl}_loop")
    a.label(f"{lbl}_ok")
    a.raw("s_nop 1")


def p1_gemm(a, role, name, st_flags, rot, dbg=""):
    isq = role == "q"
    ACC = 16
    XF, WFR = 0, 8
    a.many("""v_lshrrev_b32 v96, 3, v1
              v_and_b32 v97, 7, v1
              v_lshrrev_b32 v98, 4, v1
              s_movk_i32 s20, 1280""")
    for i in range(4):
        a.i(f"v_add_u32 v99, {8*i}, v96")
        a.i("v_mul_lo_u32 v99, v99, s20")
        a.i(f"v_add_u32 v100, {4*i}, v98")
        a.i("v_and_b32 v100, 7, v100")
        a.i("v_xor_b32 v100, v100, v97")
        a.i("v_lshl_add_u32 v99, v100, 4, v99")
        a.i(f"v_subrev_u32 v{4+i}, {1024*i}, v99")
    seg = 160 if isq else 1280
    a.i("s_mov_b32 s20, 52429"); a.i("s_movk_i32 s21, 3840")
    for i in range(5):
        a.i(f"v_add_u32 v99, {64*i}, v1")
        a.i("v_mul_lo_u32 v100, v99, s20")
        a.i("v_lshrrev_b32 v100, 20, v100")
        a.i("v_mul_u32_u24 v101, 20, v100")
        a.i("v_sub_u32 v99, v99, v101")
        a.i("v_mul_lo_u32 v100, v100, s21")
        a.i("v_lshl_add_u32 v100, v99, 4, v100")
        a.i("v_cmp_le_u32 vcc, 10, v99")
        a.i(f"v_mov_b32 v101, {seg-160}")
        a.i("v_cndmask_b32 v101, 0, v101, vcc")
        a.i("v_add_u32 v100, v100, v101")
        a.i(f"v_subrev_u32 v{8+i}, {1024*i if i < 4 else 0}, v100")
    a.ptrs()
    a.many("""s_lshl_b32 s26, s17, 2
              s_add_u32 s26, s26, s16
              s_mul_i32 s26, s26, 40960
              s_mul_i32 s27, s16, 61440""")
    if isq:
        a.i("s_mul_i32 s20, s18, 320")
    else:
        a.i("s_mul_i32 s20, s18, 160"); a.i("s_add_u32 s20, s20, 640")
    a.many("""s_add_u32 s27, s27, s20
              s_mul_i32 s30, s16, 5120
              s_lshl_b32 s31, s16, 12
              s_add_u32 s31, s31, 20480
              s_mov_b32 s33, 0
              s_mov_b32 s29, 0
              s_mov_b32 s28, 0x7f000000""")

    def dmaA():
        L = ["s_add_u32 s34, s30, s33", "s_mov_b32 m0, s34", "s_add_u32 s34, s34, 4096"]
        L += [f"buffer_load_dwordx4 v{8+i}, s[56:59], s27 offen offset:{1024*i} lds" for i in range(4)]
        return L

    def dmaB():
        L = ["s_mov_b32 m0, s34", "s_add_u32 s34, s31, s33", "buffer_load_dwordx4 v12, s[56:59], s27 offen lds", "s_mov_b32 m0, s34",
             f"s_add_u32 s27, s27, {64*3840}"]
        L += [f"buffer_load_dwordx4 v{4+i}, s[12:15], s26 offen offset:{1024*i} lds" for i in range(4)]
        L += ["s_cmp_eq_u32 s29, 7", "s_cselect_b32 s35, s28, 128", "s_add_u32 s26, s26, s35", f"s_add_u32 s33, s33, {SLOT}", f"s_cmp_eq_u32 s33, {4*SLOT}", "s_cselect_b32 s33, 0, s33"]
        return L
    if START_FINE: stamp(a)
    for st in range(2):
        interleave(a, dmaA() + dmaB(), [])
    if START_FINE: stamp(a)
    a.many("""v_and_b32 v96, 31, v1
              v_lshrrev_b32 v97, 5, v1
              v_bfe_u32 v103, v1, 1, 3
              v_lshlrev_b32 v102, 7, v96
              s_lshl_b32 s20, s16, 12
              v_add_u32 v102, s20, v102""")
    for j in range(4):
        a.i(f"v_add_u32 v104, {2*j}, v97")
        a.i("v_xor_b32 v104, v104, v103")
        a.i(f"v_lshl_add_u32 v{98+j}, v104, 4, v102")
    a.many(f"""v_bfe_u32 v103, v1, 2, 2
              v_lshl_add_u32 v103, v97, 3, v103
              v_mul_u32_u24 v103, 320, v103
              v_bfe_u32 v104, v1, 4, 1
              v_lshl_add_u32 v103, v104, 5, v103
              v_and_b32 v104, 3, v1
              v_lshl_add_u32 v102, v104, 3, v103
              v_mov_b32 v114, 0""")
    for j in range(4):
        a.i(f"v_mov_b32 v{104+j}, v{98+j}")
    a.i("v_mov_b32 v112, v102")
    for r in list(range(ACC, ACC + 80)) + [190, 191] + ([] if isq else list(range(240, 256))):
        a.i(f"v_mov_b32 v{r}, 0")

    def reads(j, nxt=False):
        L = [f"ds_read_b128 {vr(XF+(j % 2)*4, 4, 'a')}, v{108 if nxt else 104+j} offset:20480"]
        for blk in range(5):
            for u in range(2):
                L.append(f"ds_read_b64_tr_b16 {vr(WFR+(j % 2)*20+blk*4+u*2, 2, 'a')}, v{113 if nxt else 112} offset:{(16*j+4*u)*320+blk*64}")
        return L

    def mms(j):
        L = []
        for blk in range(5):
            d = vr(ACC + blk * 16, 16)
            w = vr(WFR + (j % 2) * 20 + blk * 4, 4, 'a'); x = vr(XF + (j % 2) * 4, 4, 'a')
            L.append(mfma32(d, w, x) if isq else mfma32(d, x, w))
        return L
    SV = 120
    a.many(f"""s_lshl_b32 s36, s17, 2
              s_add_u32 s36, s36, s16
              s_lshl_b32 s36, s36, 7
              s_add_u32 s36, s36, {WS_ST1}
              s_add_u32 s43, s36, 8192
              v_lshlrev_b32 v115, 2, v96
              v_lshlrev_b32 v116, 26, v97
              v_lshl_add_u32 v116, v116, 4, v115
              v_lshlrev_b32 v119, 4, v97
              s_mov_b32 s42, {f32(LOG2E)}""")
    ein = [f"buffer_load_dword v157, v115, s[8:11], s43 offen sc1"]
    if isq:
        a.many(f"""s_mul_i32 s37, s18, 640
                  s_add_u32 s37, s37, {WS_CS1}""")
        for blk in range(5):
            ein.append(f"buffer_load_dword v{152+blk}, v116, s[8:11], s37 offen offset:{128*blk} sc1")
        ein.append(f"buffer_load_dword v{SV}, v115, s[8:11], s36 offen sc1")
    else:
        a.many(f"""v_cmp_le_u32 vcc, 16, v96
                  v_mov_b32 v117, {2560-320}
                  v_cndmask_b32 v117, 0, v117, vcc
                  v_add_u32 v117, v117, v116
                  s_mul_i32 s37, s18, 320
                  s_add_u32 s37, s37, {WS_CS1 + 2560 - 4*320}""")
        offs = [("v116", 0), ("v116", 128), ("v117", 256), ("v116", 2560 + 64), ("v116", 2560 + 192)]
        for blk in range(5):
            ein.append(f"buffer_load_dword v{152+blk}, {offs[blk][0]}, s[8:11], s37 offen offset:{offs[blk][1]} sc1")
        for q in range(4):
            ein.append(f"buffer_load_dwordx4 {vr(SV+q*4)}, v119, s[8:11], s36 offen offset:{32*q} sc1")
    CW, CX = 160, 180
    corr = []
    for blk in range(5):
        r = CW + 4 * blk; c = 152 + blk
        corr += [f"v_cvt_pk_bf16_f32 v{r}, v{c}, v{c}", f"v_lshlrev_b32 v{r+1}, 16, v{r}", f"v_sub_f32 v{r+1}, v{c}, v{r+1}",
                 f"v_cvt_pk_bf16_f32 v{r+1}, v{r+1}, 0", f"v_mov_b32 v{r+2}, 0", f"v_mov_b32 v{r+3}, 0"]
    corr += ["v_sub_f32 v157, 0, v157", f"v_cvt_pk_bf16_f32 v{CX+1}, v157, 0", f"v_lshlrev_b32 v{CX}, 16, v{CX+1}",
             f"v_sub_f32 v{CX}, v157, v{CX}", f"v_cvt_pk_bf16_f32 v{CX}, v157, v{CX}", f"v_mov_b32 v{CX+2}, 0", f"v_mov_b32 v{CX+3}, 0"]
    RW = 20992
    L0 = 2 * SLOT
    LA, GA = 240, 248
    pre = []
    if not isq:
        pre += f"""s_mul_i32 s44, s16, 5
              s_mul_i32 s45, s16, 20
              s_mov_b32 s46, 52429
              s_sub_u32 s47, s18, 4
              s_mul_i32 s48, s47, {13*1024}
              s_add_u32 s48, s48, {WS_KV}
              s_mul_i32 s49, s47, 320
              s_add_u32 s49, s49, {WS_Z}
              s_sub_u32 s49, s49, s48
              s_mul_i32 s50, s16, {RW}
              s_add_u32 s50, s50, {L0}""".split("\n")
        for n in range(7):
            pre += f"""v_add_u32 v184, {64*n}, v1
                  v_mul_lo_u32 v185, v184, s46
                  v_lshrrev_b32 v185, 22, v185
                  v_mul_u32_u24 v186, 80, v185
                  v_sub_u32 v184, v184, v186
                  v_add_u32 v185, s44, v185
                  v_lshrrev_b32 v186, 2, v184
                  v_add_u32 v186, s45, v186
                  v_lshrrev_b32 v187, 3, v185
                  v_min_u32 v187, 1, v187
                  v_lshlrev_b32 v187, 5, v187
                  v_sub_u32 v187, v186, v187
                  v_add_u32 v187, 16, v187
                  v_lshl_add_u32 v187, v185, 6, v187
                  v_and_b32 v184, 3, v184
                  v_lshl_add_u32 v187, v187, 2, v184
                  v_lshlrev_b32 v{LA+n}, 2, v187
                  v_lshrrev_b32 v187, 2, v185
                  v_lshrrev_b32 v188, 4, v186
                  v_lshl_add_u32 v187, v187, 1, v188
                  v_and_b32 v185, 3, v185
                  v_lshl_add_u32 v187, v187, 2, v185
                  v_and_b32 v186, 15, v186
                  v_lshl_add_u32 v187, v187, 4, v186
                  v_lshl_add_u32 v187, v187, 2, v184
                  v_lshlrev_b32 v{GA+n}, 2, v187""".split("\n")
        pre += f"""v_subrev_u32 v184, 16, v1
              v_add_u32 v184, s45, v184
              v_lshlrev_b32 v184, 2, v184
              v_add_u32 v185, 20480, v184
              v_add_u32 v184, s49, v184
              v_cmp_le_u32 s[40:41], 16, v1
              v_cndmask_b32 v{LA+6}, v{LA+6}, v185, s[40:41]
              v_cndmask_b32 v{GA+6}, v{GA+6}, v184, s[40:41]
              v_lshlrev_b32 v190, 10, v97
              v_lshl_add_u32 v190, v96, 4, v190
              v_add_u32 v190, s50, v190
              v_lshlrev_b32 v191, 4, v97
              v_add_u32 v191, s50, v191""".split("\n")
    else:
        pre += f"""v_bfe_u32 v190, v1, 4, 1
                  v_lshlrev_b32 v190, 10, v190
                  v_lshl_add_u32 v190, v97, 8, v190
                  v_and_b32 v191, 15, v1
                  v_lshl_add_u32 v190, v191, 4, v190
                  s_lshl_b32 s48, s17, 1
                  s_lshr_b32 s49, s16, 1
                  s_add_u32 s48, s48, s49
                  s_mul_i32 s48, s48, 20
                  s_mul_i32 s49, s18, 5
                  s_add_u32 s48, s48, s49
                  s_lshl_b32 s48, s48, 2
                  s_and_b32 s49, s16, 1
                  s_lshl_b32 s49, s49, 1
                  s_add_u32 s48, s48, s49
                  s_lshl_b32 s48, s48, 10
                  s_add_u32 s48, s48, {WS_PQ}""".split("\n")
    pre = [x.strip() for x in pre if x.strip()]
    if EARLY_D2:
        interleave(a, dmaA(), [])
    if not PRE_IN_LOOP:
        interleave(a, pre, [])
    if DRY_AFTER < 3:
        a.i("s_mov_b64 exec, 0")
        a.i(f"s_branch L_epi_{role}_{name}")
        a.label(f"L_dry_{role}_{name}")
        a.i("s_mov_b64 exec, -1")
        a.fence()
    if not EARLY_D2:
        interleave(a, dmaA(), [])
    stamp(a)
    a.raw("s_waitcnt vmcnt(13)")
    if START_FINE: stamp(a)
    a.i("s_barrier")
    a.i("s_mov_b32 s29, 0")
    a.i("s_mov_b32 s32, 0")
    interleave(a, reads(0), [])
    LP = f"L_lp_{role}_{name}"
    a.vm_done = a.vm_n = 0
    a.label(LP)
    for k in ((2, 3) if PRE_IN_LOOP else ()) + (5, 6, 9):
        a.i(f"s_cmp_eq_u32 s29, {k}")
        a.i(f"s_cbranch_scc1 {LP}_x{k}")
    a.label(f"{LP}_r")
    a.many(f"""s_add_u32 s32, s32, {SLOT}
              s_cmp_eq_u32 s32, {4*SLOT}
              s_cselect_b32 s32, 0, s32
              v_add_u32 v108, s32, v98
              v_add_u32 v113, s32, v102""")

    def cond(items, lim, tag):
        def f():
            a.i(f"s_cmp_ge_u32 s29, {lim}")
            a.i(f"s_cbranch_scc1 {LP}_{tag}")
            for x in items:
                a.i(x)
            a.label(f"{LP}_{tag}")
            a.vm_done = a.vm_n = 0
        return f
    dB = dmaB()
    interleave(a, mms(0), mix(reads(1), dB[:7]))
    interleave(a, mms(1), mix(reads(2), dB[7:]))
    interleave(a, mms(2), reads(3))
    a.raw("s_waitcnt vmcnt(9)")
    a.i("s_barrier")
    upd = [f"v_add_u32 v{104+j}, s32, v{98+j}" for j in range(4)] + ["v_mov_b32 v112, v113"]
    interleave(a, mms(3), mix(reads(0, True), dmaA()) + upd)
    a.i("s_add_u32 s29, s29, 1")
    a.i("s_cmp_lt_u32 s29, 10")
    a.i(f"s_cbranch_scc1 {LP}")
    a.i(f"s_branch {LP}_done")
    keep = (a.lg_n, a.lg_done, dict(a.pend), dict(a.wr), a.t)
    if PRE_IN_LOOP:
        h = len(pre) // 2
        for k, part in ((2, pre[:h]), (3, pre[h:])):
            a.label(f"{LP}_x{k}")
            a.wr = {}
            for x in part:
                a.i(x)
            a.nop(2)
            a.raw(f"s_branch {LP}_r")
    a.label(f"{LP}_x5")
    if START_FINE: a.raw(f"s_memrealtime s[{80+2*a.nstamp}:{81+2*a.nstamp}]"); a.nstamp += 1; a.raw("s_waitcnt lgkmcnt(0)")
    a.raw("buffer_load_dword v118, v114, s[60:63], 0 offen sc1")
    a.raw(f"s_branch {LP}_r")
    a.label(f"{LP}_x6")
    a.raw("s_waitcnt vmcnt(9)")
    spin(a, f"L_spin_{role}_{name}", 64, 118, 38, 60, 114)
    for x in ein:
        a.raw(x)
        for r in regs_of(x.split(",")[0]): a.ever.add(r)
    a.raw(f"s_branch {LP}_r")
    a.label(f"{LP}_x9")
    a.raw("s_waitcnt vmcnt(13)")
    a.pend = {}
    for x in corr:
        a.i(x)
    a.nop(2)
    a.raw(f"s_branch {LP}_r")
    a.label(f"{LP}_done")
    a.lg_n, a.lg_done, a.pend, a.wr, a.t = keep
    a.vm_done = a.vm_n = 0
    stamp(a)
    T = 208

    def cmf(blk):
        d = vr(ACC + blk * 16, 16)
        return mfma32(d, vr(CW + 4 * blk), vr(CX)) if isq else mfma32(d, vr(CX), vr(CW + 4 * blk))

    C1, CL, CE, CR = 184, 186, 188, 122

    def phi(blk, hf, dst_is_acc=True):
        R = range(8 * hf, 8 * hf + 8)
        R2 = range(8 * hf, 8 * hf + 8, 2)
        ac = lambda j: ACC + blk * 16 + j
        t = lambda j: T + (j % 8)
        t2 = lambda j: (ac(j) if dst_is_acc else T + 8 + (j % 8))
        rs = lambda j: (CR if isq else SV + j)
        L = []
        for j in R2: L.append(f"v_pk_fma_f32 {vr(t2(j), 2)}, {vr(ac(j), 2)}, {vr(rs(j), 2)}, {vr(C1, 2)}")
        for j in R2: L.append(f"v_pk_fma_f32 {vr(t(j), 2)}, {vr(t2(j), 2)}, {vr(CL, 2)}, {vr(CL, 2)} neg_lo:[0,0,1] neg_hi:[0,0,1]")
        for j in R: L.append(f"v_exp_f32 v{t(j)}, v{t(j)}")
        for j in R: L.append(f"v_med3_f32 v{t2(j)}, v{t(j)}, v{t2(j)}, 1.0")
        for j in R2: L.append(f"v_pk_add_f32 {vr(t2(j), 2)}, {vr(t2(j), 2)}, {vr(CE, 2)}")
        return L
    a.raw("s_waitcnt vmcnt(0)")
    a.wait_lg0()
    a.label(f"L_epi_{role}_{name}")
    a.guard = f"L_g{role}_{name}" if DRY_AFTER < 3 else None
    for r, val in ((C1, "1.0"), (CL, "s42"), (CE, f32(1e-6))):
        a.i(f"v_mov_b32 v{r}, {val}"); a.i(f"v_mov_b32 v{r+1}, {val}")
    if isq:
        a.many(f"""s_load_dwordx2 s[64:65], s[0:1], 16
                  s_load_dwordx2 s[66:67], s[0:1], 48
                  s_lshl_b32 s20, s17, 2
                  s_add_u32 s20, s20, s18
                  s_lshl_b32 s20, s20, 2
                  s_add_u32 s20, s20, s16
                  s_add_u32 s21, s20, 284
                  s_cmp_lt_u32 s20, 200
                  s_cselect_b32 s20, s20, s21
                  s_cselect_b32 s52, 20, 54
                  s_cselect_b32 s53, 8, 16
                  s_cselect_b32 s54, 16, 8
                  s_mov_b32 s21, {WS_WD}
                  s_cselect_b32 s55, {WS_WO}, s21
                  s_mov_b32 s21, {1728*1280}
                  s_cselect_b32 s70, {640*1280}, s21
                  s_mov_b32 s71, 0x20000""")
        a.wait_lg0(True)
        a.many(f"""s_cselect_b32 s68, s64, s66
                  s_cselect_b32 s69, s65, s67
                  s_and_b32 s69, s69, 0xffff
                  s_mul_hi_u32 s22, s20, {(1 << 32)//10 + 1}
                  s_mul_i32 s21, s22, 10
                  s_sub_u32 s21, s20, s21
                  s_mul_i32 s23, s22, {32*1280}
                  s_lshl_b32 s24, s21, 7
                  s_add_u32 s23, s23, s24
                  s_mul_i32 s21, s21, s52
                  s_lshl_b32 s21, s21, 2
                  s_add_u32 s21, s21, s22
                  s_lshl_b32 s21, s21, 10
                  s_add_u32 s55, s55, s21
                  s_lshl_b32 s52, s52, 10
                  s_lshl_b32 s54, s54, 7
                  s_lshl_b32 s24, s16, 12
                  s_add_u32 s24, s24, {4*SLOT}
                  s_mov_b32 m0, s24
                  v_lshrrev_b32 v4, 3, v1
                  v_and_b32 v5, 7, v1
                  v_bfe_u32 v6, v1, 4, 2
                  v_lshlrev_b32 v7, 1, v6
                  v_xor_b32 v5, v5, v7
                  v_mul_u32_u24 v4, 1280, v4
                  v_lshl_add_u32 v4, v5, 4, v4""")
        qtok = Tok()
        for i in range(4):
            a.i(f"buffer_load_dwordx4 v4, s[68:71], s23 offen offset:{1024*i} lds", qtok)
            a.i(f"s_add_u32 s23, s23, {8*1280 - 1024}")
        a.many("""v_lshrrev_b32 v5, 1, v6
                  v_mul_lo_u32 v5, v5, s53
                  v_and_b32 v7, 1, v6
                  v_lshl_add_u32 v5, v7, 2, v5
                  v_bfe_u32 v7, v1, 2, 2
                  v_add_u32 v5, v5, v7
                  v_bfe_u32 v7, v5, 1, 2
                  v_and_b32 v8, 3, v1
                  v_lshlrev_b32 v8, 3, v8
                  v_lshl_add_u32 v5, v5, 7, v8
                  v_add_u32 v5, s24, v5
                  v_lshlrev_b32 v13, 4, v1""")
        for nb in range(4):
            a.i(f"v_xor_b32 v8, {nb}, v7")
            a.i(f"v_lshl_add_u32 v{104+nb}, v8, 5, v5")
            a.i(f"v_add_u32 v{108+nb}, s54, v{104+nb}")
        a.i(f"v_mov_b32 v{CR}, v{SV}"); a.i(f"v_mov_b32 v{CR+1}, v{SV}")
        for blk in range(5):
            a.i(cmf(blk))
        for blk in range(5):
            for x in phi(blk, 0) + phi(blk, 1):
                a.i(x)
            pk = 224 + (blk % 2) * 8
            for q in range(4):
                dst = pk + (q & 1) * 4 + (q >> 1) * 2
                for jj in range(2):
                    a.i(f"v_cvt_pk_bf16_f32 v{dst+jj}, v{ACC+blk*16+4*q+2*jj}, v{ACC+blk*16+4*q+2*jj+1}")
            a.i(f"s_add_u32 s51, s48, {blk*4096}")
            a.i(f"buffer_store_dwordx4 {vr(pk)}, v190, s[8:11], s51 offen {st_flags}")
            a.i(f"buffer_store_dwordx4 {vr(pk+4)}, v190, s[8:11], s51 offen offset:512 {st_flags}")
            if blk == 2:
                a.wait_tok(qtok)
                for nb in range(4):
                    a.i(f"ds_read_b64_tr_b16 {vr(136+nb*4, 2)}, v{104+nb}")
                    a.i(f"ds_read_b64_tr_b16 {vr(138+nb*4, 2)}, v{108+nb}")
            if blk == 3:
                for nb in range(4):
                    a.i(f"buffer_store_dwordx4 {vr(136+nb*4)}, v13, s[8:11], s55 offen {st_flags}")
                    a.i("s_add_u32 s55, s55, s52")
        a.guard_end()
        (a.i(f"s_cbranch_execz L_dry_{role}_{name}") if DRY_AFTER < 3 else None)
        return
    smask(a, 40, 0x0000FFFF0000FFFF)
    P = {0: 136, 1: 144, 2: 192, 3: 200, 4: 224}
    ONES = 232
    for blk in (0, 2, 3, 1, 4):
        a.i(cmf(blk))
    for k in range(4):
        a.i(f"v_mov_b32 v{ONES+k}, 0x3f803f80")

    def fin(blk):
        L = []
        for hf in range(2):
            R = range(8 * hf, 8 * hf + 8)
            ac = lambda j: ACC + blk * 16 + j
            if blk < 2:
                L += phi(blk, hf)
            else:
                if blk == 2:
                    L += phi(blk, hf, False)
                for j in range(8 * hf, 8 * hf + 8, 2): L.append(f"v_pk_mul_f32 {vr(ac(j), 2)}, {vr(ac(j), 2)}, {vr(SV+j, 2)}")
                if blk == 2:
                    for j in R: L.append(f"v_cndmask_b32 v{ac(j)}, v{ac(j)}, v{T+8+(j % 8)}, s[40:41]")
            for jj in range(4):
                L.append(f"v_cvt_pk_bf16_f32 v{P[blk]+hf*4+jj}, v{ac(8*hf+2*jj)}, v{ac(8*hf+2*jj+1)}")
        return L
    def prod(kb, vb, d):
        return [mfma32(vr(d, 16), vr(P[kb] + u * 4), vr(P[vb] + u * 4) if vb is not None else vr(ONES), "0" if u == 0 else None) for u in range(2)]
    def wr(kb, vb, d):
        L = []
        for qd in range(2 if kb == 2 else 4):
            if vb is None:
                L.append(f"ds_write_b128 v191, {vr(d+4*qd)} offset:{20480 + (8*kb+2*qd)*16}")
            else:
                es = {(0, 2): 0, (0, 3): 32, (1, 3): 0, (1, 4): 32, (2, 4): 32}[(kb, vb)]
                L.append(f"ds_write_b128 v190, {vr(d+4*qd)} offset:{((8*kb+2*qd)*64 + es)*16}")
        return L
    A0, A1, A2, A3, A4 = [ACC + 16 * b for b in range(5)]
    interleave(a, fin(0) + fin(2) + fin(3), [])
    if EPI_FINE: stamp(a)
    interleave(a, prod(0, 2, A0) + prod(0, 3, A2) + prod(0, None, A3) + prod(2, None, 160), fin(1))
    a.i("s_barrier")
    interleave(a, prod(1, 3, A1) + prod(1, None, 100), fin(4) + wr(0, 2, A0) + wr(0, 3, A2))
    interleave(a, prod(1, 4, A4) + prod(2, 4, A0), wr(1, 3, A1))
    a.i("s_mov_b32 exec_lo, 1"); a.i("s_mov_b32 exec_hi, 1")
    interleave(a, wr(0, None, A3) + wr(2, None, 160) + wr(1, None, 100), [])
    a.i("s_mov_b64 exec, -1")
    interleave(a, wr(1, 4, A4) + wr(2, 4, A0), [])
    for n in range(7):
        a.i(f"v_add_u32 v{136+n}, {L0 + 2*RW}, v{LA+n}")
        a.i(f"v_add_u32 v{144+n}, {L0}, v{LA+n}")
    a.guard_end()
    (a.i(f"s_cbranch_execz L_dry_{role}_{name}") if DRY_AFTER < 3 else None)
    if EPI_FINE: stamp(a)
    a.wait_lg0()
    a.i("s_barrier")
    if EPI_FINE: stamp(a)
    for n in range(7):
        for w in range(4):
            a.i(f"ds_read_b32 v{32+4*n+w}, v{(144 if w < 2 else 136)+n} offset:{(w % 2)*RW}")
    for n in range(7):
        a.i(f"v_add_f32 v{32+4*n}, v{32+4*n}, v{33+4*n}")
        a.i(f"v_add_f32 v{34+4*n}, v{34+4*n}, v{35+4*n}")
        a.i(f"v_add_f32 v{32+4*n}, v{32+4*n}, v{34+4*n}")
        if n == 6:
            a.i("s_mov_b32 exec_hi, 15")
        a.i(f"buffer_atomic_add_f32 v{32+4*n}, v{GA+n}, s[8:11], s48 offen")
    a.i("s_mov_b64 exec, -1")
    if EPI_FINE: stamp(a)


def row_reduce16(a, regs):
    for sh in (8, 4, 2, 1):
        for r in regs:
            a.i(f"v_add_f32_dpp v{r}, v{r}, v{r} row_ror:{sh} row_mask:0xf bank_mask:0xf")


def p1_aux(a, name, st_flags):
    OOB = 0x7f000000
    a.many(f"""s_cmp_lt_u32 s17, 30
              s_cselect_b32 s48, s56, s12
              s_cselect_b32 s49, s57, s13
              s_cselect_b32 s50, s58, s14
              s_mov_b32 s51, 0x20000
              s_cselect_b32 s52, 30720, 64
              s_cselect_b32 s53, 30720, 64
              s_cselect_b32 s54, 3, 4
              s_cselect_b32 s55, 7, 15
              s_movk_i32 s22, 1280
              s_cselect_b32 s22, 3840, s22
              s_mul_i32 s23, s16, 614400
              s_lshl_b32 s24, s17, 7
              s_add_u32 s23, s23, s24
              s_sub_u32 s33, s17, 30
              s_lshl_b32 s33, s33, 2
              s_add_u32 s33, s33, s16
              s_mul_i32 s24, s33, 20480
              s_cmp_lt_u32 s17, 30
              s_cselect_b32 s23, s23, s24
              s_cselect_b32 s52, s52, 256
              s_cselect_b32 s53, s53, 4096
              v_lshrrev_b32 v8, s54, v1
              v_and_b32 v9, s55, v1
              v_mul_lo_u32 v10, v8, s22
              v_lshl_add_u32 v10, v9, 4, v10""")
    for i in range(20):
        a.i(f"buffer_load_dwordx4 {vr(32+4*i)}, v10, s[48:51], s23 offen")
        a.i(f"s_add_u32 s23, s23, {'s53' if i % 5 == 4 else 's52'}")
    a.many(f"""v_lshlrev_b32 v2, 4, v1
              v_mov_b32 v4, 0
              v_mov_b32 v5, 0
              v_mov_b32 v6, 0
              v_mov_b32 v7, 0
              s_lshl_b32 s20, s17, 11
              s_lshl_b32 s21, s16, 9
              s_add_u32 s20, s20, s21
              s_add_u32 s20, s20, {WS_KV}
              s_mov_b32 exec_hi, 0""")
    a.i("buffer_store_dwordx4 v[4:7], v2, s[8:11], s20 offen sc1")
    a.i("s_mov_b64 exec, -1")
    a.many("""s_lshl_b32 s18, s17, 2
              s_add_u32 s18, s18, s16
              s_mul_i32 s19, s16, 40960
              v_lshrrev_b32 v112, 3, v1
              v_and_b32 v113, 7, v1
              v_bfe_u32 v114, v1, 4, 2
              v_lshlrev_b32 v115, 1, v114
              v_xor_b32 v113, v113, v115
              v_xor_b32 v115, 4, v113
              v_mul_u32_u24 v11, 1280, v112
              v_lshl_add_u32 v11, v113, 4, v11
              v_mul_u32_u24 v12, 3456, v112
              v_lshl_add_u32 v13, v115, 4, v12
              v_lshl_add_u32 v12, v113, 4, v12""")
    tasks = [("gu", 0, 0), ("gu", 256, 8192), ("wd", 0, 16384), ("wd", 228, 20480), ("gu", 512, 24576)]
    toks = {}

    def decode(ti):
        kind, add, lo = tasks[ti]
        ncg = {"gu": 27, "wd": 10}[kind]
        stride = 3456 if kind == "gu" else 1280
        nk, base = {"gu": (40, WS_WGU), "wd": (54, WS_WD)}[kind]
        chk = {512: "s_cmp_lt_u32 s18, 28", 228: "s_cmp_ge_u32 s18, 28"}.get(add, "s_cmp_eq_u32 s18, s18")
        a.many(f"""s_add_u32 s24, s18, {add}
                  s_mul_hi_u32 s26, s24, {(1 << 32)//ncg + 1}
                  s_mul_i32 s25, s26, {ncg}
                  s_sub_u32 s25, s24, s25
                  {chk}
                  s_cselect_b32 s27, 0, {OOB}
                  s_mul_i32 s28, s26, {32*stride}
                  s_lshl_b32 s29, s25, 7
                  s_add_u32 s28, s28, s29
                  s_add_u32 s28, s28, s27
                  s_mul_i32 s29, s25, {4*nk*1024}
                  s_lshl_b32 s26, s26, {11 if kind == 'gu' else 10}
                  s_add_u32 s29, s29, s26
                  s_add_u32 s29, s29, s27
                  s_add_u32 s{36+ti}, s29, {base}""")

    def issue(ti):
        kind, add, lo = tasks[ti]
        decode(ti)
        stride = 3456 if kind == "gu" else 1280
        for img in range(2 if kind == "gu" else 1):
            sr = {"gu": (68, 72)[img], "wd": 44, "wo": 64}[kind]
            vo = {"gu": (12, 13)[img], "wd": 11, "wo": 11}[kind]
            for i in range(4):
                a.i(f"s_add_u32 s30, s19, {lo + img*4096 + i*1024}")
                a.i("s_mov_b32 m0, s30")
                a.i(f"s_add_u32 s31, s28, {8*i*stride}")
                tk = Tok(); toks[ti] = tk
                a.i(f"buffer_load_dwordx4 v{vo}, s[{sr}:{sr+3}], s31 offen lds", tk)
    for ti in range(NEARLY):
        issue(ti)
    for k in range(8):
        a.i(f"v_mov_b32 v{16+k}, 0")
    a.i("s_cmp_ge_u32 s17, 30")
    a.i(f"s_cbranch_scc1 L_aux_stats_{name}")
    st0 = (a.vm_n, a.vm_done, dict(a.pend))
    SCR = 36864
    a.many("""s_mov_b32 s22, 0x3f80
              s_mov_b32 s23, 0x3f800000""")
    for i in range(20):
        for d in range(4):
            a.i(f"v_dot2_f32_bf16 v{16+2*d}, v{32+4*i+d}, s22, v{16+2*d}")
            a.i(f"v_dot2_f32_bf16 v{17+2*d}, v{32+4*i+d}, s23, v{17+2*d}")
    a.nop(4)
    for k in range(8):
        a.i(f"v_add_f32_dpp v{16+k}, v{16+k}, v{16+k} row_ror:8 row_mask:0xf bank_mask:0xf")
    for sw in ("v_permlane16_swap_b32", "v_permlane32_swap_b32"):
        for k in range(8): a.i(f"v_mov_b32 v{24+k}, v{16+k}")
        for k in range(8): a.i(f"{sw} v{16+k}, v{24+k}")
        for k in range(8): a.i(f"v_add_f32 v{16+k}, v{16+k}, v{24+k}")
    a.many(f"""v_lshlrev_b32 v10, 5, v9
              s_lshl_b32 s20, s16, 8
              s_add_u32 s20, s20, {SCR}
              v_add_u32 v10, s20, v10
              ds_write_b128 v10, v[16:19]
              ds_write_b128 v10, v[20:23] offset:16
              v_lshlrev_b32 v10, 2, v1
              v_add_u32 v24, {SCR}, v10""")
    a.wait_lg0()
    a.i("s_barrier")
    for w in range(4):
        a.i(f"ds_read_b32 v{16+w}, v24 offset:{256*w}")
    a.many(f"""v_add_f32 v16, v16, v17
              v_add_f32 v18, v18, v19
              v_add_f32 v16, v16, v18
              s_lshl_b32 s20, s17, 8
              s_add_u32 s20, s20, {WS_CS1}
              s_cmp_eq_u32 s16, 0
              s_cselect_b32 s20, s20, {OOB}""")
    a.i("buffer_store_dword v16, v10, s[8:11], s20 offen sc1")
    a.i(f"s_branch L_aux_sig_{name}")
    a.label(f"L_aux_stats_{name}")
    a.vm_n, a.vm_done, a.pend = st0[0], st0[1], dict(st0[2])
    a.fence()
    a.i("s_mov_b32 s22, 0x3f803f80")
    for i in range(4):
        for d in range(20):
            r = 32 + 20 * i + d
            a.i(f"v_dot2_f32_bf16 v{16+2*i}, v{r}, s22, v{16+2*i}")
            a.i(f"v_dot2_f32_bf16 v{17+2*i}, v{r}, v{r}, v{17+2*i}")
    a.nop(4)
    row_reduce16(a, range(16, 24))
    for i in range(4):
        s_, q_ = 16 + 2 * i, 17 + 2 * i
        a.many(f"""v_mul_f32 v{q_}, {f32(1/640)}, v{q_}
                  v_mul_f32 v24, {f32(1/640)}, v{s_}
                  v_fma_f32 v{s_}, -v24, v24, v{q_}
                  v_max_f32 v{s_}, 0, v{s_}
                  v_add_f32 v{s_}, {f32(1e-5)}, v{s_}
                  v_rsq_f32 v{s_}, v{s_}
                  v_mov_b32 v{q_}, v24""")
    a.many(f"""v_lshlrev_b32 v10, 2, v8
              s_lshl_b32 s20, s33, 6
              s_add_u32 s20, s20, {WS_ST1}
              s_cmp_lt_u32 s17, 62
              s_cselect_b32 s20, s20, {OOB}
              s_add_u32 s21, s20, 8192
              s_mov_b32 exec_lo, 0x00010001
              s_mov_b32 exec_hi, 0x00010001""")
    for i in range(4):
        a.i(f"buffer_store_dword v{16+2*i}, v10, s[8:11], s20 offen offset:{16*i} sc1")
        a.i(f"buffer_store_dword v{17+2*i}, v10, s[8:11], s21 offen offset:{16*i} sc1")
    a.i("s_mov_b64 exec, -1")
    a.label(f"L_aux_sig_{name}")
    a.wait_all()
    a.fence()
    stamp(a)
    a.i("s_barrier")
    a.many("""v_mov_b32 v4, 1
              v_mov_b32 v5, 0
              s_cmp_eq_u32 s16, 0""")
    a.i(f"s_cselect_b32 s20, 0, {OOB}")
    a.i("s_mov_b64 exec, 1")
    a.i("buffer_atomic_add v4, v5, s[60:63], s20 offen sc1")
    a.i("s_mov_b64 exec, -1")
    for ti in range(NEARLY, len(tasks)):
        issue(ti)
    a.many(f"""s_lshl_b32 s33, s18, 2
              v_lshrrev_b32 v14, 4, v1
              v_and_b32 v37, 15, v1
              v_mul_u32_u24 v38, 1280, v14
              v_lshl_add_u32 v38, v37, 4, v38
              s_mul_i32 s32, s33, 1280""")
    for m in range(5):
        a.i(f"buffer_load_dwordx4 {vr(128+4*m)}, v38, s[64:67], s32 offen offset:{256*m}")
    a.many("""v_bfe_u32 v15, v1, 2, 2
              v_and_b32 v16, 3, v1
              v_lshlrev_b32 v16, 3, v16
              v_add_u32 v16, s19, v16
              v_lshl_add_u32 v17, v14, 2, v15
              v_lshrrev_b32 v18, 1, v14
              v_and_b32 v19, 1, v14
              v_lshl_add_u32 v20, v19, 2, v15
              v_lshl_add_u32 v20, v18, 4, v20
              v_lshl_add_u32 v21, v18, 2, v15""")
    for k, (rowreg, base) in ((1, (20, 28)), (2, (21, 32))):
        a.i(f"v_bfe_u32 v22, v{rowreg}, 1, 2")
        if k == 2:
            a.i("v_lshlrev_b32 v23, 1, v19")
            a.i("v_xor_b32 v22, v22, v23")
        a.i(f"v_lshl_add_u32 v23, v{rowreg}, 7, v16")
        if k == 2:
            a.i("v_lshl_add_u32 v23, v19, 12, v23")
        for nb in range(4):
            a.i(f"v_xor_b32 v36, {nb}, v22")
            a.i(f"v_lshl_add_u32 v{base+nb}, v36, 5, v23")
    RB = [48, 80, 192, 224]
    stamp(a)
    for ti, (kind, add, lo) in enumerate(tasks):
        R0 = RB[ti % 4]
        a.wait_tok(toks[ti])
        if ti in (0, 3): stamp(a)
        if kind == "gu":
            for nb in range(4):
                for kbl in range(2):
                    r = R0 + (nb * 2 + kbl) * 4
                    for u in range(2):
                        a.i(f"ds_read_b64_tr_b16 {vr(r+2*u, 2)}, v{32+nb} offset:{lo + (16*kbl+8*u)*128}")
            for nb in range(4):
                a.i(f"s_add_u32 s29, s{36+ti}, {nb*40960}")
                for kbl in range(2):
                    a.i(f"buffer_store_dwordx4 {vr(R0+(nb*2+kbl)*4)}, v2, s[8:11], s29 offen offset:{kbl*1024} {st_flags}")
        else:
            nks, ar, us = (54, 28, 8) if kind == "wd" else (20, 24, 16)
            for nb in range(4):
                for u in range(2):
                    a.i(f"ds_read_b64_tr_b16 {vr(R0+nb*4+2*u, 2)}, v{ar+nb} offset:{lo + us*u*128}")
            for nb in range(4):
                a.i(f"s_add_u32 s29, s{36+ti}, {nb*nks*1024}")
                a.i(f"buffer_store_dwordx4 {vr(R0+nb*4)}, v2, s[8:11], s29 offen {st_flags}")
    stamp(a)
    a.i("s_mov_b32 s22, 0x3f803f80")
    a.i("v_mov_b32 v40, 0"); a.i("v_mov_b32 v41, 0")
    for d in range(20):
        a.i(f"v_dot2_f32_bf16 v{40 + d % 2}, v{128+d}, s22, v{40 + d % 2}")
    a.nop(4)
    a.i("v_add_f32 v40, v40, v41")
    row_reduce16(a, [40])
    for i in range(1):
        a.many(f"""v_mul_f32 v{40+i}, {f32(1/640)}, v{40+i}
                  v_cvt_pk_bf16_f32 v{40+i}, v{40+i}, v{40+i}
                  v_add_u32 v44, s33, v14
                  v_add_u32 v44, {4*i}, v44
                  v_lshrrev_b32 v45, 5, v44
                  v_lshlrev_b32 v45, 10, v45
                  v_bfe_u32 v46, v44, 2, 2
                  v_lshl_add_u32 v45, v46, 8, v45
                  v_lshl_add_u32 v45, v37, 4, v45
                  v_bfe_u32 v46, v44, 4, 1
                  v_lshl_add_u32 v45, v46, 3, v45
                  v_and_b32 v46, 3, v44
                  v_lshl_add_u32 v45, v46, 1, v45
                  v_cmp_gt_u32 vcc, 640, v44
                  v_mov_b32 v46, {OOB}
                  v_cndmask_b32 v45, v46, v45, vcc
                  s_mov_b32 s20, {WS_RM}""")
        a.i(f"buffer_store_short v{40+i}, v45, s[8:11], s20 offen {st_flags}")


def gen_p1(kidx, name="p1_kernel", st_flags="", rot=True, dbg="", merged=None):
    a = Asm()
    prologue(a, name, 256, [])
    a.i("s_load_dwordx4 s[4:7], s[0:1], 0")
    a.i("s_load_dwordx4 s[24:27], s[0:1], 64")
    a.many("""s_and_b32 s19, s2, 7
              s_lshr_b32 s20, s2, 3
              s_mov_b32 s11, 0x20000
              s_mov_b32 s15, 0x20000
              s_mov_b32 s59, 0x20000
              s_mov_b32 s63, 0x20000""")
    a.i(f"s_mov_b32 s10, {WS_BYTES}"); a.i(f"s_mov_b32 s14, {X_BYTES}"); a.i(f"s_mov_b32 s58, {WQKV_BYTES}"); a.i("s_movk_i32 s62, 256")

    def ptrs():
        a.wait_lg0(True)
        for d, p in ((12, 4), (56, 6), (60, 24), (8, 26)):
            a.i(f"s_mov_b32 s{d}, s{p}"); a.i(f"s_and_b32 s{d+1}, s{p+1}, 0xffff")
    a.ptrs = ptrs
    a.i("s_cmp_lt_u32 s20, 8")
    a.i(f"s_cbranch_scc0 L_gemm_{name}")
    a.i("s_load_dwordx2 s[28:29], s[0:1], 16")
    a.i("s_load_dwordx4 s[32:35], s[0:1], 32")
    a.i("s_load_dwordx2 s[30:31], s[0:1], 48")
    ptrs()
    srd(a, 64, 28, 640 * 1280)
    srd(a, 68, 32, 640 * 3456)
    srd(a, 72, 34, 640 * 3456)
    srd(a, 44, 30, 1728 * 1280)
    a.many("""s_lshl_b32 s17, s19, 3
              s_add_u32 s17, s17, s20""")
    ns = getattr(a, "nstamp", 0)
    p1_aux(a, name, st_flags)
    if merged:
        a.i("v_mov_b32 v114, 0")
        a.i("buffer_load_dword v118, v114, s[60:63], 0 offen sc1")
        a.wait_vm0()
        spin(a, f"L_spin_aux_{name}", 64, 118, 38, 60, 114)
        a.i("s_lshl_b32 s78, s17, 2")
        a.i("s_add_u32 s78, s78, 0x1800")
    a.i(f"s_branch L_fin_{name}")
    a.label(f"L_gemm_{name}")
    a.reset_state(); a.fence()
    a.nstamp = ns
    a.many("""s_sub_u32 s20, s20, 8
              s_mul_i32 s21, s20, 43
              s_lshr_b32 s21, s21, 8
              s_mul_i32 s22, s21, 6
              s_sub_u32 s22, s20, s22
              s_lshr_b32 s17, s19, 1
              s_lshl_b32 s17, s17, 2
              s_add_u32 s17, s17, s21
              s_and_b32 s23, s19, 1
              s_nop 0""")
    a.i("s_cmp_lt_u32 s22, 2")
    a.i(f"s_cbranch_scc0 L_kv_{name}")
    a.many("""s_lshl_b32 s18, s23, 1
              s_add_u32 s18, s18, s22""")
    p1_gemm(a, "q", name, st_flags, rot, dbg)
    if merged:
        a.many("""s_lshl_b32 s78, s17, 7
                  s_lshl_b32 s20, s18, 2
                  s_add_u32 s78, s78, s20
                  s_add_u32 s78, s78, 0x2000""")
    a.i(f"s_branch L_fin_{name}")
    a.label(f"L_kv_{name}")
    a.reset_state(); a.fence()
    a.nstamp = ns
    a.many("""s_lshl_b32 s18, s23, 2
              s_add_u32 s18, s18, s22
              s_add_u32 s18, s18, 2""")
    p1_gemm(a, "kv", name, st_flags, rot, dbg)
    if merged:
        a.many(f"""s_lshl_b32 s78, s17, 3
                  s_add_u32 s78, s78, s18
                  s_lshl_b32 s78, s78, 2
                  s_add_u32 s78, s78, {0x3000 - 16}""")
    a.label(f"L_fin_{name}")
    if merged:
        a.reset_state(); a.fence()
        a.nstamp = 1
        return merged(a)
    if gen.STAMPS:
        a.raw("s_waitcnt vmcnt(0) lgkmcnt(0)")
        a.reset_state(); a.fence()
    a.nstamp = 6
    epilogue(a, name, kidx, 256)
    print(name, "instrs", a.ninstr, "nops", a.nops)
    return name, kernel_wrap(name, a.text(), 256, 64), 256, 256, 163840
```

```python
import gen
from gen import *
from asmgen import regs_of


P4_ROT = False
MERGED = False
NSLAB0 = 12
W4_LDS = True
W4_P2 = 0
W4_SY = 0
D23_IN_P3 = False
P2_ROT = True
SYNC_FINE = -1
POLL_SLEEP = 2
def signal_and_wait(a, name, phase, between=None):
    a.wait_vm0()
    a.wait_lg0()
    if SYNC_FINE == phase: stamp(a)
    a.i("s_barrier")
    flag_store(a, phase)
    if SYNC_FINE == phase: stamp(a)
    if between:
        between()
    if SYNC_FINE == phase: stamp(a)
    poll_issue(a, phase, 12)
    poll_check(a, f"L_sy{phase}_{name}", 12)


def flag_store(a, phase):
    a.many(f"""s_cmp_eq_u32 s16, 0
              s_cselect_b32 s20, {WS_FLAG + phase*2048}, s56
              v_mov_b32 v10, s63
              v_mov_b32 v11, 1
              s_mov_b64 exec, 1""")
    a.i("buffer_store_dword v11, v10, s[8:11], s20 offen sc1")
    a.i("s_mov_b64 exec, -1")


def poll_issue(a, phase, v):
    a.many(f"""v_and_b32 v{v+3}, 15, v1
              v_lshlrev_b32 v{v+3}, 2, v{v+3}
              v_add_u32 v{v+3}, s64, v{v+3}
              s_mov_b32 s79, {WS_FLAG + phase*2048}""")
    a.i(f"buffer_load_dword v{v}, v{v+3}, s[8:11], s79 offen sc1")


def poll_check(a, lbl, v):
    a.i(f"v_cmp_ne_u32 vcc, 1, v{v}")
    a.nop(2)
    a.i(f"s_cbranch_vccz {lbl}_ok")
    a.raw("s_mov_b32 s21, 0")
    a.label(f"{lbl}_lp")
    a.raw(f"s_sleep {POLL_SLEEP}")
    a.raw(f"buffer_load_dword v{v}, v{v+3}, s[8:11], s79 offen sc1")
    a.raw("s_waitcnt vmcnt(0)")
    a.raw(f"v_cmp_ne_u32 vcc, 1, v{v}")
    a.raw("s_add_u32 s21, s21, 1")
    a.raw("s_cmp_ge_u32 s21, 0x40000")
    a.raw(f"s_cbranch_scc1 {lbl}_ok")
    a.raw("s_nop 1")
    a.raw(f"s_cbranch_vccnz {lbl}_lp")
    a.label(f"{lbl}_ok")
    a.nop(2)


def touches(a, sbase, nl_wave, vtmp, dst, add=0):
    L = []
    n = (nl_wave + 63) // 64
    for i in range(n):
        def f(i=i):
            if (i + 1) * 64 > nl_wave:
                a.i(f"v_min_u32 v{vtmp}, {nl_wave-1-64*i}, v1")
                a.i(f"v_lshlrev_b32 v{vtmp}, 7, v{vtmp}")
            else:
                a.i(f"v_lshlrev_b32 v{vtmp}, 7, v1")
            a.i(f"s_add_u32 s35, s{sbase}, {add + 8192*i}")
            a.i(f"buffer_load_dword v{dst}, v{vtmp}, s[8:11], s35 offen")
        L.append(f)
    return L


def LF():
    return " sc1" if MERGED else ""


def p3_src(blk, i):
    if blk < 6:
        return 2 * (blk // 2) + i // 5, 20 * (blk % 2) + i % 5
    return 6, i


def p3_lds(c, kb):
    if c < 6:
        blk = 2 * (c // 2) + kb // 20
        w, r = (kb % 20) // 5, kb % 5
        return blk, (blk % 4) * 40960 + w * 10240 + ((c & 1) * 5 + r) * 1024
    return 6, 2 * 40960 + kb * 1024


def p3_dma(a, blk, vlane):
    L = []
    toks = []
    for i in range(10):
        c, kb = p3_src(blk, i)
        first = i in (0, 4, 5, 9) if blk < 6 else i % 4 == 0
        if first:
            i0 = i
            def setm(i=i, c=c, kb=kb):
                a.i(f"s_add_u32 s68, s67, {(blk % 4) * 40960 + i * 1024}")
                a.i("s_mov_b32 m0, s68")
                a.i(f"s_add_u32 s69, {'s66' if blk < 6 else 's59'}, {((c if c < 6 else 0) * 40 + kb) * 1024}")
            L.append(setm)
        tk = Tok(); toks.append(tk)
        L.append((f"buffer_load_dwordx4 v{vlane}, s[56:59 - 0], s69 offen offset:{(i - i0) * 1024}{LF()} lds".replace("s[56:59 - 0]", "s[36:39]"), tk))
    return L, toks


def red_setup(a, stride, lds0, vbase):
    for rp in (1, 2, 3):
        a.i(f"s_add_u32 s20, s16, {rp}")
        a.i("s_and_b32 s20, s20, 3")
        a.i(f"s_mul_i32 s20, s20, {3*stride}")
        a.i(f"s_add_u32 s20, s20, {lds0 + (rp-1)*stride}")
        a.i(f"v_add_u32 v{vbase+rp-1}, s20, v2")
    a.i(f"s_mul_i32 s20, s16, {3*stride}")
    a.i(f"s_add_u32 s20, s20, {lds0}")
    a.i(f"v_add_u32 v{vbase+3}, s20, v2")


def mix(x, y):
    if not y:
        return list(x)
    out = []
    k = 0
    for i, e in enumerate(x):
        out.append(e)
        while k < len(y) and (k + 1) * len(x) <= (i + 1) * len(y):
            out.append(y[k]); k += 1
    return out + y[k:]


def body_p2(a, pre_dma, tch0, tch, tch2):
    SF = "sc1"
    a.many(f"""s_add_u32 s19, s62, s18
              s_mul_i32 s19, s19, {1 if P2_ROT else 0}
              s_add_u32 s19, s19, s16
              s_and_b32 s19, s19, 3
              v_lshlrev_b32 v2, 4, v1
              v_add_u32 v3, 0x1000, v2
              v_lshrrev_b32 v8, 4, v1
              v_lshlrev_b32 v157, 4, v8""")
    a.many(f"""s_mul_i32 s22, s19, 5
              s_mul_i32 s27, s19, {26*1024}
              s_add_u32 s27, s27, {WS_KV}
              s_mul_i32 s28, s19, 640
              s_add_u32 s28, s28, {WS_Z}""")
    a.wait_lg0()
    srd(a, 8, 4, WS_BYTES)
    KVR, ZR = 16, 120
    KF, ZF = 160, 232
    NUM = [16, 64]; OF = [112, 132]; TT = 152
    ACC, WOF, PQF = 0, 96, 216
    ORDER = [1, 2, 3, 0]

    def z_loads(gq):
        return [f"buffer_load_dwordx4 {vr(ZR+ab*4)}, v157, s[8:11], s28 offen offset:{ab*64}{LF()}" for ab in range(5 * gq, 5 * gq + 5)]

    def kv_loads(gq):
        L = []
        for i in range(13 * gq, 13 * gq + 13):
            if i % 8 == 0 or i == 13 * gq:
                L.append(f"s_add_u32 s29, s27, {(i // 8) * 8192}")
            L.append(f"buffer_load_dwordx4 {vr(KVR+i*4)}, {'v2' if i % 8 < 4 else 'v3'}, s[8:11], s29 offen offset:{(i % 4)*1024}{LF()}")
        return L
    if not MERGED:
        interleave(a, tch0 + z_loads(0) + kv_loads(0), [])
    srd(a, 12, 6, OUT_BYTES)
    srd(a, 36, 4, WS_WGU + 108 * 40960)
    srd(a, 96, 52, OUT_BYTES)
    for k, rp in enumerate(ORDER):
        a.i(f"s_add_u32 s23, s16, {rp}")
        a.i("s_and_b32 s23, s23, 3")
        a.i("s_lshl_b32 s23, s23, 10")
        a.i(f"v_add_u32 v{4+k}, s23, v2")
    a.many(f"""s_mul_i32 s24, s17, 20
              s_add_u32 s24, s24, s22
              s_lshl_b32 s24, s24, 12
              s_add_u32 s24, s24, {WS_PQ}
              s_mul_i32 s25, s18, 100
              s_add_u32 s25, s25, s22
              s_lshl_b32 s25, s25, 10
              s_add_u32 s25, s25, {WS_WO}
              s_lshl_b32 s26, s22, 10
              s_add_u32 s26, s26, {WS_RM}""")

    def pq_loads(k):
        L = []
        for j in range(5):
            L.append(f"s_add_u32 s29, s24, {j*4096}")
            L.append(f"buffer_load_dwordx4 {vr(PQF+(k % 2)*20+j*4, 4, 'a')}, v{4+k}, s[8:11], s29 offen{LF()}")
        return L

    def wo_loads(b):
        L = [f"s_add_u32 s30, {'s25' if b < 5 else 's26'}, {b*20480 if b < 5 else 0}"]
        for j in range(5):
            L.append(f"buffer_load_dwordx4 {vr(WOF+(j*6+b)*4, 4, 'a')}, {'v2' if j < 4 else 'v3'}, s[8:11], s30 offen offset:{(j % 4)*1024}{LF()}")
        return L
    pqtok = {2: [], 3: []}
    def pq_dma(k):
        L = []
        for j in range(5):
            def setm(j=j):
                a.i(f"s_add_u32 s29, s24, {j*4096}")
                a.i(f"s_add_u32 s68, s67, {(k-2)*5120 + j*1024}")
                a.i("s_mov_b32 m0, s68")
            L.append(setm)
            tk = Tok(); pqtok[k].append(tk)
            L.append((f"buffer_load_dwordx4 v{4+k}, s[8:11], s29 offen{LF()} lds", tk))
        return L
    def pq_rd(k):
        return [(f"ds_read_b128 {vr(PQF+(k % 2)*20+j*4, 4, 'a')}, v159 offset:{(k-2)*5120 + j*1024}", None, pqtok[k]) for j in range(5)]
    wl = sum([wo_loads(b) for b in range(6)], [])
    pqd = pq_dma(2) + pq_dma(3)
    if not MERGED:
        interleave(a, pq_loads(0) + z_loads(1) + kv_loads(1) + pq_loads(1), [])
    else:
        a.many(f"""v_lshlrev_b32 v10, 2, v1
                  v_lshrrev_b32 v11, 2, v1
                  v_lshlrev_b32 v11, 7, v11
                  v_and_b32 v12, 3, v1
                  v_lshl_add_u32 v11, v12, 2, v11
                  v_lshlrev_b32 v12, 3, v1
                  s_mov_b32 s79, {WS_FLAG + 0x1800}
                  s_mov_b32 s75, {WS_FLAG + 0x3000}""")
        gpoll(a, "L_gp1", ["buffer_load_dword v14, v10, s[8:11], s79 offen sc1", "buffer_load_dword v15, v11, s[8:11], s79 offen offset:2048 sc1"], [14, 15])
        stamp(a)
        interleave(a, wl + pq_loads(0) + pq_loads(1) + pqd, [])
        wl = []; pqd = []
        gpoll(a, "L_gp2", ["buffer_load_dwordx2 v[14:15], v12, s[8:11], s75 offen sc1"], [14, 15])
        stamp(a)
        interleave(a, z_loads(0) + kv_loads(0) + z_loads(1) + kv_loads(1), [])
    for ap in range(5):
        m = 0
        for l in range(64):
            if (16 * ap + 4 * (l >> 4)) // 20 == (l & 3):
                m |= 1 << l
        smask(a, 40 + 2 * ap, m)
    smask(a, 50, 0xFFFFFFFFFFFF0000); smask(a, 52, 0xFFFFFFFF00000000); smask(a, 54, 0xFFFF000000000000)
    a.i(f"s_mov_b32 s32, {f32(1e-6)}"); a.i(f"s_mov_b32 s33, {f32(1e-6)}")
    for r in range(TT, TT + 8):
        a.ever.add(("v", r))
    if P2_FINE: stamp(a)
    conv = [[], []]
    zf = {}
    for zb in range(2):
        for j in ([0, 1, 2] if zb == 0 else [2, 3, 4]):
            r = ZF + len(zf) * 4
            zf[(zb, j)] = r
            for h in range(2):
                ab = 2 * j + h
                if ab // 5 == zb:
                    for jj in range(2):
                        conv[zb].append(f"v_cvt_pk_bf16_f32 v{r+2*h+jj}, v{ZR+ab*4+2*jj}, v{ZR+ab*4+2*jj+1}")
                    for jj in range(2):
                        conv[zb].append(f"v_cndmask_b32 v{r+2*h+jj}, 0, v{r+2*h+jj}, s[{40+2*(ab % 5)}:{41+2*(ab % 5)}]")
                else:
                    conv[zb] += [f"v_mov_b32 v{r+2*h}, 0", f"v_mov_b32 v{r+2*h+1}, 0"]
    kf = {}
    for b in range(10):
        for j in range(5):
            val = [(ab // 5 == b // 5 and abs(ab - b) <= 1) for ab in (2 * j, 2 * j + 1)]
            if not any(val):
                continue
            r = KF + len(kf) * 4
            kf[(b, j)] = r
            for h in range(2):
                ab = 2 * j + h
                if val[h]:
                    src = KVR + (13 * (b // 5) + 2 * (ab % 5) + (b % 5)) * 4
                    for jj in range(2):
                        conv[b // 5].append(f"v_cvt_pk_bf16_f32 v{r+2*h+jj}, v{src+2*jj}, v{src+2*jj+1}")
                else:
                    conv[b // 5] += [f"v_mov_b32 v{r+2*h}, 0", f"v_mov_b32 v{r+2*h+1}, 0"]

    def o_mfma(k):
        N = NUM[k % 2]
        L = []
        pq = lambda j: vr(PQF + (k % 2) * 20 + j * 4, 4, 'a')
        for zb in range(2):
            first = True
            for (z2, j), r in zf.items():
                if z2 == zb:
                    L.append(mfma(vr(N + 40 + zb * 4), vr(r), pq(j), "0" if first else None)); first = False
            for b in range(5 * zb, 5 * zb + 5):
                first = True
                for (b2, j), r in kf.items():
                    if b2 == b:
                        L.append(mfma(vr(N + b * 4), vr(r), pq(j), "0" if first else None)); first = False
        return L

    def o_valu(k):
        N = NUM[k % 2]; O = OF[k % 2]
        L = []
        for gq in range(2):
            d = N + 40 + gq * 4
            for h in (0, 2):
                L.append(f"v_pk_add_f32 {vr(d+h, 2)}, {vr(d+h, 2)}, s[32:33]")
            for h in range(4):
                L.append(f"v_rcp_f32 v{d+h}, v{d+h}")
            for q in range(3):
                L.append(f"v_cndmask_b32 v{TT+gq*3+q}, v{d+q}, v{d+q+1}, s[{50+2*q}:{51+2*q}]")
            for b in range(5 * gq, 5 * gq + 5):
                bp = b % 5
                fr = d if bp == 0 else (d + 3 if bp == 4 else TT + gq * 3 + bp - 1)
                sel = "op_sel_hi:[1,0]" if fr % 2 == 0 else "op_sel:[0,1]"
                for jj in (0, 2):
                    L.append(f"v_pk_mul_f32 {vr(N+b*4+jj, 2)}, {vr(N+b*4+jj, 2)}, {vr(fr - fr % 2, 2)} {sel}")
                for jj in range(2):
                    L.append(f"v_cvt_pk_bf16_f32 v{O+b*2+jj}, v{N+b*4+2*jj}, v{N+b*4+2*jj+1}")
        return L

    def main_mfma(k):
        O = OF[k % 2]; rp = ORDER[k]
        L = []
        for bp in range(3):
            for j in range(5):
                for b in (2 * bp, 2 * bp + 1):
                    L.append(mfma(vr(ACC + (rp * 6 + b) * 4, 4, 'a'), vr(WOF + (j * 6 + b) * 4, 4, 'a'), vr(O + j * 4), "0" if j == 0 else None))
        return L

    def red_wr(k):
        rp = ORDER[k]
        L = [f"ds_write_b128 v{10+rp-1}, {vr(ACC+(rp*6+b)*4, 4, 'a')} offset:{b*1024}" for b in range(5)]
        def mean_wr():
            a.i("s_mov_b64 exec, 0xffff")
            a.i(f"ds_write_b128 v{10+rp-1}, {vr(ACC+(rp*6+5)*4, 4, 'a')} offset:5120")
            a.i("s_mov_b64 exec, -1")
        return L + [mean_wr]
    interleave(a, conv[0] + conv[1], wl[:14])
    if P2_FINE: stamp(a)
    red_setup(a, 5376, 81920, 10)
    a.i("s_mov_b32 s58, s20")
    interleave(a, o_mfma(0), wl[14:24])
    a.i("v_add_u32 v159, s67, v2")
    interleave(a, o_mfma(1), mix(o_valu(0)[:36], wl[24:]))
    interleave(a, [], mix(o_valu(0)[36:], pqd))
    if P2_FINE: stamp(a)
    xs = f"""s_lshl_b32 s31, s17, 2
              s_add_u32 s31, s31, s16
              s_mul_i32 s76, s31, 20480
              s_mul_i32 s77, s18, 160
              s_add_u32 s76, s76, s77
              s_lshl_b32 s77, s31, 6
              s_add_u32 s77, s77, {WS_ST1 + 8192}
              s_mul_i32 s34, s16, 3072
              s_add_u32 s34, s34, 146432
              s_mov_b32 m0, s34
              s_movk_i32 s20, 0x199a
              v_and_b32 v14, 15, v1
              v_lshlrev_b32 v9, 2, v14""".split("\n")
    xtok = []
    for i in range(3):
        xs += [f"v_add_u32 v15, {64*i}, v1", "v_mul_u32_u24 v158, s20, v15", "v_lshrrev_b32 v158, 16, v158",
               f"v_mul_u32_u24 v158, {1280-160}, v158", "v_lshl_add_u32 v15, v15, 4, v158"]
        if i:
            xs.append(f"v_subrev_u32 v15, {1024*i}, v15")
        tk = Tok(); xtok.append(tk)
        xs.append((f"buffer_load_dwordx4 v15, s[12:15], s76 offen offset:{1024*i} lds", tk))
    xs.append(f"buffer_load_dword v158, v9, s[8:11], s77 offen{LF()}")
    xs = [x.strip() if isinstance(x, str) else x for x in xs]
    interleave(a, main_mfma(0), o_valu(1)[:40] + xs + pq_rd(2))
    interleave(a, o_mfma(2), o_valu(1)[40:] + pq_rd(3) + red_wr(0))
    a.wait_lg0()
    interleave(a, main_mfma(1), mix(o_valu(2)[:45], pre_dma[:12]))
    interleave(a, o_mfma(3), mix(o_valu(2)[45:] + red_wr(1), pre_dma[12:20]))
    if P2_FINE: stamp(a)
    XR = 160
    xl = [f"v_mul_u32_u24 v15, 160, v14", "v_lshl_add_u32 v15, v8, 3, v15", "v_add_u32 v15, s34, v15"]
    xl += [(f"ds_read_b64 {vr(XR+2*b, 2)}, v15 offset:{b*32}", None, xtok) for b in range(5)]
    xl.append(f"v_mov_b32 v{XR+10}, v158")
    interleave(a, main_mfma(2), mix(o_valu(3), pre_dma[20:] + tch[:22]))
    interleave(a, [], red_wr(2) + tch2 + xl)
    a.wait_lg0()
    a.i("s_barrier")
    if P2_FINE: stamp(a)
    PS = 176
    side = []
    side += ["v_lshlrev_b32 v7, 4, v14", "v_add_u32 v7, s58, v7"]
    for q in range(3):
        side.append(f"ds_read_b32 v{76+q*4}, v7 offset:{q*5376+5120}")
    for b in range(5):
        for q in range(3):
            side.append(f"ds_read_b128 {vr(16+(b*3+q)*4)}, v13 offset:{q*5376+b*1024}")
    for b in (5, 0, 1, 2, 3, 4):
        for j in range(4 if b < 5 else 1):
            side.append(f"v_add_f32 v{PS+b*4+j}, v{16+b*12+j}, v{16+b*12+4+j}")
            side.append(f"v_add_f32 v{PS+b*4+j}, v{PS+b*4+j}, v{16+b*12+8+j}")
        if b == 5:
            side.append(f"v_add_f32 v{XR+10}, v{XR+10}, v{PS+20}")
    for b in range(5):
        for jj in range(2):
            h = XR + b * 2 + jj
            side.append(f"v_lshlrev_b32 v4, 16, v{h}")
            side.append(f"v_and_b32 v5, 0xffff0000, v{h}")
            side.append(f"v_add_f32 v{PS+b*4+2*jj}, v{PS+b*4+2*jj}, v4")
            side.append(f"v_add_f32 v{PS+b*4+2*jj+1}, v{PS+b*4+2*jj+1}, v5")
    side += f"""v_bfe_u32 v4, v1, 4, 1
              v_lshlrev_b32 v4, 9, v4
              v_lshl_add_u32 v4, v14, 4, v4
              v_lshrrev_b32 v6, 5, v1
              v_lshl_add_u32 v5, v6, 3, v4
              v_lshl_add_u32 v4, v6, 10, v4
              s_lshl_b32 s26, s17, 1
              s_lshr_b32 s27, s16, 1
              s_add_u32 s26, s26, s27
              s_mul_i32 s26, s26, 40
              s_mul_i32 s27, s18, 5
              s_add_u32 s26, s26, s27
              s_lshl_b32 s26, s26, 10
              s_and_b32 s27, s16, 1
              s_lshl_b32 s27, s27, 8
              s_add_u32 s27, s27, s26
              s_add_u32 s27, s27, {WS_H}
              s_add_u32 s26, s27, 4096
              v_lshlrev_b32 v6, 5, v14
              s_lshl_b32 s28, s31, 9
              s_lshl_b32 s29, s18, 2
              s_add_u32 s28, s28, s29
              s_add_u32 s28, s28, {WS_ST2}
              s_lshl_b32 s29, s31, 6
              s_add_u32 s29, s29, {WS_M2}""".split("\n")
    interleave(a, main_mfma(3), tch[22:] + [x.strip() for x in side])
    if P2_FINE: stamp(a)
    OUT = 16
    a.i(f"v_accvgpr_read_b32 v7, a{ACC+20}")
    for k in range(20):
        a.i(f"v_accvgpr_read_b32 v{OUT+k}, a{ACC+k}")
    a.i(f"v_add_f32 v{XR+10}, v{XR+10}, v7")
    for k in range(20):
        a.i(f"v_add_f32 v{OUT+k}, v{OUT+k}, v{PS+k}")
    for k in range(20):
        a.i(f"v_sub_f32 v{OUT+k}, v{OUT+k}, v{XR+10}")
    PK = 200
    for b in range(5):
        for jj in range(2):
            a.i(f"v_cvt_pk_bf16_f32 v{PK+b*2+jj}, v{OUT+b*4+2*jj}, v{OUT+b*4+2*jj+1}")
    for p in range(2):
        r = PK + p * 4
        a.i(f"v_permlane32_swap_b32 v{r}, v{r+2}")
        a.i(f"v_permlane32_swap_b32 v{r+1}, v{r+3}")
        a.i(f"buffer_store_dwordx4 {vr(r)}, v4, s[8:11], s27 offen offset:{p*2048} {SF}")
    a.i(f"buffer_store_dwordx2 {vr(PK+8, 2)}, v5, s[8:11], s26 offen {SF}")
    a.i(f"v_mul_f32 v14, v{OUT}, v{OUT}")
    a.i(f"v_mul_f32 v15, v{OUT+1}, v{OUT+1}")
    for k in range(2, 20):
        a.i(f"v_fmac_f32 v{14 + k % 2}, v{OUT+k}, v{OUT+k}")
    a.many("""v_add_f32 v14, v14, v15
              v_mov_b32 v15, v14
              v_permlane16_swap_b32 v14, v15
              v_add_f32 v14, v14, v15
              v_mov_b32 v15, v14
              v_permlane32_swap_b32 v14, v15
              v_add_f32 v14, v14, v15
              s_mov_b64 exec, 0xffff""")
    a.i(f"buffer_store_dword v14, v6, s[8:11], s28 offen {SF}")
    a.i(f"buffer_store_dword v{XR+10}, v9, s[8:11], s29 offen {SF}")
    a.i("s_mov_b64 exec, -1")


P3_STAMPS = (3,)
P2_FINE = False
T1N = 3
SYNC_FINE = -1
W4TOK = []
P4_NPRE = 10


def p4_wreg(j, b):
    n = j * 5 + b
    if j >= P4_NPRE:
        return vr(64 + (n - P4_NPRE * 5) * 4, 4, 'a')
    if n < 11:
        return vr(212 + n * 4)
    if n < 21:
        return vr(216 + (n - 11) * 4, 4, 'a')
    if n < 44:
        return vr(120 + (n - 21) * 4)
    return vr(192 + (n - 44) * 4, 4, 'a')


KORD = [0, 1, 4, 5, 7, 8, 11, 12, 2, 3, 6, 9, 10, 13]


def p4_setup(a):
    a.many(f"""s_mul_i32 s21, s16, 14
              s_mul_i32 s70, s17, 54
              s_add_u32 s70, s70, s21
              s_lshl_b32 s70, s70, 12
              s_add_u32 s70, s70, {WS_ACT}
              s_mul_i32 s71, s18, 270
              s_add_u32 s71, s71, s21
              s_lshl_b32 s71, s71, 10
              s_add_u32 s71, s71, {WS_WD}
              s_cmp_eq_u32 s16, 3
              s_cselect_b32 s72, s56, s71
              s_cselect_b32 s74, s56, s70""")


def p4_wloads(a, j):
    L = []
    k = KORD[j]
    for b in range(5):
        L.append(f"s_add_u32 s73, {'s71' if k < 12 else 's72'}, {(b*54 + k)*1024}")
        L.append(f"buffer_load_dwordx4 {p4_wreg(j, b)}, v2, s[8:11], s73 offen{LF()}")
    return L


AQ_TOTAL = [0]
def body_p3(a, D, W4rest, bar_at=0.7, rd_ahead=6, dbg="", pace0=1, pace1=2, arate=3, w0=36, wstep=4.8, wgrp=4, pswitch=40):
    SF = "sc1"
    a.many(f"""v_lshlrev_b32 v2, 4, v1
              v_add_u32 v3, 0x1000, v2
              v_and_b32 v4, 31, v1
              s_lshl_b32 s26, s60, 2
              s_add_u32 s26, s26, s16
              s_mul_i32 s27, s26, 40960
              s_add_u32 s27, s27, {WS_H}
              v_lshlrev_b32 v5, 5, v4
              s_lshl_b32 s28, s26, 10
              s_add_u32 s28, s28, {WS_ST2}""")
    ACC = 16; ST = 80; RA2, RSQ = 8, 9; T = 96; PK = 88; WF = 160; NB = 7

    def slab(k0, k1):
        L = []
        for kb in range(k0, k1):
            if kb % 4 == 0 or kb == k0:
                L.append(f"s_add_u32 s34, s27, {(kb // 4) * 4096}")
            L.append(f"buffer_load_dwordx4 {vr(kb*4, 4, 'a')}, v2, s[8:11], s34 offen offset:{(kb % 4) * 1024} {'' if 'plain' in dbg else 'sc1'}")
        return L
    interleave(a, slab(0, NSLAB0), [])
    a.many(f"""s_lshl_b32 s30, s60, 1
              s_lshr_b32 s31, s16, 1
              s_add_u32 s30, s30, s31
              s_mul_i32 s30, s30, 108
              s_mul_i32 s31, s61, 7
              s_add_u32 s30, s30, s31
              s_lshl_b32 s30, s30, 1
              s_and_b32 s31, s16, 1
              s_add_u32 s30, s30, s31
              s_lshl_b32 s30, s30, 10
              s_add_u32 s30, s30, {WS_ACT}
              s_xor_b32 s32, s57, 1
              s_mul_i32 s32, s32, {6*2048}
              s_add_u32 s32, s32, s30
              s_lshl_b32 s31, s57, 11
              s_add_u32 s30, s30, s31
              s_cmp_eq_u32 s61, 15
              s_cselect_b32 s31, 0x7f000000, s30
              v_add_u32 v13, 0x10000, v2
              v_add_u32 v14, 0x20000, v2""")
    steps = sorted((gu_pos(c, kb), c, kb) for c in range(7) for kb in range(40))

    def rd(n):
        p, c, kb = steps[n]
        blk_, off = p3_lds(c, kb)
        assert blk_ == p // 40
        base = ["v2", "v13", "v14"][off >> 16]
        return f"ds_read_b128 {vr(WF + (n % 8) * 4, 4, 'a')}, {base} offset:{off & 0xffff}"

    def mm(n):
        p, c, kb = steps[n]
        sl = c % 4 if c < 6 else 2 + (kb & 1)
        d = vr(ACC + sl * 16, 16)
        return mfma32(d, vr(WF + (n % 8) * 4, 4, 'a'), vr(kb * 4, 4, 'a'), "0" if (kb == 0 or (c == 6 and kb == 1)) else None)

    sttok = {}
    def epi(c):
        L = []
        g0 = ACC + (c % 4) * 16
        u0 = g0 + 8
        pk = PK + (c % 2) * 4
        if c == 6:
            L += [f"v_add_f32 v{g0+j}, v{g0+j}, v{g0+16+j}" for j in range(16)]
        for hf in range(2):
            R = range(4 * hf, 4 * hf + 4)
            for j in R:
                L.append(f"v_mul_f32 v{T+j}, v{RA2}, v{g0+j}")
            for j in R:
                L.append(f"v_exp_f32 v{T+j}, v{T+j}")
                L.append(f"v_mul_f32 v{T+8+j}, v{g0+j}, v{u0+j}")
            for j in R:
                L.append(f"v_add_f32 v{T+j}, 1.0, v{T+j}")
            for j in R:
                L.append(f"v_rcp_f32 v{T+j}, v{T+j}")
                L.append(f"v_mul_f32 v{T+8+j}, v{RSQ}, v{T+8+j}")
            for j in R:
                L.append(f"v_mul_f32 v{T+8+j}, v{T+8+j}, v{T+j}")
            for jj in range(2 * hf, 2 * hf + 2):
                L.append(f"v_cvt_pk_bf16_f32 v{pk+jj}, v{T+8+2*jj}, v{T+8+2*jj+1}")
        L.append(f"s_add_u32 s35, {'s30' if c < 2 else ('s31' if c < 6 else 's32')}, {c*2048 if c < 6 else 0}")
        L.append((f"buffer_store_dwordx4 {vr(pk)}, v2, s[8:11], s35 offen {SF}", sttok.setdefault(c, Tok())))
        return L

    stats = [f"buffer_load_dwordx4 {vr(ST+q*4)}, v5, s[8:11], s28 offen offset:{q*16} sc1" for q in range(2)]
    sfin = [f"v_add_f32 v{ST}, v{ST}, v{ST+k}" for k in range(1, 8)]
    sfin += [f"v_mov_b32 v{ST+1}, {f32(1e-5)}", f"v_fmac_f32 v{ST+1}, {f32(1/640)}, v{ST}", f"v_rsq_f32 v{RA2}, v{ST+1}",
             f"v_rcp_f32 v{RSQ}, v{ST+1}", f"v_mul_f32 v{RA2}, {f32(-LOG2E)}, v{RA2}"]
    cut = int(40 * bar_at)

    def groups(L):
        out, cur = [], []
        for x in L:
            cur.append(x)
            t = x[0] if isinstance(x, tuple) else x
            if isinstance(t, str) and t.startswith("buffer_"):
                out.append(cur); cur = []
        if cur and out:
            out[-1] = out[-1] + cur
        return out
    vq = []
    if D23_IN_P3:
        vq += [(0, g) for g in groups(slab(NSLAB0, 30) + D[2][0] + slab(30, 40) + stats + D[3][0])]
    else:
        vq += [(0, g) for g in groups(slab(NSLAB0, 40) + stats)]
    for b in (4, 5, 6):
        vq += [(40 * (b - 3) + cut, g) for g in groups(D[b][0])]
    wq = [(w0 + int(wstep * k), g) for k, g in enumerate(groups(W4rest))]
    if "now4" in dbg:
        for j in range(P4_NPRE):
            for b in range(5):
                for r in regs_of(p4_wreg(j, b)): a.ever.add(r)
        wq = []
    if "hotw4" in dbg:
        wq = [(e, [x.replace("s71", "s27") if isinstance(x, str) else x for x in g]) for e, g in wq]
    if "latew4" in dbg:
        wq = [(160, g) for _, g in wq]
    def w4_dma(j):
        L = []
        k = KORD[j]
        base = (3 * 40960 if j < 12 else 0) + (j % 2) * 5120
        for b in range(5):
            def setm(b=b):
                a.i(f"s_add_u32 s68, s67, {base + b * 1024}")
                a.i("s_mov_b32 m0, s68")
                a.i(f"s_add_u32 s73, {'s71' if k < 12 else 's72'}, {(b*54 + k)*1024}")
            L.append(setm)
            L.append(f"buffer_load_dwordx4 v2, s[8:11], s73 offen{LF()} lds")
        return L
    if W4_LDS:
        lq = groups(sum([w4_dma(j) for j in range(P4_NPRE, 14)], []))
        e0 = max(wq[-1][0] if wq else 0, 200 + cut)
        wq += [(min(e0 + 2 * k, 279), g) for k, g in enumerate(lq)]
    aq = [(60, [x]) for x in sfin]
    for c in range(6):
        aq += [(80 * (c // 2 + 1) + 1, [x]) for x in epi(c)]
    atotal = len(aq)

    def emit(items):
        for x in items:
            if callable(x): x()
            elif isinstance(x, tuple): a.i(*x)
            else: a.i(x)
    NB = 7
    a.wait_tok(D[0][1][-1], D[1][1][-1])
    a.i("s_barrier")
    nrd = 0
    rdseq = {}
    last_v = -99
    for n in range(NB * 40):
        blk, i = n // 40, n % 40
        if i == cut and 1 <= blk < NB - 1:
            a.wait_tok(D[blk + 1][1][-1])
            if blk == 5:
                need = len(sfin) + sum(len(epi(c)) for c in range(4))
                while atotal - len(aq) < need:
                    emit(aq.pop(0)[1])
                a.wait_tok(sttok[3])
            a.i("s_barrier")
            if blk == 5:
                flag_store(a, 1)
        if n in (160, 240):
            need = len(sfin) + sum(len(epi(c)) for c in range(2 if n == 160 else 4))
            while atotal - len(aq) < need:
                emit(aq.pop(0)[1])
        lim = min(n + rd_ahead + 1, (blk + 1) * 40 if (i < cut and blk >= 1) else min((blk + 2) * 40, NB * 40))
        while nrd < lim:
            a.i(rd(nrd)); rdseq[nrd] = a.lg_n - 1; nrd += 1
        if n % wgrp == 0:
            a.need(lgseq=rdseq[min(n + wgrp - 1, nrd - 1)])
        a.i(mm(n))
        pace = pace0 if n < pswitch else pace1
        if n - last_v >= pace:
            if vq and vq[0][0] <= n:
                emit(vq.pop(0)[1]); last_v = n
            elif wq and wq[0][0] <= n:
                emit(wq.pop(0)[1]); last_v = n
        k = 0
        while aq and aq[0][0] <= n and k < arate:
            emit(aq.pop(0)[1]); k += 1
        if i == 39 and blk in P3_STAMPS:
            stamp(a)
        if n == 268:
            poll_issue(a, 1, 12)
    assert not vq
    for q in (aq, wq):
        while q:
            emit(q.pop(0)[1])
    interleave(a, epi(6), [])
    return sttok[6]


def body_p4(a, name, last_store, depth=4):
    ACC = 16
    NK = 14
    ORDER = [1, 2, 3, 0]
    a.many("""v_lshrrev_b32 v8, 5, v1
              v_lshlrev_b32 v8, 11, v8
              v_bfe_u32 v9, v1, 4, 1
              v_lshl_add_u32 v8, v9, 9, v8
              v_and_b32 v9, 15, v1
              v_lshl_add_u32 v8, v9, 4, v8""")
    for k, rp in enumerate(ORDER):
        a.i(f"s_add_u32 s22, s16, {rp}")
        a.i("s_and_b32 s23, s22, 1")
        a.i("s_lshl_b32 s23, s23, 8")
        a.i("s_and_b32 s22, s22, 2")
        a.i("s_lshl_b32 s22, s22, 9")
        a.i("s_add_u32 s22, s22, s23")
        a.i(f"v_add_u32 v{4+k}, s22, v8")

    def aloads(j):
        base = (j % depth) * 16
        k = KORD[j]
        L = [f"s_add_u32 s75, {'s70' if k < 12 else 's74'}, {k*4096}"]
        L += [f"buffer_load_dwordx4 {vr(base+x*4, 4, 'a')}, v{4+x}, s[8:11], s75 offen sc1" for x in range(4)]
        return L
    poll_check(a, f"L_pa_{name}", 12)
    for j in range(depth - 1):
        interleave(a, aloads(j), [])
    a.wait_tok(last_store)
    a.i("s_barrier")
    flag_store(a, 2)
    if W4_LDS:
        a.i("v_add_u32 v13, s67, v2")
        a.i("v_add_u32 v14, 0x1e000, v13")
        late_w = []
        for j in range(P4_NPRE, 14):
            for b in range(5):
                late_w += [f"ds_read_b128 {p4_wreg(j, b)}, {'v14' if j < 12 else 'v13'} offset:{(j % 2) * 5120 + b * 1024}", "s_nop 0"]
    else:
        late_w = sum([p4_wloads(a, j) for j in range(P4_NPRE, 14)], [])
    HR = 100
    a.many(f"""v_bfe_u32 v10, v1, 4, 1
              v_lshlrev_b32 v10, 9, v10
              v_lshl_add_u32 v10, v9, 4, v10
              v_lshrrev_b32 v12, 5, v1
              v_lshl_add_u32 v10, v12, 3, v10
              v_lshlrev_b32 v11, 2, v9
              s_lshl_b32 s26, s17, 1
              s_lshr_b32 s27, s16, 1
              s_add_u32 s26, s26, s27
              s_mul_i32 s26, s26, 40
              s_mul_i32 s27, s18, 5
              s_add_u32 s26, s26, s27
              s_lshl_b32 s26, s26, 10
              s_and_b32 s27, s16, 1
              s_lshl_b32 s27, s27, 8
              s_add_u32 s27, s27, s26
              s_add_u32 s27, s27, {WS_H}
              s_add_u32 s26, s27, 4096
              s_lshl_b32 s28, s17, 2
              s_add_u32 s28, s28, s16
              s_lshl_b32 s28, s28, 6
              s_add_u32 s28, s28, {WS_M2}""")
    red_setup(a, 5120, 40960, 96)
    hl = [f"buffer_load_dwordx2 {vr(HR+2*b, 2)}, v10, s[8:11], s27 offen offset:{b*1024} sc1" for b in range(4)]
    hl += [f"buffer_load_dwordx2 {vr(HR+8, 2)}, v10, s[8:11], s26 offen sc1",
           f"buffer_load_dword v{HR+10}, v11, s[8:11], s28 offen sc1"]

    def mm(j, k):
        rp = ORDER[k]
        return [mfma(vr(ACC + (rp * 5 + b) * 4), p4_wreg(j, b), vr((j % depth) * 16 + k * 4, 4, 'a'), "0" if j == 0 else None) for b in range(5)]
    NT = 3
    for j in range(NK - NT):
        M = []
        for b in range(5):
            for k in range(4):
                M.append(mm(j, k)[b])
        side = aloads(j + depth - 1) if j + depth - 1 < NK else []
        if j == 2:
            side = side + hl
        if j < 4:
            side = side + late_w[j * 10:(j + 1) * 10]
        if j == 3:
            side = side + [lambda: poll_issue(a, 2, 12)]
        if j + depth - 1 == 8:
            poll_check(a, f"L_pb_{name}", 12)
        interleave(a, M, side)
    wr = lambda k: [f"ds_write_b128 v{96+ORDER[k]-1}, {vr(ACC+(ORDER[k]*5+b)*4)} offset:{b*1024}" for b in range(5)]
    tail = lambda k: sum([mm(j, k) for j in range(NK - NT, NK)], [])
    interleave(a, tail(0), [])
    interleave(a, tail(1), wr(0), start=4)
    interleave(a, tail(2), wr(1), start=4)
    side = f"""v_lshrrev_b32 v3, 4, v1
              s_movk_i32 s20, 1280
              v_mul_lo_u32 v2, v9, s20
              v_and_b32 v4, 1, v3
              v_lshlrev_b32 v4, 5, v4
              v_lshrrev_b32 v5, 1, v3
              v_lshlrev_b32 v5, 4, v5
              v_add3_u32 v4, v4, v5, v2
              v_lshl_add_u32 v5, v3, 3, v2
              s_lshl_b32 s20, s17, 2
              s_add_u32 s20, s20, s16
              s_mul_i32 s20, s20, 20480
              s_mul_i32 s21, s18, 160
              s_add_u32 s20, s20, s21""".split("\n")
    PS = 180
    for b in range(5):
        for jj in range(2):
            h = HR + b * 2 + jj
            side.append(f"v_lshlrev_b32 v{PS+b*4+2*jj}, 16, v{h}")
            side.append(f"v_and_b32 v{PS+b*4+2*jj+1}, 0xffff0000, v{h}")
    side += [f"v_add_f32 v{PS+k}, v{PS+k}, v{HR+10}" for k in range(20)]
    interleave(a, tail(3), wr(2) + [x.strip() for x in side], start=3)
    a.wait_lg0()
    a.i("s_barrier")
    for b in range(5):
        for q in range(3):
            a.i(f"ds_read_b128 {vr(120+(b*3+q)*4)}, v99 offset:{(q*5+b)*1024}")
    for k in range(20):
        a.i(f"v_add_f32 v{ACC+k}, v{ACC+k}, v{PS+k}")
    PK = 112
    for b in range(5):
        for j in range(4):
            a.i(f"v_add_f32 v{120+b*12+j}, v{120+b*12+j}, v{124+b*12+j}")
            a.i(f"v_add_f32 v{ACC+b*4+j}, v{ACC+b*4+j}, v{128+b*12+j}")
        for j in range(4):
            a.i(f"v_add_f32 v{ACC+b*4+j}, v{ACC+b*4+j}, v{120+b*12+j}")
        for jj in range(2):
            a.i(f"v_cvt_pk_bf16_f32 v{PK+(b % 4)*2+jj}, v{ACC+b*4+2*jj}, v{ACC+b*4+2*jj+1}")
        if b % 2 == 1:
            r = PK + (b // 2) * 4
            a.i(f"v_permlane16_swap_b32 v{r}, v{r+2}")
            a.i(f"v_permlane16_swap_b32 v{r+1}, v{r+3}")
            a.i(f"buffer_store_dwordx4 {vr(r)}, v4, s[96:99], s20 offen offset:{(b // 2)*64}")
    a.i(f"buffer_store_dwordx2 {vr(PK, 2)}, v5, s[96:99], s20 offen offset:128")


def gpoll(a, lbl, loads, regs):
    a.i("s_cmp_lg_u32 s16, 0")
    a.i(f"s_cbranch_scc1 {lbl}_w")
    a.raw("s_mov_b32 s21, 0")
    a.label(f"{lbl}_p")
    for x in loads:
        a.raw(x)
    a.raw("s_waitcnt vmcnt(0)")
    for r in regs[1:]:
        a.raw(f"v_and_b32 v{regs[0]}, v{regs[0]}, v{r}")
    a.raw(f"v_cmp_ne_u32 vcc, 1, v{regs[0]}")
    a.raw("s_add_u32 s21, s21, 1")
    a.raw("s_cmp_ge_u32 s21, 0x40000")
    a.raw(f"s_cbranch_scc1 {lbl}_w")
    a.raw(f"s_cbranch_vccz {lbl}_w")
    a.raw(f"s_sleep {GPOLL_SLEEP}")
    a.raw(f"s_branch {lbl}_p")
    a.label(f"{lbl}_w")
    a.i("s_barrier")
    a.nop(2)


GPOLL_SLEEP = 4


def gen_b(kidx, name="pb_kernel", dbg="", p3kw={}, a=None):
    global MERGED
    MERGED = a is not None
    if a is None:
        a = Asm()
        prologue(a, name, 256, [(4, KA_WS), (6, KA_X), (52, KA_OUT)])
    else:
        for sreg, off in [(4, KA_WS), (6, KA_X), (52, KA_OUT)]:
            a.i(f"s_load_dwordx2 s[{sreg}:{sreg+1}], s[0:1], {off}")
        a.raw("s_waitcnt vmcnt(0)")
        a.i("s_barrier")
        a.many(f"""s_cmp_eq_u32 s16, 0
                  s_mov_b32 s20, 0x7f000000
                  s_cselect_b32 s20, {WS_FLAG}, s20
                  v_mov_b32 v10, s78
                  v_mov_b32 v11, 1
                  s_mov_b64 exec, 1""")
        a.i("buffer_store_dword v11, v10, s[8:11], s20 offen sc1")
        a.i("s_mov_b64 exec, -1")
        stamp(a)
    a.many(f"""s_and_b32 s19, s2, 7
              s_lshr_b32 s20, s2, 3
              s_lshr_b32 s62, s20, 3
              s_and_b32 s18, s20, 7
              s_lshr_b32 s60, s19, 1
              s_lshl_b32 s60, s60, 2
              s_add_u32 s60, s60, s62
              s_and_b32 s21, s19, 1
              s_lshl_b32 s17, s60, 1
              s_add_u32 s17, s17, s21
              s_lshl_b32 s61, s21, 3
              s_add_u32 s61, s61, s18
              s_lshl_b32 s64, s60, 7
              s_lshl_b32 s63, s61, 2
              s_add_u32 s63, s63, s64
              s_mul_i32 s59, s61, {280*1024}
              s_add_u32 s59, s59, {WS_WGU}
              s_mul_i32 s67, s16, 10240
              s_mul_i32 s66, s16, 5120
              s_add_u32 s66, s66, s59
              s_add_u32 s59, s59, s67
              s_and_b32 s57, s61, 1
              s_mov_b32 s56, 0x7f000000
              s_mul_i32 s22, s57, 40960
              s_add_u32 s66, s66, s22
              s_xor_b32 s22, s57, 1
              s_mul_i32 s22, s22, {6*40960}
              s_add_u32 s59, s59, s22""")
    D = [p3_dma(a, b, 2) for b in range(7)]
    p4_setup(a)
    W4all = sum([p4_wloads(a, j) for j in range(P4_NPRE)], [])
    body_p2(a, D[0][0] + D[1][0], [], W4all[:2 * W4_P2], [])
    if "fine" not in dbg and SYNC_FINE != 1:
        stamp(a)
    signal_and_wait(a, name, 0, between=None if D23_IN_P3 else (lambda: interleave(a, D[2][0] + D[3][0] + W4all[2 * W4_P2:2 * W4_SY], [])))
    if SYNC_FINE != 1: stamp(a)
    last = body_p3(a, D, W4all[2 * W4_SY:], dbg=dbg, **p3kw)
    stamp(a)
    body_p4(a, name, last)
    epilogue(a, name, kidx, 256)
    print(name, "instrs", a.ninstr, "nops", a.nops)
    return name, kernel_wrap(name, a.text(), 256, 256), 256, 256, 163840
```

```python
import gen
from gen import *
import gen1, genb
from gen1 import gen_p1
from genb import gen_b
KNAME = "sequential_preLN__linear_attn_block__swiglu_ffn__prompt_kernel"
def gen_m(kidx, name=KNAME, p3kw=dict(arate=2, wstep=3.8), dbg=""):
    return gen_p1(kidx, name=name, st_flags="sc1", merged=lambda a: gen_b(kidx, name=name, p3kw=p3kw, a=a, dbg=dbg))
```

```python
import sys
import gen
gen.STAMPS = False
from gen import *
from genm import *
from mk import HDR
def finalm(k, path):
    name, txt, nwg, blk, lds = k
    s = HDR + f"; @launch grid=({nwg},1,1) block=({blk},1,1) lds={lds}\n" + '.amdgcn_target "amdgcn-amd-amdhsa--gfx950"\n' + txt + "\n"
    open(path, "w").write(s)
    print(path, len(s))
if __name__ == "__main__":
    finalm(gen_m(0), sys.argv[1])
```
